```python
import torch

def _softmax(x, axis=-1):
    return torch.softmax(x, dim=axis)
def _gelu(x):
    return torch.nn.functional.gelu(x, approximate="tanh")
def _silu(x):
    return torch.nn.functional.silu(x)
def _sigmoid(x):
    return torch.sigmoid(x)
def _layernorm(x, axis=-1, eps=1e-5):
    m = x.mean(dim=axis, keepdim=True)
    v = x.var(dim=axis, keepdim=True, unbiased=False)
    return (x - m) / torch.sqrt(v + eps)
def _scatter_add(tgt, idx, src, axis=0):
    return tgt.clone().index_add_(axis, idx, src)
def _segment_sum(src, seg, n):
    out = torch.zeros((n,) + src.shape[1:], dtype=src.dtype)
    return out.index_add_(0, seg, src)
def _pad(x, pw):
    flat = tuple(v for pair in reversed(pw) for v in pair)
    return torch.nn.functional.pad(x, flat)

kernel_name = 'sequential_preLN__sliding_block_cached__dense_activation_silu__decode'

def setup_inputs():

    _w = (lambda a: (lambda t: t.to(torch.bfloat16) if t.is_floating_point() else t)(torch.as_tensor(a)))
    def _A_setup():
        B, Sq, D = 1, 1, 512
        Hq, Hkv, Sk, Dh = 32, 8, 32768, 128
        assert Hq % Hkv == 0, (Hq, Hkv)
        return {
            "x": _w((lambda *s: torch.randn(*s, dtype=torch.bfloat16) * 0.05)(B, Sq, D)),
            "k_cache": _w((lambda *s: torch.randn(*s, dtype=torch.bfloat16) * 3.2)(B, Hkv, Sk, Dh)),
            "v_cache": _w((lambda *s: torch.randn(*s, dtype=torch.bfloat16) * 0.8)(B, Hkv, Sk, Dh)),
            "wq": _w((lambda *s: torch.randn(*s, dtype=torch.bfloat16) * 3.2)(D, Hq * Dh) * (D ** -0.5)),
            "wo": _w((lambda *s: torch.randn(*s, dtype=torch.bfloat16) * 0.8)(Hq * Dh, D) * ((Hq * Dh) ** -0.5)),
        }
    _A_in = _A_setup()

    def _B_setup():
        B, S, D, F = 1, 1, 512, 1792
        return {
            "x": _w((lambda *s: torch.randn(*s, dtype=torch.bfloat16) * 0.05)(B, S, D)),
            "w1": _w((lambda *s: torch.randn(*s, dtype=torch.bfloat16) * 3.2)(D, F) * (D ** -0.5)),
            "w2": _w((lambda *s: torch.randn(*s, dtype=torch.bfloat16) * 0.4)(F, D) * (F ** -0.5)),
        }
    _B_in = _B_setup()

    return {
        "A_x": _A_in["x"],
        "A_k_cache": _A_in["k_cache"],
        "A_v_cache": _A_in["v_cache"],
        "A_wq": _A_in["wq"],
        "A_wo": _A_in["wo"],
        "B_x": _B_in["x"],
        "B_w1": _B_in["w1"],
        "B_w2": _B_in["w2"],
    }

def reference(A_x, A_k_cache, A_v_cache, A_wq, A_wo, B_x, B_w1, B_w2):
    def _A_ref(x, k_cache, v_cache, wq, wo):
        B, Sq, D = x.shape
        Hq, Dh = 32, 128
        Hkv, Sk = k_cache.shape[1], k_cache.shape[2]
        W = min(4096, max(256, Sk // 4))
        rep = Hq // Hkv
        q = (lambda x, *d: x.permute(*d))((x @ wq).reshape(B, Sq, Hq, Dh), 0, 2, 1, 3)
        k = (lambda x, n, axis: torch.repeat_interleave(x, n, dim=axis))(k_cache[:, :, Sk - W:, :], rep, axis=1)
        v = (lambda x, n, axis: torch.repeat_interleave(x, n, dim=axis))(v_cache[:, :, Sk - W:, :], rep, axis=1)
        scores = torch.einsum("bhqd,bhkd->bhqk", q, k) * (Dh ** -0.5)
        p = _softmax(scores, axis=-1)
        o = torch.einsum("bhqk,bhkd->bhqd", p, v)
        return (lambda x, *d: x.permute(*d))(o, 0, 2, 1, 3).reshape(B, Sq, Hq * Dh) @ wo

    def _B_ref(x, w1, w2):
        h = torch.einsum("bsd,df->bsf", x, w1)
        h = _silu(h)
        out = torch.einsum("bsf,fd->bsd", h, w2)
        return out

    x = A_x
    h = x + _A_ref(_layernorm(x, axis=-1), A_k_cache, A_v_cache, A_wq, A_wo)
    h2 = h + _B_ref(_layernorm(h, axis=-1), B_w1, B_w2)
    return h2
```

```python
KN = "sequential_preLN__sliding_block_cached__dense_activation_silu__decode_kernel"

HEADER_LAYOUT = """; Kernarg layout for this problem (88 bytes, ptrs only, base s[0:1]):
"""

class Asm:
    def __init__(self):
        self.lines = []
    def __call__(self, s=""):
        for l in s.split("\n"):
            self.lines.append(l)
    def label(self, name):
        self.lines.append(name + ":")
    def text(self):
        return "\n".join(self.lines) + "\n"

def wrap(body, grid, block, lds, nvgpr, nsgpr=102, accum=None, name=KN, pad=None, doc=None):
    if accum is None:
        accum = (nvgpr + 3) // 4 * 4
    s = HEADER_LAYOUT
    s += f"; @launch grid=({grid},1,1) block=({block},1,1) lds={lds}\n"
    s += '.amdgcn_target "amdgcn-amd-amdhsa--gfx950"\n.text\n'
    if pad is not None:
        s += f"; never executed: places the kernel entry at the start of a 4 KiB page (instruction fetch stalls at page crossings)\n.p2align 12\n.fill {pad // 4}, 4, 0xbf800000\n"
    if doc: s += doc
    s += f".globl {name}\n.p2align 8\n.type {name},@function\n{name}:\n"
    s += body
    s += f"""
.section .rodata,"a"
.p2align 6
.amdhsa_kernel {name}
  .amdhsa_next_free_vgpr {nvgpr}
  .amdhsa_next_free_sgpr {nsgpr}
  .amdhsa_accum_offset {accum}
  .amdhsa_group_segment_fixed_size 0
  .amdhsa_kernarg_size 88
  .amdhsa_user_sgpr_count 2
  .amdhsa_user_sgpr_kernarg_segment_ptr 1
  .amdhsa_system_sgpr_workgroup_id_x 1
  .amdhsa_float_denorm_mode_32 3
  .amdhsa_float_denorm_mode_16_64 3
.end_amdhsa_kernel
"""
    return s
```

```python
import re

TRANS = ("v_exp_", "v_log_", "v_rcp_", "v_rsq_", "v_sqrt_", "v_sin_", "v_cos_")

def regs_of(tok):
    tok = tok.strip()
    neg = tok.lstrip("-")
    if neg.startswith("abs(") or neg.startswith("|"):
        neg = neg.replace("abs(", "").replace(")", "").replace("|", "")
    m = re.fullmatch(r"([vsa])\[(\d+):(\d+)\]", neg)
    if m:
        return [(m.group(1), i) for i in range(int(m.group(2)), int(m.group(3)) + 1)]
    m = re.fullmatch(r"([vsa])(\d+)", neg)
    if m:
        return [(m.group(1), int(m.group(2)))]
    if neg == "vcc":
        return [("s", 106), ("s", 107)]
    if neg in ("exec", "exec_lo", "exec_hi"):
        return [("x", 0)]
    if neg == "m0":
        return [("m", 0)]
    return []

def parse(line):
    l = line.split(";")[0].split("//")[0].strip()
    if not l or l.endswith(":") or l.startswith("."):
        return None
    parts = l.split(None, 1)
    op = parts[0]
    ops = []
    if len(parts) > 1:
        cur = ""; depth = 0
        for ch in parts[1]:
            if ch == "[": depth += 1
            if ch == "]": depth -= 1
            if ch == "," and depth == 0:
                ops.append(cur.strip()); cur = ""
            else:
                cur += ch
        ops.append(cur.strip())
    mods = ""
    if ops:
        sp = ops[-1].split(None, 1)
        ops[-1] = sp[0]
        if len(sp) > 1: mods = sp[1]
    return op, ops, mods

def classify(op, ops, mods):
    d = dict(valu=False, mfma=False, dpp=False, perm=False, rl=False, trans=False, vmem=False, ds=False, salu=False,
             dot=False, w=[], r=[], cread=[], lds_dma=False, store=False, wide=False, nopn=0)
    R = lambda toks: [x for t in toks for x in regs_of(t)]
    if op == "s_nop":
        d["nopn"] = int(ops[0], 0); d["salu"] = True
    elif op.startswith("v_mfma"):
        d["mfma"] = True; d["w"] = R(ops[:1]); d["r"] = R(ops[1:3]); d["cread"] = R(ops[3:4])
    elif op.startswith("v_permlane"):
        d["valu"] = True; d["perm"] = True; d["w"] = R(ops[:2]); d["r"] = R(ops[:2])
    elif op.startswith("v_readfirstlane") or op.startswith("v_readlane"):
        d["valu"] = True; d["rl"] = True; d["w"] = R(ops[:1]); d["r"] = R(ops[1:])
    elif op.startswith("v_cmp"):
        d["valu"] = True; d["w"] = R(ops[:1]); d["r"] = R(ops[1:])
    elif op.startswith("v_"):
        d["valu"] = True
        d["w"] = R(ops[:1]); d["r"] = R(ops[1:])
        if op.startswith(("v_fmac", "v_dot2c", "v_pk_fmac")): d["r"] += R(ops[:1])
        if op.startswith("v_cndmask") and len(ops) == 3: d["r"] += regs_of("vcc")
        if "_dpp" in op or "row_" in mods or "quad_perm" in mods or "newbcast" in mods:
            d["dpp"] = True
            d["r"] += R(ops[:1])
        if op.startswith(TRANS): d["trans"] = True
        if op.startswith("v_dot"): d["dot"] = True
        if "_co_" in op:
            d["w"] += R(ops[1:2])
    elif op.startswith(("buffer_", "global_")):
        d["vmem"] = True
        if " lds" in (" " + mods) :
            d["lds_dma"] = True; d["r"] = R(ops) + [("m", 0)]
        elif "store" in op or "atomic" in op:
            d["store"] = True; d["r"] = R(ops)
            d["wide"] = "x3" in op or "x4" in op
            if op.startswith("buffer_"): d["sdata"] = R(ops[:1])
            else: d["sdata"] = R(ops[1:2])
        else:
            d["w"] = R(ops[:1]); d["r"] = R(ops[1:])
    elif op.startswith("ds_"):
        d["ds"] = True
        if op.startswith(("ds_write", "ds_add")):
            d["r"] = R(ops)
        else:
            d["w"] = R(ops[:1]); d["r"] = R(ops[1:])
    elif op.startswith("s_"):
        d["salu"] = True
        if op.startswith(("s_cmp", "s_cbranch", "s_branch", "s_waitcnt", "s_barrier", "s_endpgm", "s_sleep", "s_setprio", "s_bitcmp")):
            d["r"] = R(ops)
        else:
            d["w"] = R(ops[:1]); d["r"] = R(ops[1:])
    return d

def need(prod, cons):
    n = 0
    pw = set(prod["w"]); cr = set(cons["r"]); cw = set(cons["w"]); cc = set(cons["cread"])
    pv = {x for x in pw if x[0] in "va"}; ps = {x for x in pw if x[0] == "s"}
    if prod["valu"]:
        if pv & cr and cons["dpp"]: n = max(n, 2)
        if pv & cr and cons["perm"]: n = max(n, 2)
        if pv & cr and cons["rl"]: n = max(n, 1)
        if pv & (cr | cc) and cons["mfma"]: n = max(n, 2)
        if prod["trans"] and cons["valu"] and not cons["trans"] and pv & cr: n = max(n, 1)
        if prod["trans"] and cons["mfma"] and pv & (cr | cc): n = max(n, 2)
        if ps & cr and cons["valu"]: n = max(n, 2)
        if ps & cr and cons["vmem"]: n = max(n, 5)
        if prod["dot"] and (pv & (cr | cw)) and (cons["valu"] or cons["mfma"] or cons["vmem"] or cons["ds"]):
            same = prod["op"] == cons["op"]
            if not (same and pv & set(cons.get("srcc", []))) : n = max(n, 3)
        if ("x", 0) in pw and (cons["dpp"]): n = max(n, 5)
    if prod["mfma"]:
        passes = 8 if "32x32" in prod["op"] else 4
        far = {4: 8, 8: 12}[passes]
        if cons["mfma"]:
            if pv & cr: n = max(n, far)
            if pv & cc:
                if not (set(cons["cread"]) == pw and cons["op"] == prod["op"]): n = max(n, {4: 6, 8: 10}[passes])
            if pv & cw and not (pv & cc): n = max(n, {4: 6, 8: 10}[passes]) if False else n
        elif cons["valu"] or cons["vmem"] or cons["ds"]:
            if pv & (cr | cw): n = max(n, far)
        if cons["valu"] and set(prod["cread"]) & cw: n = max(n, {4: 3, 8: 7}[passes])
    if prod["salu"] and ("m", 0) in pw and cons["lds_dma"]: n = max(n, 1)
    if prod["store"] and prod["wide"] and set(prod.get("sdata", [])) & cw and (cons["valu"] or cons["mfma"]): n = max(n, 2)
    if prod["store"] and prod["wide"] and set(prod.get("sdata", [])) & cw: n = max(n, 1)
    return n

def fix(text, verbose=False):
    out = []
    hist = []
    pos = 0
    ninserted = 0
    for line in text.split("\n"):
        p = parse(line)
        if p is None:
            out.append(line); continue
        op, ops, mods = p
        d = classify(op, ops, mods); d["op"] = op
        if d["dot"] and len(ops) == 4: d["srcc"] = regs_of(ops[3])
        req = 0
        for (pd, ppos) in hist:
            k = need(pd, d)
            if k:
                have = pos - ppos - 1
                req = max(req, k - have)
        if req > 0:
            out.append(f"    s_nop {req-1}    ; hz")
            pos += req; ninserted += 1
            if verbose: print("nop", req, "before", line.strip())
        out.append(line)
        hist.append((d, pos))
        pos += 1 + d["nopn"]
        hist = [(h, q) for (h, q) in hist if pos - q <= 14]
    return "\n".join(out), ninserted
```

```python
import sys
from asmgen import *
from hazard import fix

STAMPS = "--stamps" in sys.argv
DUMP = "--dump" in sys.argv
def opt(name, default):
    for x in sys.argv:
        if x.startswith(f"--{name}="):
            return type(default)(x.split("=", 1)[1])
    return default
NT = opt("nt", "nt")
SLQ = opt("slq", 2); SLB = opt("slb", 1); SLC = opt("slc", 1); SLH = opt("slh", 2); SLE = opt("sle", 2)

EPOCH = 0x0
PH = 0x1000
QP_G = 0x10000
PB = 0x40000
PC = 0xC0000
PE = 0x140000
DBG = 0x400000
STAMP = 0x8000000
KL = 0x0
WL = 0x8000
XN = 0x10000
OL = 0x11000
ML = 0x13400
QP = 0x13480
OB = 0x13900
AL = 0x13980
QL = 0x13B00
LDS_SIZE = 86016

sG, sJ, sW, sSPIN = 3, 4, 5, 6
SX, SK, SV, SWQ, SWO, SW1, SW2, SOUT, SWS = 8, 12, 16, 20, 24, 28, 32, 36, 40
sKV, sKV1 = 44, 45
sTAG, sTAGB = 46, 47
sT0, sT1, sT2, sT3 = 48, 49, 50, 51
sM1, sM2, sM3 = 52, 54, 56
sLOG2E, sSCALE = 58, 60
sQG = 62
sBP = 63
sSEL0, sSEL1 = 64, 65
sF = 66
sST = 70
NST = 16

a = Asm()
def stamp(i):
    if STAMPS:
        a(f"s_memrealtime s[{sST+2*i}:{sST+2*i+1}]")
def setexec(mask):
    if mask == -1: a("s_mov_b64 exec, -1"); return
    lo, hi = mask & 0xffffffff, mask >> 32
    if mask <= 64: a(f"s_mov_b64 exec, {mask}"); return
    a(f"s_mov_b32 exec_lo, {hex(lo)}\ns_mov_b32 exec_hi, {hex(hi)}")

vLane, vN, vS = 1, 2, 3
vKD = 4
vVA = 8
vQA = 9
vT = 10
vKF = 32
vVR = 64
vVF = 96
vQ = 128
vQ2 = 144
vO = 160
vS0 = 192
vU = 200
vXC = 248
vEP = 249
vH = 250
vONE = 252
NVGPR = 256

def srd_const(s, size):
    a(f"s_mov_b32 s{s+2}, {size}\ns_mov_b32 s{s+3}, 0x20000")
def dump(reg, n, slot):
    if not DUMP: return
    a(f"s_lshl_b32 s{sT3}, s2, 14\ns_add_u32 s{sT3}, s{sT3}, {DBG + slot*0x400000}")
    a(f"v_lshlrev_b32 v31, 6, v0")
    for i in range(n):
        a(f"buffer_store_dword v{reg+i}, v31, s[{SWS}:{SWS+3}], s{sT3} offen offset:{i*4}")
def spin_tail(loop, ok, sl=1):
    a(f"""
    s_cbranch_vccz {ok}
    s_sleep {sl}
    s_add_u32 s{sSPIN}, s{sSPIN}, 1
    s_cmp_lt_u32 s{sSPIN}, 0x40000
    s_cbranch_scc1 {loop}
    s_branch L_fin
{ok}:""")
def tagcalc():
    a(f"""
    s_add_u32 s{sTAG}, s{sTAG}, 0x9e3779b8
    s_or_b32 s{sTAG}, s{sTAG}, 1
    s_xor_b32 s{sTAGB}, s{sTAG}, 0x5bd1e994""")
def unpack8(src, dst):
    for i in range(4):
        a(f"v_lshlrev_b32 v{dst+2*i}, 16, v{src+i}\nv_and_b32 v{dst+2*i+1}, 0xffff0000, v{src+i}")
def round_bf16(r):
    a(f"v_cvt_pk_bf16_f32 v{r}, v{r}, v{r}\nv_lshlrev_b32 v{r}, 16, v{r}")
def allreduce(regs, op, tmps, steps=(8, 4, 2, 1)):
    for st in steps:
        for r in regs:
            a(f"{op}_dpp v{r}, v{r}, v{r} row_ror:{st} row_mask:0xf bank_mask:0xf")
    for sw in ("v_permlane16_swap_b32", "v_permlane32_swap_b32"):
        for r, t in zip(regs, tmps):
            a(f"v_mov_b32 v{t}, v{r}")
        for r, t in zip(regs, tmps):
            a(f"{sw} v{r}, v{t}")
        for r, t in zip(regs, tmps):
            a(f"{op} v{r}, v{r}, v{t}")
def perms(raw, frag, b):
    for e in range(8):
        sel = sSEL1 if e & 1 else sSEL0
        for h in range(2):
            r0 = raw + (b * 4 + 2 * h) * 4 + (e >> 1)
            r1 = raw + (b * 4 + 2 * h + 1) * 4 + (e >> 1)
            a(f"v_perm_b32 v{frag + e*4 + 2*b + h}, v{r1}, v{r0}, s{sel}")
def mfma(d, A, B, c):
    cs = "0" if c is None else f"v[{c}:{c+3}]"
    a(f"v_mfma_f32_16x16x32_bf16 v[{d}:{d+3}], v[{A}:{A+3}], v[{B}:{B+3}], {cs}")
def tagcheck(base, n, acc):
    for i in range(n):
        a(f"v_xor_b32 v{base+4*i+2}, s{sTAG}, v{base+4*i+2}")
        a(f"v_xor_b32 v{base+4*i+3}, s{sTAGB}, v{base+4*i+3}")
    a(f"v_or_b32 v{acc}, v{base+2}, v{base+3}")
    for i in range(1, n):
        a(f"v_or3_b32 v{acc}, v{acc}, v{base+4*i+2}, v{base+4*i+3}")
    a(f"v_cmp_ne_u32 vcc, 0, v{acc}")

vX = vU
vWQ = vT + 4
stamp(0)
a(f"""
    s_cmp_ge_u32 s2, 256
    s_cbranch_scc1 L_end
    s_load_dwordx2 s[{SWQ}:{SWQ+1}], s[0:1], 24
    s_load_dwordx2 s[{SX}:{SX+1}], s[0:1], 0
    s_load_dwordx2 s[{SK}:{SK+1}], s[0:1], 8
    s_load_dwordx2 s[{SWS}:{SWS+1}], s[0:1], 80
    s_load_dwordx2 s[{SV}:{SV+1}], s[0:1], 16
    v_lshrrev_b32 v{vT}, 6, v0
    v_and_b32 v{vLane}, 63, v0
    v_readfirstlane_b32 s{sW}, v{vT}
    v_bfe_u32 v{vS}, v0, 4, 2
    s_and_b32 s{sG}, s2, 7
    s_lshr_b32 s{sJ}, s2, 3
    v_and_b32 v{vT+1}, 7, v0
    v_lshlrev_b32 v{vT+2}, 1, v{vS}
    v_xor_b32 v{vT+1}, v{vT+1}, v{vT+2}
    v_lshrrev_b32 v{vT}, 3, v{vLane}
    v_lshlrev_b32 v{vT}, 13, v{vT}
    v_lshl_or_b32 v{vWQ}, v{vT+1}, 4, v{vT}
    s_lshl_b32 s{sT1}, s{sG}, 10
    s_and_b32 s{sT2}, s{sJ}, 7
    s_lshl_b32 s{sT2}, s{sT2}, 7
    s_add_u32 s{sT1}, s{sT1}, s{sT2}
    s_lshr_b32 s{sT2}, s{sJ}, 3
    s_lshl_b32 s{sT2}, s{sT2}, 2
    s_add_u32 s{sT2}, s{sT2}, s{sW}          ; 4*kq + w
    s_lshl_b32 s{sF}, s{sT2}, 6
    s_lshl_b32 s{sT2}, s{sT2}, 18            ; *32 rows*8192
    s_add_u32 s{sT1}, s{sT1}, s{sT2}
    s_lshl_b32 s{sT2}, s{sW}, 12
    s_add_u32 s{sT2}, s{sT2}, {WL}
    s_mov_b32 m0, s{sT2}
""")
srd_const(SWQ, 4194304); srd_const(SX, 1024); srd_const(SK, 67108864); srd_const(SWS, 268435456)
a(f"""
    v_lshlrev_b32 v{vT}, 4, v{vLane}
    v_and_b32 v{vN}, 15, v0
    v_mov_b32 v{vEP}, 0
    s_waitcnt lgkmcnt(0)
""")
stamp(1)
a(f"buffer_load_dwordx4 v[{vX}:{vX+3}], v{vT}, s[{SX}:{SX+3}], 0 offen")
a(f"buffer_load_dword v{vEP}, v{vEP}, s[{SWS}:{SWS+3}], 0 offen sc1")
for i in range(4):
    a(f"s_add_u32 s{sT3}, s{sT1}, {i * (8 * 8192 - 1024)}")
    a(f"buffer_load_dwordx4 v{vWQ}, s[{SWQ}:{SWQ+3}], s{sT3} offen offset:{i * 1024} {NT} lds")
a(f"""
    s_lshl_b32 s{sKV}, s{sG}, 23
    s_lshl_b32 s{sT0}, s{sJ}, 12
    s_add_u32 s{sKV}, s{sKV}, s{sT0}
    s_lshl_b32 s{sT0}, s{sW}, 18
    s_add_u32 s{sKV}, s{sKV}, s{sT0}
    s_add_u32 s{sKV}, s{sKV}, 7340032
    s_add_u32 s{sKV1}, s{sKV}, 131072
    v_xor_b32 v{vT}, v{vN}, v{vS}
    v_lshlrev_b32 v{vT}, 4, v{vT}
    v_lshl_or_b32 v{vKD}, v{vS}, 8, v{vT}
    v_xor_b32 v{vKD+1}, 64, v{vKD}
    v_xor_b32 v{vKD+2}, 128, v{vKD}
    v_xor_b32 v{vKD+3}, 192, v{vKD}
    s_lshl_b32 s{sT0}, s{sW}, 13
    s_mov_b32 m0, s{sT0}
""")
for i in range(4):
    a(f"buffer_load_dwordx4 v{vKD+i}, s[{SK}:{SK+3}], s{sKV} offen offset:{i*1024} {NT} lds")
a(f"s_add_u32 s{sT0}, s{sT0}, 4096\ns_mov_b32 m0, s{sT0}")
for i in range(4):
    a(f"buffer_load_dwordx4 v{vKD+i}, s[{SK}:{SK+3}], s{sKV1} offen offset:{i*1024} {NT} lds")
srd_const(SV, 67108864)
a(f"""
    s_load_dwordx2 s[{SWO}:{SWO+1}], s[0:1], 32
    s_load_dwordx2 s[{SW1}:{SW1+1}], s[0:1], 48
    s_load_dwordx2 s[{SW2}:{SW2+1}], s[0:1], 56
    s_load_dwordx2 s[{SOUT}:{SOUT+1}], s[0:1], 64
    s_mov_b32 s{sSPIN}, 0
    v_lshlrev_b32 v{vT+1}, 4, v{vN}
    v_lshl_or_b32 v{vVA}, v{vS}, 10, v{vT+1}
    s_mov_b32 s{sSEL0}, 0x05040100
    s_mov_b32 s{sSEL1}, 0x07060302
    s_mov_b32 s{sLOG2E}, 0x3fb8aa3b
    s_mov_b32 s{sLOG2E+1}, 0x3fb8aa3b
    s_mov_b32 s{sSCALE}, 0x3db504f3
    s_mov_b32 s{sSCALE+1}, 0x3db504f3
    v_cmp_eq_u32 s[{sM1}:{sM1+1}], 1, v{vS}
    v_cmp_eq_u32 s[{sM2}:{sM2+1}], 2, v{vS}
    v_cmp_eq_u32 s[{sM3}:{sM3+1}], 3, v{vS}
""")
srd_const(SWO, 4194304); srd_const(SW1, 1835008); srd_const(SW2, 1835008); srd_const(SOUT, 1024)
def issue_V(b):
    for jj in range(4):
        r = vVR + (b * 4 + jj) * 4
        a(f"buffer_load_dwordx4 v[{r}:{r+3}], v{vVA}, s[{SV}:{SV+3}], s{sKV1 if b else sKV} offen offset:{jj*256} {NT}")
vXF = vU + 4
vA1, vA2, vA3 = vU + 12, vU + 13, vU + 14
vY = vT + 8
a("s_waitcnt vmcnt(13)")
unpack8(vX, vXF)
a(f"""
    v_add_f32 v{vA1}, v{vXF}, v{vXF+1}
    v_add_f32 v{vA2}, v{vXF+2}, v{vXF+3}
    v_add_f32 v{vA3}, v{vXF+4}, v{vXF+5}
    v_add_f32 v{vA1}, v{vA1}, v{vXF+6}
    v_add_f32 v{vA2}, v{vA2}, v{vXF+7}
    v_add_f32 v{vA1}, v{vA1}, v{vA3}
    v_add_f32 v{vA1}, v{vA1}, v{vA2}
""")
allreduce([vA1], "v_add_f32", [vA2])
a(f"v_mul_f32 v{vA1}, 0x3b000000, v{vA1}")
for i in range(8):
    a(f"v_sub_f32 v{vY+i}, v{vXF+i}, v{vA1}")
a(f"v_mul_f32 v{vA2}, v{vY}, v{vY}")
for i in range(1, 8):
    a(f"v_fmac_f32 v{vA2}, v{vY+i}, v{vY+i}")
allreduce([vA2], "v_add_f32", [vA3])
a(f"v_mul_f32 v{vA2}, 0x3b000000, v{vA2}")
round_bf16(vA1)
round_bf16(vA2)
a(f"v_add_f32 v{vA2}, 0x3727c5ac, v{vA2}")
round_bf16(vA2)
a(f"v_sqrt_f32 v{vA2}, v{vA2}")
round_bf16(vA2)
a(f"v_rcp_f32 v{vA3}, v{vA2}")
for i in range(8):
    a(f"v_sub_f32 v{vXF+i}, v{vXF+i}, v{vA1}")
for i in range(4):
    a(f"v_cvt_pk_bf16_f32 v{vX+i}, v{vXF+2*i}, v{vXF+2*i+1}")
unpack8(vX, vXF)
for i in range(8):
    a(f"v_mul_f32 v{vY+i}, v{vXF+i}, v{vA3}")
for i in range(8):
    a(f"v_fma_f32 v{vXF+i}, -v{vY+i}, v{vA2}, v{vXF+i}")
for i in range(8):
    a(f"v_fma_f32 v{vXF+i}, v{vXF+i}, v{vA3}, v{vY+i}")
for i in range(4):
    a(f"v_cvt_pk_bf16_f32 v{vX+i}, v{vXF+2*i}, v{vXF+2*i+1}")
vXA = vU + 40
vXR = vU + 41
vTQ = vU + 42
vAX = vQ
a(f"""
    s_lshl_b32 s{sT0}, s{sW}, 10
    s_add_u32 s{sT0}, s{sT0}, {XN}
    v_lshrrev_b32 v{vT}, 2, v{vLane}
    v_lshlrev_b32 v{vT}, 6, v{vT}
    v_and_b32 v{vT+1}, 1, v{vLane}
    v_lshl_or_b32 v{vT}, v{vT+1}, 5, v{vT}
    v_bfe_u32 v{vT+1}, v{vLane}, 1, 1
    v_lshl_or_b32 v{vT}, v{vT+1}, 3, v{vT}
    v_add_u32 v{vXA}, s{sT0}, v{vT}
    s_add_u32 s{sT0}, s{sT0}, s{sF}
    v_lshl_add_u32 v{vXR}, v{vS}, 4, s{sT0}
    ds_write_b64 v{vXA}, v[{vX}:{vX+1}]
    ds_write_b64 v{vXA}, v[{vX+2}:{vX+3}] offset:16
""")
issue_V(0)
a(f"""
    s_lshl_b32 s{sT0}, s{sW}, 12
    s_add_u32 s{sT0}, s{sT0}, {WL}
    v_lshrrev_b32 v{vT}, 2, v{vN}
    v_lshl_or_b32 v{vT+1}, v{vS}, 2, v{vT}          ; 4s + r
    v_bfe_u32 v{vT+2}, v{vT+1}, 1, 2                ; ((4s+r)>>1)&3
    v_lshlrev_b32 v{vT+1}, 7, v{vT+1}
    v_lshl_or_b32 v{vT+1}, v{vT+2}, 5, v{vT+1}
    v_and_b32 v{vT+2}, 3, v{vN}
    v_lshl_or_b32 v{vT+1}, v{vT+2}, 3, v{vT+1}
    v_add_u32 v{vTQ}, s{sT0}, v{vT+1}
    v_xor_b32 v{vTQ+1}, 32, v{vTQ}
    v_xor_b32 v{vTQ+2}, 64, v{vTQ}
    v_xor_b32 v{vTQ+3}, 96, v{vTQ}
    s_waitcnt lgkmcnt(0)
    ds_read_b128 v[{vAX}:{vAX+3}], v{vXR}
    s_waitcnt vmcnt(12)
""")
stamp(2)
for c in range(4):
    r = vKF + c * 4
    a(f"ds_read_b64_tr_b16 v[{r}:{r+1}], v{vTQ+c}")
    a(f"ds_read_b64_tr_b16 v[{r+2}:{r+3}], v{vTQ+c} offset:2048")
vQPW, vQPR, vQPS = vT + 12, vT + 13, vT + 14
a(f"""
    s_lshl_b32 s{sT0}, s{sW}, 2
    s_add_u32 s{sT0}, s{sT0}, {QP}
    v_lshl_add_u32 v{vQPW}, v{vLane}, 4, s{sT0}          ; QP + l*16 + w*4
    s_lshl_b32 s{sT0}, s{sW}, 8
    s_add_u32 s{sT0}, s{sT0}, {QP}
    v_lshl_add_u32 v{vQPR}, v{vN}, 4, s{sT0}             ; QP + (16w + n)*16
    s_lshl_b32 s{sQG}, s{sG}, 14
    s_add_u32 s{sQG}, s{sQG}, {QP_G}
    s_lshr_b32 s{sT0}, s{sJ}, 3
    s_lshl_b32 s{sT0}, s{sT0}, 12
    s_and_b32 s{sT1}, s{sJ}, 7
    s_lshl_b32 s{sT1}, s{sT1}, 9
    s_add_u32 s{sT0}, s{sT0}, s{sT1}
    s_lshl_b32 s{sT1}, s{sW}, 7
    s_add_u32 s{sT0}, s{sT0}, s{sT1}
    s_add_u32 s{sT0}, s{sT0}, s{sQG}
    v_lshrrev_b32 v{vQPS}, 1, v{vN}
    v_lshlrev_b32 v{vQPS}, 4, v{vQPS}
    s_waitcnt lgkmcnt(0)
""")
for c in range(4):
    mfma(vO + 4 * c, vAX, vKF + 4 * c, None)
vG = vU + 36
a(f"""
    s_waitcnt vmcnt(4)
    v_readfirstlane_b32 s{sTAG}, v{vEP}
""" if False else "")
a(f"""
    v_cndmask_b32 v{vT+1}, v{vO}, v{vO+4}, s[{sM1}:{sM1+1}]
    v_cndmask_b32 v{vT+1}, v{vT+1}, v{vO+8}, s[{sM2}:{sM2+1}]
    v_cndmask_b32 v{vT+1}, v{vT+1}, v{vO+12}, s[{sM3}:{sM3+1}]
    ds_write_b32 v{vQPW}, v{vT+1}
    s_waitcnt lgkmcnt(0)
    s_barrier
    ds_read_b128 v[{vT+4}:{vT+7}], v{vQPR}
    v_readfirstlane_b32 s{sTAG}, v{vEP}
    s_waitcnt lgkmcnt(0)
    v_add_f32 v{vT+4}, v{vT+4}, v{vT+5}
    v_add_f32 v{vT+6}, v{vT+6}, v{vT+7}
    v_add_f32 v{vG}, v{vT+4}, v{vT+6}
""")
tagcalc()
a(f"""
    v_mov_b32 v{vG+2}, s{sTAG}
    v_mov_b32 v{vG+3}, s{sTAGB}
    v_mov_b32_dpp v{vG+1}, v{vG} quad_perm:[1,1,3,3] row_mask:0xf bank_mask:0xf
""")
setexec(0x5555)
a(f"buffer_store_dwordx4 v[{vG}:{vG+3}], v{vQPS}, s[{SWS}:{SWS+3}], s{sT0} offen sc1")
setexec(-1)
stamp(3)
issue_V(1)
a(f"""
    s_lshl_b32 s{sT0}, s{sW}, 13
    v_xor_b32 v{vT}, v{vN}, v{vS}
    v_lshlrev_b32 v{vT}, 4, v{vT}
    v_lshl_or_b32 v{vT}, v{vN}, 8, v{vT}
    v_add_u32 v{vKD}, s{sT0}, v{vT}
    v_xor_b32 v{vKD+1}, 64, v{vKD}
    v_xor_b32 v{vKD+2}, 128, v{vKD}
    v_xor_b32 v{vKD+3}, 192, v{vKD}
    s_waitcnt vmcnt(9)
""")
stamp(4)
for b in range(2):
    for i in range(4):
        r = vKF + (b * 4 + i) * 4
        a(f"ds_read_b128 v[{r}:{r+3}], v{vKD+i} offset:{b*4096}")
vOW, vMW, vORD, vMR, vBP = vT, vT + 1, vT + 2, vT + 8, vT + 9
vQW, vQR = vT + 6, vT + 7
a(f"""
    v_mov_b32 v{vONE}, 0x3f803f80
    v_mov_b32 v{vONE+1}, 0x3f803f80
    v_mov_b32 v{vONE+2}, 0x3f803f80
    v_mov_b32 v{vONE+3}, 0x3f803f80
    s_mul_i32 s{sT0}, s{sW}, 272
    s_add_u32 s{sT0}, s{sT0}, {QL}
    v_lshl_add_u32 v{vQW}, v{vLane}, 2, s{sT0}
    v_lshrrev_b32 v{vQR}, 2, v{vN}
    v_mul_u32_u24 v{vQR}, 272, v{vQR}
    v_lshl_add_u32 v{vQR}, v{vS}, 4, v{vQR}
    v_add_u32 v{vQR}, {QL}, v{vQR}
    s_lshl_b32 s{sT0}, s{sW}, 10
    s_add_u32 s{sQG}, s{sQG}, s{sT0}
    v_lshlrev_b32 v{vQA}, 4, v{vLane}
    s_mul_i32 s{sT0}, s{sW}, 2304
    s_add_u32 s{sT0}, s{sT0}, {OL}
    v_mul_u32_u24 v{vOW}, 576, v{vS}
    v_mad_u32_u24 v{vOW}, v{vN}, 36, v{vOW}
    v_add_u32 v{vOW}, s{sT0}, v{vOW}
    s_lshl_b32 s{sT0}, s{sW}, 3
    s_add_u32 s{sT0}, s{sT0}, {ML}
    v_lshlrev_b32 v{vMW}, 5, v{vS}
    v_add_u32 v{vMW}, s{sT0}, v{vMW}
    s_mul_i32 s{sT0}, s{sW}, 576
    s_add_u32 s{sT0}, s{sT0}, {OL}
    v_lshrrev_b32 v{vORD}, 2, v{vLane}
    v_mul_u32_u24 v{vORD}, 36, v{vORD}
    v_and_b32 v{vORD+1}, 3, v{vLane}
    v_lshl_add_u32 v{vORD}, v{vORD+1}, 3, v{vORD}
    v_add_u32 v{vORD}, s{sT0}, v{vORD}
    v_add_u32 v{vORD+1}, 2304, v{vORD}
    v_add_u32 v{vORD+2}, 4608, v{vORD}
    v_add_u32 v{vORD+3}, 6912, v{vORD}
    s_lshl_b32 s{sT0}, s{sW}, 5
    s_add_u32 s{sT0}, s{sT0}, {ML}
    v_mov_b32 v{vMR}, s{sT0}
    s_lshl_b32 s{sT0}, s{sG}, 4
    s_lshl_b32 s{sT1}, s{sW}, 2
    s_add_u32 s{sT0}, s{sT0}, s{sT1}
    s_lshl_b32 s{sT0}, s{sT0}, 5
    s_add_u32 s{sT0}, s{sT0}, s{sJ}
    s_lshl_b32 s{sT0}, s{sT0}, 7
    s_add_u32 s{sBP}, s{sT0}, {PB}
    v_lshrrev_b32 v{vBP}, 1, v{vN}
    v_lshlrev_b32 v{vBP}, 4, v{vBP}
    v_lshl_or_b32 v{vBP}, v{vS}, 12, v{vBP}
    s_add_u32 s{sT1}, s{sQG}, 4096
    s_add_u32 s{sT2}, s{sQG}, 8192
    s_add_u32 s{sT3}, s{sQG}, 12288
    s_waitcnt vmcnt(5)
""")
vQG = vQ2
def issue_qpoll():
    for kq, so in enumerate((sQG, sT1, sT2, sT3)):
        a(f"buffer_load_dwordx4 v[{vQG+4*kq}:{vQG+4*kq+3}], v{vQA}, s[{SWS}:{SWS+3}], s{so} offen sc1")
perms(vVR, vVF, 0)
a("s_waitcnt vmcnt(2)")
issue_qpoll()
a("s_waitcnt vmcnt(4)")
perms(vVR, vVF, 1)
stamp(5)
a("L_qcheck:\ns_waitcnt vmcnt(0)")
a(f"""
    v_add_f32 v{vT+12}, v{vQG}, v{vQG+4}
    v_add_f32 v{vT+13}, v{vQG+1}, v{vQG+5}
    v_add_f32 v{vT+14}, v{vQG+8}, v{vQG+12}
    v_add_f32 v{vT+15}, v{vQG+9}, v{vQG+13}
""")
tagcheck(vQG, 4, vT + 16)
a(f"""
    v_add_f32 v{vT+12}, v{vT+12}, v{vT+14}
    v_add_f32 v{vT+13}, v{vT+13}, v{vT+15}
    s_cbranch_vccz L_qok
    s_sleep {SLQ}
""")
issue_qpoll()
a(f"""
    s_add_u32 s{sSPIN}, s{sSPIN}, 1
    s_cmp_lt_u32 s{sSPIN}, 0x40000
    s_cbranch_scc1 L_qcheck
    s_branch L_fin
L_qok:
    v_cvt_pk_bf16_f32 v{vT+12}, v{vT+12}, v{vT+13}
    ds_write_b32 v{vQW}, v{vT+12}
""")
vWA = vT + 10
vW1 = vT + 16
def issue_rows(srd, soff):
    for jj in range(8):
        r = vVR + jj * 4
        a(f"buffer_load_dwordx4 v[{r}:{r+3}], v{vWA + (jj >> 2)}, s[{srd}:{srd+3}], s{soff} offen offset:{(jj & 3)*1024} {NT}")
a(f"""
    v_lshlrev_b32 v{vWA}, 4, v{vN}
    v_lshl_or_b32 v{vWA}, v{vS}, 13, v{vWA}
    v_add_u32 v{vWA+1}, 4096, v{vWA}
    s_waitcnt lgkmcnt(0)
    s_barrier
""")
for i in range(4):
    a(f"ds_read_b128 v[{vQ+4*i}:{vQ+4*i+3}], v{vQR} offset:{i*64}")
stamp(6)
a(f"""
    s_cmp_ge_u32 s{sJ}, 16
    s_cbranch_scc1 L_notw
    s_lshl_b32 s{sF}, s{sG}, 4
    s_add_u32 s{sF}, s{sF}, s{sJ}          ; r = g*16 + j
    s_lshl_b32 s{sT0}, s{sF}, 15
    s_lshl_b32 s{sT1}, s{sW}, 8
    s_add_u32 s{sT0}, s{sT0}, s{sT1}
""")
issue_rows(SWO, sT0)
a(f"""
    v_and_b32 v{vT+12}, 1, v{vLane}
    v_lshrrev_b32 v{vT+13}, 5, v{vLane}
    v_lshl_or_b32 v{vT+12}, v{vT+12}, 1, v{vT+13}
    v_lshlrev_b32 v{vT+12}, 1, v{vT+12}
    s_lshl_b32 s{sT1}, s{sF}, 3
    buffer_load_ushort v{vXC}, v{vT+12}, s[{SX}:{SX+3}], s{sT1} offen
    s_branch L_wdone
L_notw:
    s_cmp_ge_u32 s{sJ}, 23
    s_cbranch_scc1 L_wdone
    s_mul_i32 s{sF}, s{sG}, 7
    s_add_u32 s{sF}, s{sF}, s{sJ}
    s_sub_u32 s{sF}, s{sF}, 16             ; f = 7g + (j-16)
    v_lshrrev_b32 v{vT+12}, 2, v{vLane}
    v_mul_u32_u24 v{vW1}, 3584, v{vT+12}
    v_and_b32 v{vT+13}, 3, v{vLane}
    v_lshlrev_b32 v{vT+14}, 1, v{vS}
    v_and_b32 v{vT+14}, 2, v{vT+14}
    v_xor_b32 v{vT+13}, v{vT+13}, v{vT+14}
    v_lshl_add_u32 v{vW1}, v{vT+13}, 4, v{vW1}
    s_lshl_b32 s{sT1}, s{sF}, 6
    s_mul_i32 s{sT2}, s{sW}, {128*3584}
    s_add_u32 s{sT1}, s{sT1}, s{sT2}
    s_lshl_b32 s{sT2}, s{sW}, 13
    s_add_u32 s{sT2}, s{sT2}, {WL}
    s_mov_b32 m0, s{sT2}
""")
for i in range(8):
    if i == 4:
        a(f"s_add_u32 s{sT2}, s{sT2}, 4096\ns_mov_b32 m0, s{sT2}")
    a(f"s_add_u32 s{sT3}, s{sT1}, {i * 16 * 3584 - (i % 4) * 1024}")
    a(f"buffer_load_dwordx4 v{vW1}, s[{SW1}:{SW1+3}], s{sT3} offen offset:{(i % 4) * 1024} {NT} lds")
a("L_wdone:")
a("s_waitcnt lgkmcnt(0)")
for i in range(4):
    for b in range(2):
        mfma(vS0 + 4 * b, vKF + (b * 4 + i) * 4, vQ + 4 * i, None if i == 0 else vS0 + 4 * b)
vP = vU; vR4 = vU + 8; vM = vU + 12; vMT = vU + 14
for i in range(4):
    a(f"v_cvt_pk_bf16_f32 v{vR4+i}, v{vS0+2*i}, v{vS0+2*i+1}")
unpack8(vR4, vP)
for i in range(4):
    a(f"v_pk_mul_f32 v[{vP+2*i}:{vP+2*i+1}], v[{vP+2*i}:{vP+2*i+1}], s[{sSCALE}:{sSCALE+1}]")
for i in range(4):
    a(f"v_cvt_pk_bf16_f32 v{vR4+i}, v{vP+2*i}, v{vP+2*i+1}")
unpack8(vR4, vP)
dump(vP, 8, 0)
a(f"""
    v_max3_f32 v{vM}, v{vP}, v{vP+1}, v{vP+2}
    v_max3_f32 v{vM}, v{vM}, v{vP+3}, v{vP+4}
    v_max3_f32 v{vM}, v{vM}, v{vP+5}, v{vP+6}
    v_max_f32 v{vM}, v{vM}, v{vP+7}
    v_mov_b32 v{vMT}, v{vM}
    v_permlane16_swap_b32 v{vM}, v{vMT}
    v_max_f32 v{vM}, v{vM}, v{vMT}
    v_mov_b32 v{vMT}, v{vM}
    v_permlane32_swap_b32 v{vM}, v{vMT}
    v_max_f32 v{vM}, v{vM}, v{vMT}
    v_mul_f32 v{vM}, s{sLOG2E}, v{vM}
""")
for i in range(8):
    a(f"v_fma_f32 v{vP+i}, v{vP+i}, s{sLOG2E}, -v{vM}")
for i in range(8):
    a(f"v_exp_f32 v{vP+i}, v{vP+i}")
for i in range(4):
    a(f"v_cvt_pk_bf16_f32 v{vR4+i}, v{vP+2*i}, v{vP+2*i+1}")
vL = vS0
mfma(vL, vR4, vONE, None)
for e in range(8):
    mfma(vO + 4 * e, vR4, vVF + 4 * e, None)
a(f"v_mov_b32 v{vM+1}, v{vL}")
setexec(0x1000010000100001)
a(f"ds_write_b64 v{vMW}, v[{vM}:{vM+1}]")
setexec(-1)
for e in range(0, 8, 2):
    a(f"ds_write2_b32 v{vOW}, v{vO+4*e}, v{vO+4*e+4} offset0:{e} offset1:{e+1}")
a("s_waitcnt lgkmcnt(0)\ns_barrier")
vC = vU + 16
a(f"""
    ds_read_b128 v[{vC}:{vC+3}], v{vMR}
    ds_read_b128 v[{vC+4}:{vC+7}], v{vMR} offset:16
""")
for src in range(4):
    a(f"ds_read2_b32 v[{vC+8+2*src}:{vC+9+2*src}], v{vORD+src} offset0:0 offset1:1")
a(f"""
    s_waitcnt lgkmcnt(4)
    v_max3_f32 v{vC+16}, v{vC}, v{vC+2}, v{vC+4}
    v_max_f32 v{vC+16}, v{vC+16}, v{vC+6}
    v_sub_f32 v{vC}, v{vC}, v{vC+16}
    v_sub_f32 v{vC+2}, v{vC+2}, v{vC+16}
    v_sub_f32 v{vC+4}, v{vC+4}, v{vC+16}
    v_sub_f32 v{vC+6}, v{vC+6}, v{vC+16}
    v_exp_f32 v{vC}, v{vC}
    v_exp_f32 v{vC+2}, v{vC+2}
    v_exp_f32 v{vC+4}, v{vC+4}
    v_exp_f32 v{vC+6}, v{vC+6}
    v_mul_f32 v{vC+17}, v{vC}, v{vC+1}
    v_fmac_f32 v{vC+17}, v{vC+2}, v{vC+3}
    v_fmac_f32 v{vC+17}, v{vC+4}, v{vC+5}
    v_fmac_f32 v{vC+17}, v{vC+6}, v{vC+7}
    s_waitcnt lgkmcnt(0)
    v_mul_f32 v{vC+8}, v{vC+8}, v{vC}
    v_mul_f32 v{vC+9}, v{vC+9}, v{vC}
    v_rcp_f32 v{vC+18}, v{vC+17}
    v_log_f32 v{vC+19}, v{vC+17}
    v_fmac_f32 v{vC+8}, v{vC+10}, v{vC+2}
    v_fmac_f32 v{vC+9}, v{vC+11}, v{vC+2}
    v_fmac_f32 v{vC+8}, v{vC+12}, v{vC+4}
    v_fmac_f32 v{vC+9}, v{vC+13}, v{vC+4}
    v_fmac_f32 v{vC+8}, v{vC+14}, v{vC+6}
    v_fmac_f32 v{vC+9}, v{vC+15}, v{vC+6}
    v_mul_f32 v{vC+8}, v{vC+8}, v{vC+18}
    v_mul_f32 v{vC+9}, v{vC+9}, v{vC+18}
    v_add_f32 v{vG+2}, v{vC+16}, v{vC+19}
    v_cvt_pk_bf16_f32 v{vG}, v{vC+8}, v{vC+9}
    v_mov_b32 v{vG+3}, s{sTAG}
    v_mov_b32_dpp v{vG+1}, v{vG} quad_perm:[1,1,3,3] row_mask:0xf bank_mask:0xf
""")
setexec(0x5555555555555555)
a(f"buffer_store_dwordx4 v[{vG}:{vG+3}], v{vBP}, s[{SWS}:{SWS+3}], s{sBP} offen sc1")
setexec(-1)
stamp(7)
dump(vG, 4, 1)
a(f"""
    s_cmp_ge_u32 s{sJ}, 16
    s_cbranch_scc1 L_ftail
""")
a("s_waitcnt vmcnt(2)" if not DUMP else "s_waitcnt vmcnt(0)")
perms(vVR, vVF, 0)
perms(vVR, vVF, 1)
vG2 = vU
vBA = vT + 12
a(f"""
    s_lshl_b32 s{sT0}, s{sF}, 12
    s_add_u32 s{sT0}, s{sT0}, {PB}
    s_lshl_b32 s{sT1}, s{sW}, 5
    s_add_u32 s{sT0}, s{sT0}, s{sT1}
    v_lshrrev_b32 v{vBA}, 1, v{vLane}
    v_lshlrev_b32 v{vBA}, 7, v{vBA}
    v_and_b32 v{vT+13}, 1, v{vLane}
    v_lshl_or_b32 v{vBA}, v{vT+13}, 4, v{vBA}
""")
vB = vU + 4
a(f"""
    v_and_b32 v{vB+6}, 1, v{vS}
    v_lshlrev_b32 v{vB+6}, 1, v{vB+6}
    v_lshrrev_b32 v{vB+7}, 1, v{vS}
    v_or_b32 v{vB+6}, v{vB+6}, v{vB+7}
    v_lshl_or_b32 v{vB+6}, v{vT+13}, 2, v{vB+6}
    s_lshl_b32 s{sT1}, s{sW}, 4
    s_add_u32 s{sT1}, s{sT1}, {OB}
    v_lshl_add_u32 v{vB+6}, v{vB+6}, 1, s{sT1}
    v_lshlrev_b32 v{vB+7}, 4, v{vS}
    v_add_u32 v{vB+7}, {OB}, v{vB+7}
""")
stamp(8)
a(f"""
L_bpoll:
    buffer_load_dwordx4 v[{vG2}:{vG2+3}], v{vBA}, s[{SWS}:{SWS+3}], s{sT0} offen sc1
    s_waitcnt vmcnt(0)
    v_cmp_ne_u32 vcc, s{sTAG}, v{vG2+3}
""")
spin_tail("L_bpoll", "L_bok", SLB)
stamp(9)
a(f"""
    v_mov_b32 v{vB}, v{vG2+2}
    v_lshlrev_b32 v{vB+2}, 16, v{vG2}
    v_and_b32 v{vB+3}, 0xffff0000, v{vG2}
    v_lshlrev_b32 v{vB+4}, 16, v{vG2+1}
    v_and_b32 v{vB+5}, 0xffff0000, v{vG2+1}
""")
allreduce([vB], "v_max_f32", [vB+1], steps=(8, 4, 2))
a(f"""
    v_sub_f32 v{vB}, v{vG2+2}, v{vB}
    v_exp_f32 v{vB}, v{vB}
    v_mul_f32 v{vB+2}, v{vB+2}, v{vB}
    v_mul_f32 v{vB+3}, v{vB+3}, v{vB}
    v_mul_f32 v{vB+4}, v{vB+4}, v{vB}
    v_mul_f32 v{vB+5}, v{vB+5}, v{vB}
    v_mov_b32 v{vB+1}, v{vB}
    v_permlane32_swap_b32 v{vB+2}, v{vB+3}
    v_permlane32_swap_b32 v{vB+4}, v{vB+5}
    v_permlane32_swap_b32 v{vB}, v{vB+1}
    v_add_f32 v{vB+2}, v{vB+2}, v{vB+3}
    v_add_f32 v{vB+4}, v{vB+4}, v{vB+5}
    v_add_f32 v{vB}, v{vB}, v{vB+1}
    v_mov_b32 v{vB+1}, v{vB}
    v_permlane16_swap_b32 v{vB+2}, v{vB+4}
    v_permlane16_swap_b32 v{vB}, v{vB+1}
    v_add_f32 v{vB+2}, v{vB+2}, v{vB+4}
    v_add_f32 v{vB}, v{vB}, v{vB+1}
""")
for st in (8, 4, 2):
    a(f"v_add_f32_dpp v{vB+2}, v{vB+2}, v{vB+2} row_ror:{st} row_mask:0xf bank_mask:0xf")
    a(f"v_add_f32_dpp v{vB}, v{vB}, v{vB} row_ror:{st} row_mask:0xf bank_mask:0xf")
a(f"""
    v_rcp_f32 v{vB}, v{vB}
    v_mul_f32 v{vB+2}, v{vB+2}, v{vB}
    v_cvt_pk_bf16_f32 v{vB+2}, v{vB+2}, v{vB+2}
""")
setexec(0x0003000300030003)
a(f"ds_write_b16 v{vB+6}, v{vB+2}")
setexec(-1)
vGR = vU + 36
vGA = vT + 13
def rows_pre(base):
    a(f"""
    s_lshl_b32 s{sT0}, s{sF}, 12
    s_add_u32 s{sT0}, s{sT0}, {base}
    v_lshlrev_b32 v{vGA}, 6, v{vN}
    v_lshl_or_b32 v{vGA}, v{vS}, 4, v{vGA}
    s_lshl_b32 s{sT1}, s{sW}, 10
    s_add_u32 s{sT0}, s{sT0}, s{sT1}
    v_mov_b32 v{vGR+2}, s{sTAG}
    v_mov_b32 v{vGR+3}, s{sTAGB}
""")
def rows_stage():
    a("s_waitcnt lgkmcnt(0)")
    for e in range(8):
        mfma(vO + 4 * e, vR4, vVF + 4 * e, None)
    a(f"""
    v_cndmask_b32 v{vGR}, v{vO}, v{vO+8}, s[{sM1}:{sM1+1}]
    v_cndmask_b32 v{vGR+1}, v{vO+4}, v{vO+12}, s[{sM1}:{sM1+1}]
    v_cndmask_b32 v{vGR}, v{vGR}, v{vO+16}, s[{sM2}:{sM2+1}]
    v_cndmask_b32 v{vGR+1}, v{vGR+1}, v{vO+20}, s[{sM2}:{sM2+1}]
    v_cndmask_b32 v{vGR}, v{vGR}, v{vO+24}, s[{sM3}:{sM3+1}]
    v_cndmask_b32 v{vGR+1}, v{vGR+1}, v{vO+28}, s[{sM3}:{sM3+1}]
    buffer_store_dwordx4 v[{vGR}:{vGR+3}], v{vGA}, s[{SWS}:{SWS+3}], s{sT0} offen sc1
""")
rows_pre(PC)
a(f"""
    s_waitcnt lgkmcnt(0)
    s_barrier
    ds_read_b128 v[{vR4}:{vR4+3}], v{vB+7}
""")
rows_stage()
dump(vR4, 4, 2)
stamp(10)
a(f"""
    s_cmp_lg_u32 s{sW}, 0
    s_cbranch_scc1 L_fin
""")
vD = vU
vCA = vT + 12
a(f"""
    v_lshrrev_b32 v{vCA}, 1, v{vLane}
    v_lshlrev_b32 v{vCA}, 12, v{vCA}
    v_and_b32 v{vT+13}, 1, v{vLane}
    v_lshl_or_b32 v{vCA}, v{vT+13}, 4, v{vCA}
    s_lshl_b32 s{sT0}, s{sF}, 5
    s_add_u32 s{sT0}, s{sT0}, {PC}
    s_add_u32 s{sT1}, s{sT0}, 131072
    s_add_u32 s{sT2}, s{sT0}, 262144
    s_add_u32 s{sT3}, s{sT0}, 393216
    v_lshlrev_b32 v{vXC}, 16, v{vXC}
L_cpoll:
    buffer_load_dwordx4 v[{vD}:{vD+3}], v{vCA}, s[{SWS}:{SWS+3}], s{sT0} offen sc1
    buffer_load_dwordx4 v[{vD+4}:{vD+7}], v{vCA}, s[{SWS}:{SWS+3}], s{sT1} offen sc1
    buffer_load_dwordx4 v[{vD+8}:{vD+11}], v{vCA}, s[{SWS}:{SWS+3}], s{sT2} offen sc1
    buffer_load_dwordx4 v[{vD+12}:{vD+15}], v{vCA}, s[{SWS}:{SWS+3}], s{sT3} offen sc1
    s_waitcnt vmcnt(0)
""")
tagcheck(vD, 4, vD + 16)
spin_tail("L_cpoll", "L_cok", SLC)
stamp(11)
def lane_reduce2(x0, x1, t):
    a(f"""
    v_permlane32_swap_b32 v{x0}, v{x1}
    v_add_f32 v{x0}, v{x0}, v{x1}
    v_mov_b32 v{t}, v{x0}
    v_permlane16_swap_b32 v{x0}, v{t}
    v_add_f32 v{x0}, v{x0}, v{t}
""")
    for st in (8, 4, 2):
        a(f"v_add_f32_dpp v{x0}, v{x0}, v{x0} row_ror:{st} row_mask:0xf bank_mask:0xf")
a(f"""
    v_add_f32 v{vD}, v{vD}, v{vD+4}
    v_add_f32 v{vD+1}, v{vD+1}, v{vD+5}
    v_add_f32 v{vD+8}, v{vD+8}, v{vD+12}
    v_add_f32 v{vD+9}, v{vD+9}, v{vD+13}
    v_add_f32 v{vD}, v{vD}, v{vD+8}
    v_add_f32 v{vD+1}, v{vD+1}, v{vD+9}
""")
lane_reduce2(vD, vD + 1, vD + 2)
round_bf16(vD)
a(f"v_add_f32 v{vH}, v{vXC}, v{vD}")
round_bf16(vH)
a(f"""
    v_mov_b32 v{vD+2}, v{vH}
    v_mov_b32 v{vD+3}, v{vH}
    v_mov_b32 v{vD+5}, s{sTAG}
    v_lshlrev_b32 v{vD+6}, 3, v{vLane}
    s_lshl_b32 s{sT0}, s{sF}, 4
    s_add_u32 s{sT0}, s{sT0}, {PH}
    v_permlane32_swap_b32 v{vD+2}, v{vD+3}
    v_perm_b32 v{vD+4}, v{vD+3}, v{vD+2}, s{sSEL1}
    s_mov_b64 exec, 3
    buffer_store_dwordx2 v[{vD+4}:{vD+5}], v{vD+6}, s[{SWS}:{SWS+3}], s{sT0} offen sc1
    s_mov_b64 exec, -1
""")
dump(vH, 1, 3)
stamp(12)
a(f"""
    s_lshl_b32 s{sT0}, s{sF}, 5
    s_add_u32 s{sT0}, s{sT0}, {PE}
    s_add_u32 s{sT1}, s{sT0}, 131072
    v_mov_b32 v{vD+4}, 0
    v_mov_b32 v{vD+5}, 0
L_epoll:
    v_mov_b32 v{vD+6}, s{sTAG}
    v_mov_b32 v{vD+7}, s{sTAGB}
    buffer_load_dwordx4 v[{vD}:{vD+3}], v{vCA}, s[{SWS}:{SWS+3}], s{sT0} offen sc1
""")
setexec(0xffffffffffff)
a(f"buffer_load_dwordx4 v[{vD+4}:{vD+7}], v{vCA}, s[{SWS}:{SWS+3}], s{sT1} offen sc1")
setexec(-1)
a("s_waitcnt vmcnt(0)")
tagcheck(vD, 2, vD + 16)
spin_tail("L_epoll", "L_eok", SLE)
stamp(13)
a(f"""
    v_add_f32 v{vD}, v{vD}, v{vD+4}
    v_add_f32 v{vD+1}, v{vD+1}, v{vD+5}
""")
lane_reduce2(vD, vD + 1, vD + 2)
round_bf16(vD)
a(f"""
    v_add_f32 v{vD}, v{vH}, v{vD}
    v_cvt_pk_bf16_f32 v{vD}, v{vD}, v{vD}
    v_and_b32 v{vD+1}, 1, v{vLane}
    v_lshrrev_b32 v{vD+2}, 5, v{vLane}
    v_lshl_or_b32 v{vD+1}, v{vD+1}, 1, v{vD+2}
    v_lshlrev_b32 v{vD+1}, 1, v{vD+1}
    s_lshl_b32 s{sT0}, s{sF}, 3
""")
setexec(0x0000000300000003)
a(f"""
    buffer_store_short v{vD}, v{vD+1}, s[{SOUT}:{SOUT+3}], s{sT0} offen
    s_cmp_lg_u32 s2, 0
    s_cbranch_scc1 L_w0done
    s_mov_b64 exec, 1
    v_mov_b32 v{vD+3}, s{sTAG}
    v_mov_b32 v{vD+4}, 0
    buffer_store_dword v{vD+3}, v{vD+4}, s[{SWS}:{SWS+3}], 0 offen sc1
L_w0done:
    s_mov_b64 exec, -1
""")
stamp(14)
a("s_branch L_fin")
a("L_ftail:")
vTR = vU + 42
vQPW2 = vU + 44
a(f"""
    s_cmp_ge_u32 s{sJ}, 23
    s_cbranch_scc1 L_fin
    s_lshl_b32 s{sT0}, s{sF}, 15
    s_lshl_b32 s{sT1}, s{sW}, 8
    s_add_u32 s{sT0}, s{sT0}, s{sT1}
""")
issue_rows(SW2, sT0)
a(f"""
    s_lshl_b32 s{sT0}, s{sW}, 13
    s_add_u32 s{sT0}, s{sT0}, {WL}
    v_lshrrev_b32 v{vT}, 2, v{vN}
    v_lshl_or_b32 v{vT}, v{vS}, 2, v{vT}
    v_lshlrev_b32 v{vT}, 6, v{vT}
    v_and_b32 v{vT+1}, 1, v{vS}
    v_lshl_or_b32 v{vT}, v{vT+1}, 5, v{vT}
    v_and_b32 v{vT+1}, 3, v{vN}
    v_lshl_or_b32 v{vT}, v{vT+1}, 3, v{vT}
    v_add_u32 v{vTR}, s{sT0}, v{vT}
    v_xor_b32 v{vTR+1}, 32, v{vTR}
    v_lshl_or_b32 v{vT}, v{vS}, 4, v{vN}
    v_lshlrev_b32 v{vT}, 4, v{vT}
    s_lshl_b32 s{sT0}, s{sW}, 2
    s_add_u32 s{sT0}, s{sT0}, {QP}
    v_add_u32 v{vQPW2}, s{sT0}, v{vT}
    s_waitcnt vmcnt(9)
""")
for cb in range(2):
    for k in range(4):
        r = vKF + (cb * 4 + k) * 4
        a(f"ds_read_b64_tr_b16 v[{r}:{r+1}], v{vTR+cb} offset:{k*2048}")
        a(f"ds_read_b64_tr_b16 v[{r+2}:{r+3}], v{vTR+cb} offset:{k*2048+1024}")
vCS = vO
vAC = vS0
a("s_waitcnt lgkmcnt(0)")
for k in range(4):
    for cb in range(2):
        mfma(vCS + 4 * cb, vONE, vKF + (cb * 4 + k) * 4, None if k == 0 else vCS + 4 * cb)
a("s_waitcnt vmcnt(0)")
perms(vVR, vVF, 0)
perms(vVR, vVF, 1)
vHG = vU
vHA = vT + 12
vXR0, vHS = vT + 14, vT + 15
a(f"""
    v_cndmask_b32 v{vU+46}, v{vCS}, v{vCS+4}, s[{sM1}:{sM1+1}]
    v_lshlrev_b32 v{vHA}, 5, v{vLane}
    s_lshl_b32 s{sT0}, s{sW}, 8
    s_add_u32 s{sT0}, s{sT0}, {XN}
    v_lshl_add_u32 v{vXR0}, v{vS}, 4, s{sT0}
    v_lshlrev_b32 v{vHS}, 4, v{vLane}
    v_add_u32 v{vHS}, {XN}, v{vHS}
    v_and_b32 v{vU+15}, 31, v{vLane}
    v_lshlrev_b32 v{vU+16}, 4, v{vU+15}
    v_add_u32 v{vU+16}, {QP}, v{vU+16}
    s_lshl_b32 s{sT0}, s{sW}, 6
    s_add_u32 s{sT0}, s{sT0}, {AL}
    v_lshl_add_u32 v{vU+17}, v{vU+15}, 1, s{sT0}
    v_lshl_add_u32 v{vU+18}, v{vS}, 4, s{sT0}
""")
rows_pre(PE)
a(f"s_mov_b32 s{sT2}, {PH}")
stamp(8)
a(f"""
    s_cmp_lg_u32 s{sW}, 0
    s_cbranch_scc1 L_hwait
L_hpoll:
    buffer_load_dwordx4 v[{vHG}:{vHG+3}], v{vHA}, s[{SWS}:{SWS+3}], s{sT2} offen sc1
    buffer_load_dwordx4 v[{vHG+4}:{vHG+7}], v{vHA}, s[{SWS}:{SWS+3}], s{sT2} offen offset:16 sc1
    s_waitcnt vmcnt(0)
    v_xor_b32 v{vHG+8}, s{sTAG}, v{vHG+1}
    v_xor_b32 v{vHG+9}, s{sTAG}, v{vHG+3}
    v_xor_b32 v{vHG+10}, s{sTAG}, v{vHG+5}
    v_xor_b32 v{vHG+11}, s{sTAG}, v{vHG+7}
    v_or3_b32 v{vHG+8}, v{vHG+8}, v{vHG+9}, v{vHG+10}
    v_or_b32 v{vHG+8}, v{vHG+8}, v{vHG+11}
    v_cmp_ne_u32 vcc, 0, v{vHG+8}
""")
spin_tail("L_hpoll", "L_hok", SLH)
vS1, vS2 = vU + 12, vU + 13
a(f"""
    ds_write2_b32 v{vXA}, v{vHG}, v{vHG+2} offset0:0 offset1:1
    ds_write2_b32 v{vXA}, v{vHG+4}, v{vHG+6} offset0:4 offset1:5
    s_waitcnt lgkmcnt(0)
L_hwait:
    s_barrier
""")
stamp(9)
a(f"ds_read_b128 v[{vHG}:{vHG+3}], v{vHS}")
for k in range(4):
    a(f"ds_read_b128 v[{vAX+4*k}:{vAX+4*k+3}], v{vXR0} offset:{k*64}")
a(f"""
    v_mov_b32 v{vS1}, 0
    v_mov_b32 v{vS2}, 0
    s_waitcnt lgkmcnt(4)
""")
for i in range(4):
    a(f"v_dot2_f32_bf16 v{vS1}, v{vHG+i}, v{vONE}, v{vS1}")
    a(f"v_dot2_f32_bf16 v{vS2}, v{vHG+i}, v{vHG+i}, v{vS2}")
a("s_waitcnt lgkmcnt(0)")
for k in range(4):
    for cb in range(2):
        mfma(vAC + 4 * cb, vAX + 4 * k, vKF + (cb * 4 + k) * 4, None if k == 0 else vAC + 4 * cb)
allreduce([vS1, vS2], "v_add_f32", [vU + 14, vU + 19])
a(f"""
    v_mul_f32 v{vS1}, 0x3b000000, v{vS1}
    v_mul_f32 v{vS2}, 0x3b000000, v{vS2}
    v_fma_f32 v{vS2}, -v{vS1}, v{vS1}, v{vS2}
    v_max_f32 v{vS2}, 0, v{vS2}
""")
round_bf16(vS1)
round_bf16(vS2)
a(f"""
    v_add_f32 v{vS2}, 0x3727c5ac, v{vS2}
    v_cndmask_b32 v{vU+14}, v{vAC}, v{vAC+4}, s[{sM1}:{sM1+1}]
    v_fma_f32 v{vU+14}, -v{vS1}, v{vU+46}, v{vU+14}
""")
setexec(0xffffffff)
a(f"ds_write_b32 v{vQPW2}, v{vU+14}")
setexec(-1)
round_bf16(vS2)
a(f"v_sqrt_f32 v{vS2}, v{vS2}")
round_bf16(vS2)
a(f"""
    v_rcp_f32 v{vS2}, v{vS2}
    s_waitcnt lgkmcnt(0)
    s_barrier
    ds_read_b128 v[{vU+20}:{vU+23}], v{vU+16}
    s_waitcnt lgkmcnt(0)
    v_add_f32 v{vU+20}, v{vU+20}, v{vU+21}
    v_add_f32 v{vU+22}, v{vU+22}, v{vU+23}
    v_add_f32 v{vU+20}, v{vU+20}, v{vU+22}
    v_mul_f32 v{vU+20}, v{vU+20}, v{vS2}
""")
round_bf16(vU + 20)
a(f"""
    v_mul_f32 v{vU+21}, 0xbfb8aa3b, v{vU+20}
    v_exp_f32 v{vU+21}, v{vU+21}
    v_add_f32 v{vU+21}, 1.0, v{vU+21}
    v_rcp_f32 v{vU+21}, v{vU+21}
    v_mul_f32 v{vU+20}, v{vU+20}, v{vU+21}
    v_cvt_pk_bf16_f32 v{vU+20}, v{vU+20}, v{vU+20}
    ds_write_b16 v{vU+17}, v{vU+20}
    s_waitcnt lgkmcnt(0)
    ds_read_b128 v[{vR4}:{vR4+3}], v{vU+18}
""")
rows_stage()
dump(vR4, 4, 2)
stamp(10)
a("L_fin:")
if STAMPS:
    a(f"""
    s_waitcnt lgkmcnt(0)
    s_mov_b64 exec, 1
    s_lshl_b32 s{sT0}, s2, 2
    s_add_u32 s{sT0}, s{sT0}, s{sW}
    s_mul_i32 s{sT0}, s{sT0}, {NST*8}
    s_add_u32 s{sT0}, s{sT0}, {STAMP}
    v_mov_b32 v6, 0
""")
    for i in range(NST):
        a(f"v_mov_b32 v4, s{sST+2*i}\nv_mov_b32 v5, s{sST+2*i+1}\nbuffer_store_dwordx2 v[4:5], v6, s[{SWS}:{SWS+3}], s{sT0} offen offset:{i*8}")
a("L_end:\ns_endpgm")
body = a.text()
if STAMPS:
    pre = "".join(f"s_mov_b32 s{sST+i}, 0\n" for i in range(2 * NST))
    body = pre + body
body, n = fix(body)
print(wrap(body, 256, 256, LDS_SIZE, NVGPR, 102))
print(f"; inserted {n} nops", file=sys.stderr)
```

```python
import sys
from asmgen import *
from hazard import fix

STAMPS = "--stamps" in sys.argv
def opt(name, default):
    for x in sys.argv:
        if x.startswith(f"--{name}="):
            return type(default)(x.split("=", 1)[1])
    return default
NT = opt("nt", "nt")
SLQ = opt("slq", 1); SLB = opt("slb", 0); SLH = opt("slh", 1); SLE = opt("sle", 0)
DLC = opt("dlc", 10); STGC = opt("stgc", 5); STGE = opt("stge", 3); FORCEG = opt("forceg", 0)
KDELAY = opt("kdelay", 1)
EARLYG = opt("earlyg", 0)
ROWPOS = opt("rowpos", "early")
DLE = opt("dle", 0)
EPIPE = opt("epipe", 1)
CPIPE = opt("cpipe", 1)
FW2 = opt("fw2", 0)
EFLAG = opt("eflag", 1)
DLE2 = opt("dle2", 1)
ROWPRE = opt("rowpre", 0)
DUALQ = opt("dualq", 1)
PTH = opt("pth", 0)
SPINMAX = 0x40000

PH = 0x1000; PF = 0x6000; QP_G = 0x40000; QTOG = 0x20000; PB = 0x80000; PC = 0x100000; PE = 0x140000; STAMP = 0x8000000
KL = 0x0; WL = 0x8000; XN = 0x10000; OL = 0x11000; ML = 0x13400; QP = 0x13480; OB = 0x13900; AL = 0x13980
QL = 0x13B00; MF = 0x13F40; HL = 0x13F80; LDS_SIZE = 86016
sG, sJ, sW, sSPIN, sRO = 3, 4, 5, 6, 7
SX, SK, SV, SROW, SWS = 8, 12, 16, 20, 24
pWO, pW2, pW1, pOUT = 28, 30, 32, 34
sSTA, sSTB, sLM, sXO, sQS, sX2 = 36, 37, 38, 39, 40, 41
sKV, sKV1, sTAG, sTAGB = 44, 45, 46, 47
sT0, sT1, sT2, sT3 = 48, 49, 50, 51
sM1, sM2, sM3 = 52, 54, 56
sLOG2E, sSCALE = 58, 60
sQG, sBP, sSEL0, sSEL1, sF, sTBX, sMODE, sBA = 62, 63, 64, 65, 66, 67, 68, 69
sQ1, sQ2, sQ3 = 42, 43, 2 + 0
sST = 70; NST = 15
sQ3 = 100
vLane, vN, vS = 1, 2, 3
vKD = 4
vVA, vQA = 8, 9
vT = 10
vOW, vMW, vORD, vQW, vQR, vMR, vBP = 10, 11, 12, 16, 17, 18, 19
vKR = 20
vW1, vW1b, vBA, vMFW, vXCA = 24, 25, 26, 27, 28
vTMP = 29
vKF = 32; vVR = 64; vVF = 96; vQ = 128; vQ2 = 144; vO = 160; vS0 = 192; vU = 200
vXA, vXR, vTQ = 240, 241, 242
vW1c = 247; vXC, vEP, vH, vPT = 248, 249, 250, 251; vONE = 252
NVGPR = 256

a = Asm()
def stamp(i):
    if STAMPS: a(f"s_memrealtime s[{sST+2*i}:{sST+2*i+1}]")
def setexec(mask):
    if mask == -1: a("s_mov_b64 exec, -1"); return
    if mask <= 64: a(f"s_mov_b64 exec, {mask}"); return
    a(f"s_mov_b32 exec_lo, {hex(mask & 0xffffffff)}\ns_mov_b32 exec_hi, {hex(mask >> 32)}")
def spin(loop):
    a(f"s_add_u32 s{sSPIN}, s{sSPIN}, 1\ns_cmp_lt_u32 s{sSPIN}, {SPINMAX}\ns_cbranch_scc1 {loop}\ns_branch L_fin")
def unpack8(src, dst):
    for i in range(4):
        a(f"v_lshlrev_b32 v{dst+2*i}, 16, v{src+i}\nv_and_b32 v{dst+2*i+1}, 0xffff0000, v{src+i}")
def round_bf16(r):
    a(f"v_cvt_pk_bf16_f32 v{r}, v{r}, v{r}\nv_lshlrev_b32 v{r}, 16, v{r}")
def allreduce(regs, op, tmps, steps=(8, 4, 2, 1)):
    for st in steps:
        for r in regs: a(f"{op}_dpp v{r}, v{r}, v{r} row_ror:{st} row_mask:0xf bank_mask:0xf")
    for sw in ("v_permlane16_swap_b32", "v_permlane32_swap_b32"):
        for r, t in zip(regs, tmps): a(f"v_mov_b32 v{t}, v{r}")
        for r, t in zip(regs, tmps): a(f"{sw} v{r}, v{t}")
        for r, t in zip(regs, tmps): a(f"{op} v{r}, v{r}, v{t}")
def perms(raw, frag, b):
    for e in range(8):
        sel = sSEL1 if e & 1 else sSEL0
        for h in range(2):
            r0 = raw + (b * 4 + 2 * h) * 4 + (e >> 1); r1 = raw + (b * 4 + 2 * h + 1) * 4 + (e >> 1)
            a(f"v_perm_b32 v{frag + e*4 + 2*b + h}, v{r1}, v{r0}, s{sel}")
def mfma(d, A, B, c):
    cs = "0" if c is None else f"v[{c}:{c+3}]"
    a(f"v_mfma_f32_16x16x32_bf16 v[{d}:{d+3}], v[{A}:{A+3}], v[{B}:{B+3}], {cs}")
_ls = [0]
def local_store(text):
    _ls[0] += 1; k = _ls[0]
    a(f"s_cmp_lg_u32 s{sMODE}, 0\ns_cbranch_scc1 L_lsg{k}\n{text}\ns_branch L_lsd{k}\nL_lsg{k}:\n{text} sc1\nL_lsd{k}:")
def tagcheck(base, n, acc):
    for i in range(n):
        a(f"v_xor_b32 v{base+4*i+2}, s{sTAG}, v{base+4*i+2}\nv_xor_b32 v{base+4*i+3}, s{sTAGB}, v{base+4*i+3}")
    a(f"v_or_b32 v{acc}, v{base+2}, v{base+3}")
    for i in range(1, n): a(f"v_or3_b32 v{acc}, v{acc}, v{base+4*i+2}, v{base+4*i+3}")
    a(f"v_cmp_ne_u32 vcc, 0, v{acc}")
WS = f"s[{SWS}:{SWS+3}]"

vX = vU; vXF = vU + 4; vA1, vA2, vA3 = vU + 12, vU + 13, vU + 14; vX2 = vU + 16; vPK = vQ2
vWQ = vTMP
vQPW, vQPR, vQPS = vU + 20, vU + 21, vU + 22
vGq = vU + 36

def blk_prologue():
    stamp(0)
    a(f"""
    s_cmp_ge_u32 s2, 256
    s_cbranch_scc1 L_end
    s_load_dwordx2 s[{SROW}:{SROW+1}], s[0:1], 24
    s_load_dwordx2 s[{SX}:{SX+1}], s[0:1], 0
    s_load_dwordx2 s[{SWS}:{SWS+1}], s[0:1], 80
    s_load_dwordx2 s[{SK}:{SK+1}], s[0:1], 8
    s_load_dwordx2 s[{SV}:{SV+1}], s[0:1], 16
    v_lshrrev_b32 v{vT}, 6, v0
    v_and_b32 v{vLane}, 63, v0
    v_readfirstlane_b32 s{sW}, v{vT}
    v_bfe_u32 v{vS}, v0, 4, 2
    v_and_b32 v{vN}, 15, v0
    s_and_b32 s{sG}, s2, 7
    s_lshr_b32 s{sJ}, s2, 3
    v_and_b32 v{vT+1}, 7, v0
    v_lshlrev_b32 v{vT+2}, 1, v{vS}
    v_xor_b32 v{vT+1}, v{vT+1}, v{vT+2}
    v_lshrrev_b32 v{vT}, 3, v{vLane}
    v_lshlrev_b32 v{vT}, 13, v{vT}
    v_lshl_or_b32 v{vWQ}, v{vT+1}, 4, v{vT}
    s_lshl_b32 s{sT1}, s{sG}, 10
    s_and_b32 s{sT2}, s{sJ}, 7
    s_lshl_b32 s{sT2}, s{sT2}, 7
    s_add_u32 s{sT1}, s{sT1}, s{sT2}
    s_lshr_b32 s{sT2}, s{sJ}, 3
    s_lshl_b32 s{sT2}, s{sT2}, 2
    s_add_u32 s{sT2}, s{sT2}, s{sW}
    s_lshl_b32 s{sX2}, s{sT2}, 6
    s_lshl_b32 s{sT2}, s{sT2}, 18
    s_add_u32 s{sT1}, s{sT1}, s{sT2}
    s_lshl_b32 s{sT2}, s{sW}, 12
    s_add_u32 s{sT2}, s{sT2}, {WL}
    s_mov_b32 m0, s{sT2}
    s_mov_b32 s{SROW+2}, 4194304
    s_mov_b32 s{SROW+3}, 0x20000
    s_mov_b32 s{SX+2}, 1024
    s_mov_b32 s{SX+3}, 0x20000
    s_mov_b32 s{SWS+2}, 268435456
    s_mov_b32 s{SWS+3}, 0x20000
    v_lshlrev_b32 v{vT}, 4, v{vLane}
    v_lshlrev_b32 v{vT+3}, 2, v{vN}
    v_mov_b32 v{vEP}, 0
    s_waitcnt lgkmcnt(0)""")
    stamp(1)
    a(f"buffer_load_dwordx4 v[{vX}:{vX+3}], v{vT}, s[{SX}:{SX+3}], 0 offen")
    a(f"buffer_load_dword v{vX2}, v{vT+3}, s[{SX}:{SX+3}], s{sX2} offen")
    a(f"buffer_load_dword v{vEP}, v{vEP}, {WS}, 0 offen sc1")
    for i in range(4):
        a(f"buffer_load_dwordx4 v{vWQ}, s[{SROW}:{SROW+3}], s{sT1} offen offset:{i * 1024} {NT} lds")
        if i < 3: a(f"s_add_u32 s{sT1}, s{sT1}, {8 * 8192 - 1024}")
    a(f"""
    s_load_dwordx2 s[{pWO}:{pWO+1}], s[0:1], 32
    s_load_dwordx2 s[{pW1}:{pW1+1}], s[0:1], 48
    s_load_dwordx2 s[{pW2}:{pW2+1}], s[0:1], 56
    s_load_dwordx2 s[{pOUT}:{pOUT+1}], s[0:1], 64""")

def blk_issue_K():
    a(f"""
    s_lshl_b32 s{sKV}, s{sG}, 23
    s_lshl_b32 s{sT0}, s{sJ}, 12
    s_add_u32 s{sKV}, s{sKV}, s{sT0}
    s_lshl_b32 s{sT0}, s{sW}, 18
    s_add_u32 s{sKV}, s{sKV}, s{sT0}
    s_add_u32 s{sKV}, s{sKV}, 7340032
    s_add_u32 s{sKV1}, s{sKV}, 131072
    v_xor_b32 v{vTMP}, v{vN}, v{vS}
    v_lshlrev_b32 v{vTMP}, 4, v{vTMP}
    v_lshl_or_b32 v{vKD}, v{vS}, 8, v{vTMP}
    v_xor_b32 v{vKD+1}, 64, v{vKD}
    v_xor_b32 v{vKD+2}, 128, v{vKD}
    v_xor_b32 v{vKD+3}, 192, v{vKD}
    s_lshl_b32 s{sT0}, s{sW}, 13
    s_mov_b32 m0, s{sT0}
    s_mov_b32 s{SK+2}, 67108864
    s_mov_b32 s{SK+3}, 0x20000""")
    for i in range(4):
        a(f"buffer_load_dwordx4 v{vKD+i}, s[{SK}:{SK+3}], s{sKV} offen offset:{i*1024} {NT} lds")
    a(f"s_add_u32 s{sT0}, s{sT0}, 4096\ns_mov_b32 m0, s{sT0}")
    for i in range(4):
        a(f"buffer_load_dwordx4 v{vKD+i}, s[{SK}:{SK+3}], s{sKV1} offen offset:{i*1024} {NT} lds")

def blk_pre_q():
    t = vTMP
    a(f"""
    s_mov_b32 s{SV+2}, 67108864
    s_mov_b32 s{SV+3}, 0x20000
    v_lshlrev_b32 v{t}, 4, v{vN}
    v_lshl_or_b32 v{vVA}, v{vS}, 10, v{t}
    s_mov_b32 s{sSPIN}, 0
    s_mov_b32 s{sSEL0}, 0x05040100
    s_mov_b32 s{sSEL1}, 0x07060302
    s_mov_b32 s{sLOG2E}, 0x3fb8aa3b
    s_mov_b32 s{sLOG2E+1}, 0x3fb8aa3b
    s_mov_b32 s{sSCALE}, 0x3db504f3
    s_mov_b32 s{sSCALE+1}, 0x3db504f3
    v_cmp_eq_u32 s[{sM1}:{sM1+1}], 1, v{vS}
    v_cmp_eq_u32 s[{sM2}:{sM2+1}], 2, v{vS}
    v_cmp_eq_u32 s[{sM3}:{sM3+1}], 3, v{vS}
    s_lshl_b32 s{sT0}, s{sW}, 6
    s_add_u32 s{sT0}, s{sT0}, {XN}
    v_bfe_u32 v{t}, v{vN}, 1, 2
    v_lshlrev_b32 v{vXA}, 4, v{t}
    v_lshrrev_b32 v{t}, 3, v{vN}
    v_lshl_or_b32 v{vXA}, v{t}, 3, v{vXA}
    v_and_b32 v{t}, 1, v{vN}
    v_lshl_or_b32 v{vXA}, v{t}, 2, v{vXA}
    v_add_u32 v{vXA}, s{sT0}, v{vXA}
    v_lshl_add_u32 v{vXR}, v{vS}, 4, s{sT0}
    s_lshl_b32 s{sT0}, s{sW}, 12
    s_add_u32 s{sT0}, s{sT0}, {WL}
    v_lshrrev_b32 v{t}, 2, v{vN}
    v_lshl_or_b32 v{t+1}, v{vS}, 2, v{t}
    v_bfe_u32 v{t+2}, v{t+1}, 1, 2
    v_lshlrev_b32 v{t+1}, 7, v{t+1}
    v_lshl_or_b32 v{t+1}, v{t+2}, 5, v{t+1}
    v_and_b32 v{t+2}, 3, v{vN}
    v_lshl_or_b32 v{t+1}, v{t+2}, 3, v{t+1}
    v_add_u32 v{vTQ}, s{sT0}, v{t+1}
    v_xor_b32 v{vTQ+1}, 32, v{vTQ}
    v_xor_b32 v{vTQ+2}, 64, v{vTQ}
    v_xor_b32 v{vTQ+3}, 96, v{vTQ}
    s_lshl_b32 s{sT0}, s{sW}, 2
    s_add_u32 s{sT0}, s{sT0}, {QP}
    v_lshl_add_u32 v{vQPW}, v{vLane}, 4, s{sT0}
    s_lshl_b32 s{sT0}, s{sW}, 8
    s_add_u32 s{sT0}, s{sT0}, {QP}
    v_lshl_add_u32 v{vQPR}, v{vN}, 4, s{sT0}
    s_lshl_b32 s{sQG}, s{sG}, 14
    s_add_u32 s{sQG}, s{sQG}, {QP_G}
    s_lshr_b32 s{sT0}, s{sJ}, 3
    s_lshl_b32 s{sT0}, s{sT0}, 12
    s_and_b32 s{sT1}, s{sJ}, 7
    s_lshl_b32 s{sT1}, s{sT1}, 9
    s_add_u32 s{sT0}, s{sT0}, s{sT1}
    s_lshl_b32 s{sT1}, s{sW}, 7
    s_add_u32 s{sT0}, s{sT0}, s{sT1}
    s_add_u32 s{sQS}, s{sT0}, s{sQG}
    v_lshrrev_b32 v{vQPS}, 1, v{vN}
    v_lshlrev_b32 v{vQPS}, 4, v{vQPS}""")

def blk_pre_att():
    t = vTMP
    a(f"""
    s_lshl_b32 s{sT0}, s{sW}, 13
    v_xor_b32 v{t}, v{vN}, v{vS}
    v_lshlrev_b32 v{t}, 4, v{t}
    v_lshl_or_b32 v{t}, v{vN}, 8, v{t}
    v_add_u32 v{vKR}, s{sT0}, v{t}
    v_xor_b32 v{vKR+1}, 64, v{vKR}
    v_xor_b32 v{vKR+2}, 128, v{vKR}
    v_xor_b32 v{vKR+3}, 192, v{vKR}
    v_mov_b32 v{vONE}, 0x3f803f80
    v_mov_b32 v{vONE+1}, 0x3f803f80
    v_mov_b32 v{vONE+2}, 0x3f803f80
    v_mov_b32 v{vONE+3}, 0x3f803f80
    s_mul_i32 s{sT0}, s{sW}, 272
    s_add_u32 s{sT0}, s{sT0}, {QL}
    v_lshl_add_u32 v{vQW}, v{vLane}, 2, s{sT0}
    v_lshrrev_b32 v{vQR}, 2, v{vN}
    v_mul_u32_u24 v{vQR}, 272, v{vQR}
    v_lshl_add_u32 v{vQR}, v{vS}, 4, v{vQR}
    v_add_u32 v{vQR}, {QL}, v{vQR}
    s_lshl_b32 s{sT0}, s{sW}, 10
    s_add_u32 s{sQG}, s{sQG}, s{sT0}
    {"" if DUALQ else "s_xor_b32 s%d, s%d, %d" % (sQG, sQG, QTOG)}
    s_add_u32 s{sQ1}, s{sQG}, 4096
    s_add_u32 s{sQ2}, s{sQG}, 8192
    s_add_u32 s{sQ3}, s{sQG}, 12288
    v_lshlrev_b32 v{vQA}, 4, v{vLane}
    s_mul_i32 s{sT0}, s{sW}, 2304
    s_add_u32 s{sT0}, s{sT0}, {OL}
    v_mul_u32_u24 v{vOW}, 576, v{vS}
    v_mad_u32_u24 v{vOW}, v{vN}, 36, v{vOW}
    v_add_u32 v{vOW}, s{sT0}, v{vOW}
    s_lshl_b32 s{sT0}, s{sW}, 3
    s_add_u32 s{sT0}, s{sT0}, {ML}
    v_lshlrev_b32 v{vMW}, 5, v{vS}
    v_add_u32 v{vMW}, s{sT0}, v{vMW}
    s_mul_i32 s{sT0}, s{sW}, 576
    s_add_u32 s{sT0}, s{sT0}, {OL}
    v_lshrrev_b32 v{vORD}, 2, v{vLane}
    v_mul_u32_u24 v{vORD}, 36, v{vORD}
    v_and_b32 v{vORD+1}, 3, v{vLane}
    v_lshl_add_u32 v{vORD}, v{vORD+1}, 3, v{vORD}
    v_add_u32 v{vORD}, s{sT0}, v{vORD}
    v_add_u32 v{vORD+1}, 2304, v{vORD}
    v_add_u32 v{vORD+2}, 4608, v{vORD}
    v_add_u32 v{vORD+3}, 6912, v{vORD}
    s_lshl_b32 s{sT0}, s{sW}, 5
    s_add_u32 s{sT0}, s{sT0}, {ML}
    v_mov_b32 v{vMR}, s{sT0}
    s_lshl_b32 s{sT0}, s{sW}, 2
    s_add_u32 s{sT0}, s{sT0}, {MF}
    v_mov_b32 v{vMFW}, s{sT0}
    s_lshl_b32 s{sT0}, s{sG}, 4
    s_lshl_b32 s{sT1}, s{sW}, 2
    s_add_u32 s{sT0}, s{sT0}, s{sT1}
    s_lshl_b32 s{sT0}, s{sT0}, 5
    s_add_u32 s{sT0}, s{sT0}, s{sJ}
    s_lshl_b32 s{sT0}, s{sT0}, 7
    s_add_u32 s{sBP}, s{sT0}, {PB}
    v_lshrrev_b32 v{vBP}, 1, v{vN}
    v_lshlrev_b32 v{vBP}, 4, v{vBP}
    v_lshl_or_b32 v{vBP}, v{vS}, 12, v{vBP}
    v_lshlrev_b32 v{t}, 1, v{vS}
    v_xor_b32 v{t}, v{t}, v{vN}
    v_lshlrev_b32 v{t}, 4, v{t}
    v_lshl_or_b32 v{vW1}, v{vS}, 10, v{t}
    v_xor_b32 v{vW1b}, 128, v{vW1}
    s_mov_b32 s{sSTA}, {4096 - 1024}
    s_mov_b32 s{sSTB}, {4096 + 3072}
    s_lshl_b32 s{sLM}, s{sW}, 13
    s_lshr_b32 s{sXO}, s{sJ}, 1
    s_lshl_b32 s{sXO}, s{sXO}, 7
    s_and_b32 s{sT0}, s{sJ}, 1
    s_lshl_b32 s{sT0}, s{sT0}, 4
    s_add_u32 s{sXO}, s{sXO}, s{sT0}
    v_bfe_u32 v{vXCA}, v{vLane}, 3, 2
    v_lshlrev_b32 v{vXCA}, 5, v{vXCA}
    v_and_b32 v{t}, 7, v{vLane}
    v_lshl_or_b32 v{vXCA}, v{t}, 1, v{vXCA}
    s_cmp_ge_u32 s{sJ}, 16
    s_cbranch_scc1 L_pre_f
    s_lshl_b32 s{sF}, s{sG}, 4
    s_add_u32 s{sF}, s{sF}, s{sJ}
    s_lshl_b32 s{sBA}, s{sF}, 12
    s_add_u32 s{sBA}, s{sBA}, {PB}
    s_lshl_b32 s{sT0}, s{sW}, 5
    s_add_u32 s{sBA}, s{sBA}, s{sT0}
    v_lshrrev_b32 v{vBA}, 1, v{vLane}
    v_lshlrev_b32 v{vBA}, 7, v{vBA}
    v_and_b32 v{t}, 1, v{vLane}
    v_lshl_or_b32 v{vBA}, v{t}, 4, v{vBA}
    v_mov_b32 v{vW1c}, 0
    s_mov_b32 s{sT2}, 4194304
    s_waitcnt lgkmcnt(0)
    s_mov_b32 s{sT0}, s{pWO}
    s_mov_b32 s{sT1}, s{pWO+1}
    s_branch L_pre_d
L_pre_f:
    s_mul_i32 s{sF}, s{sG}, 7
    s_add_u32 s{sF}, s{sF}, s{sJ}
    s_sub_u32 s{sF}, s{sF}, 16
    s_lshl_b32 s{sBA}, s{sG}, 11
    s_add_u32 s{sBA}, s{sBA}, {PH}
    v_lshlrev_b32 v{vBA}, 5, v{vLane}
    v_lshrrev_b32 v{t}, 2, v{vLane}
    v_mul_u32_u24 v{vW1c}, 3584, v{t}
    v_and_b32 v{t}, 3, v{vLane}
    v_lshlrev_b32 v{t+1}, 1, v{vS}
    v_and_b32 v{t+1}, 2, v{t+1}
    v_xor_b32 v{t}, v{t}, v{t+1}
    v_lshl_add_u32 v{vW1c}, v{t}, 4, v{vW1c}
    s_cmp_ge_u32 s{sJ}, {0 if FW2 else 23}
    s_cselect_b32 s{sT2}, 0, 1835008
    s_waitcnt lgkmcnt(0)
    s_mov_b32 s{sT0}, s{pW2}
    s_mov_b32 s{sT1}, s{pW2+1}
L_pre_d:
    s_mov_b32 s{SROW}, s{sT0}
    s_mov_b32 s{SROW+1}, s{sT1}
    s_mov_b32 s{SROW+2}, s{sT2}
    s_lshl_b32 s{sRO}, s{sF}, 15
    s_lshl_b32 s{sT0}, s{sW}, 8
    s_add_u32 s{sRO}, s{sRO}, s{sT0}""")


def tagcalc():
    a(f"""
    v_readfirstlane_b32 s{sTAG}, v{vEP}
    s_getreg_b32 s{sTBX}, hwreg(HW_REG_XCC_ID)
    s_add_u32 s{sTAG}, s{sTAG}, 0x9e3779b8
    s_or_b32 s{sTAG}, s{sTAG}, 1
    s_xor_b32 s{sTAGB}, s{sTAG}, 0x5bd1e994
    s_and_b32 s{sTBX}, s{sTBX}, 7
    s_xor_b32 s{sTBX}, s{sTBX}, s{sTAGB}""")

def issue_V(b):
    for jj in range(4):
        r = vVR + (b * 4 + jj) * 4
        a(f"buffer_load_dwordx4 v[{r}:{r+3}], v{vVA}, s[{SV}:{SV+3}], s{sKV1 if b else sKV} offen offset:{jj*256} {NT}")

def blk_ln():
    a("s_waitcnt vmcnt(14)")
    unpack8(vX, vXF)
    a(f"""
    v_pk_add_f32 v[{vPK}:{vPK+1}], v[{vXF}:{vXF+1}], v[{vXF+2}:{vXF+3}]
    v_pk_add_f32 v[{vPK+2}:{vPK+3}], v[{vXF+4}:{vXF+5}], v[{vXF+6}:{vXF+7}]
    v_pk_add_f32 v[{vPK}:{vPK+1}], v[{vPK}:{vPK+1}], v[{vPK+2}:{vPK+3}]
    v_add_f32 v{vA1}, v{vPK}, v{vPK+1}""")
    allreduce([vA1], "v_add_f32", [vA2])
    a(f"v_mul_f32 v{vA1}, 0xbb000000, v{vA1}\nv_mov_b32 v{vA2}, v{vA1}")
    for i in range(4):
        a(f"v_pk_add_f32 v[{vPK+2*i}:{vPK+2*i+1}], v[{vXF+2*i}:{vXF+2*i+1}], v[{vA1}:{vA2}]")
    a(f"v_pk_mul_f32 v[{vXF}:{vXF+1}], v[{vPK}:{vPK+1}], v[{vPK}:{vPK+1}]")
    for i in range(1, 4):
        a(f"v_pk_fma_f32 v[{vXF}:{vXF+1}], v[{vPK+2*i}:{vPK+2*i+1}], v[{vPK+2*i}:{vPK+2*i+1}], v[{vXF}:{vXF+1}]")
    a(f"v_add_f32 v{vA2}, v{vXF}, v{vXF+1}\nv_mul_f32 v{vA1}, -1.0, v{vA1}")
    allreduce([vA2], "v_add_f32", [vA3])
    a(f"v_mul_f32 v{vA2}, 0x3b000000, v{vA2}")
    round_bf16(vA1); round_bf16(vA2)
    a(f"v_add_f32 v{vA2}, 0x3727c5ac, v{vA2}")
    round_bf16(vA2)
    a(f"v_sqrt_f32 v{vA2}, v{vA2}")
    round_bf16(vA2)
    a(f"""
    v_rcp_f32 v{vA3}, v{vA2}
    s_waitcnt vmcnt(12)
    v_lshlrev_b32 v{vXF}, 16, v{vX2}
    v_and_b32 v{vXF+1}, 0xffff0000, v{vX2}
    v_sub_f32 v{vXF}, v{vXF}, v{vA1}
    v_sub_f32 v{vXF+1}, v{vXF+1}, v{vA1}
    v_cvt_pk_bf16_f32 v{vX2}, v{vXF}, v{vXF+1}
    v_lshlrev_b32 v{vXF}, 16, v{vX2}
    v_and_b32 v{vXF+1}, 0xffff0000, v{vX2}
    v_mul_f32 v{vXF+2}, v{vXF}, v{vA3}
    v_mul_f32 v{vXF+3}, v{vXF+1}, v{vA3}
    v_fma_f32 v{vXF}, -v{vXF+2}, v{vA2}, v{vXF}
    v_fma_f32 v{vXF+1}, -v{vXF+3}, v{vA2}, v{vXF+1}
    v_fma_f32 v{vXF}, v{vXF}, v{vA3}, v{vXF+2}
    v_fma_f32 v{vXF+1}, v{vXF+1}, v{vA3}, v{vXF+3}
    v_cvt_pk_bf16_f32 v{vX2}, v{vXF}, v{vXF+1}""")
    setexec(0xffff)
    a(f"ds_write_b32 v{vXA}, v{vX2}")
    setexec(-1)
    tagcalc()
    a(f"""
    v_mov_b32 v{vGq+2}, s{sTAG}
    v_mov_b32 v{vGq+3}, s{sTBX}
    s_waitcnt lgkmcnt(0)
    ds_read_b128 v[{vQ}:{vQ+3}], v{vXR}""")

def blk_qphase():
    a("s_waitcnt vmcnt(12)")
    stamp(2)
    for c in range(4):
        r = vKF + c * 4
        a(f"ds_read_b64_tr_b16 v[{r}:{r+1}], v{vTQ+c}\nds_read_b64_tr_b16 v[{r+2}:{r+3}], v{vTQ+c} offset:2048")
    a("s_waitcnt lgkmcnt(0)")
    for c in range(4): mfma(vO + 4 * c, vQ, vKF + 4 * c, None)
    t = vU
    a(f"""
    v_cndmask_b32 v{t}, v{vO}, v{vO+4}, s[{sM1}:{sM1+1}]
    v_cndmask_b32 v{t}, v{t}, v{vO+8}, s[{sM2}:{sM2+1}]
    v_cndmask_b32 v{t}, v{t}, v{vO+12}, s[{sM3}:{sM3+1}]
    ds_write_b32 v{vQPW}, v{t}
    s_waitcnt lgkmcnt(0)
    s_barrier
    ds_read_b128 v[{t+4}:{t+7}], v{vQPR}
    s_waitcnt lgkmcnt(0)
    v_pk_add_f32 v[{t+4}:{t+5}], v[{t+4}:{t+5}], v[{t+6}:{t+7}]
    v_add_f32 v{vGq}, v{t+4}, v{t+5}
    v_mov_b32_dpp v{vGq+1}, v{vGq} quad_perm:[1,1,3,3] row_mask:0xf bank_mask:0xf""")
    setexec(0x5555)
    if DUALQ:
        a(f"buffer_store_dwordx4 v[{vGq}:{vGq+3}], v{vQPS}, {WS}, s{sQS} offen")
    a(f"s_xor_b32 s{sQS}, s{sQS}, {QTOG}")
    a(f"buffer_store_dwordx4 v[{vGq}:{vGq+3}], v{vQPS}, {WS}, s{sQS} offen sc1")
    setexec(-1)
    stamp(3)

vQG = vQ2
def issue_qpoll():
    for kq, so in enumerate((sQG, sQ1, sQ2, sQ3)):
        a(f"buffer_load_dwordx4 v[{vQG+4*kq}:{vQG+4*kq+3}], v{vQA}, {WS}, s{so} offen sc1")
def row_load(i):
    if i == 0: a(f"s_mov_b32 m0, s{sLM}")
    if i == 4: a(f"s_add_u32 s{sLM}, s{sLM}, 4096\ns_mov_b32 m0, s{sLM}")
    a(f"buffer_load_dwordx4 v{vW1b if i & 1 else vW1}, s[{SROW}:{SROW+3}], s{sRO} offen offset:{(i & 3)*1024} {NT} lds")
    if i < 7: a(f"s_add_u32 s{sRO}, s{sRO}, s{sSTB if (i & 3) == 3 else sSTA}")
_rows = [0]
SCHED = {"early": [2, 0, 2, 1, 1, 1, 1, 0], "spread": [1] * 8, "burst": [4, 0, 4, 0, 0, 0, 0, 0]}[ROWPOS]
def row_slot(i):
    n = 8 if i == 7 else SCHED[i]
    for _ in range(n):
        if _rows[0] < 8:
            row_load(_rows[0]); _rows[0] += 1
def xc_pt():
    a(f"buffer_load_ushort v{vXC}, v{vXCA}, s[{SX}:{SX+3}], s{sXO} offen")
    a(f"buffer_load_dword v{vPT}, v{vBA}, {WS}, s{sBA} offen sc1")

blk_prologue()
if KDELAY == 2:
    blk_pre_q(); blk_pre_att(); blk_issue_K()
elif KDELAY == 1:
    blk_pre_q(); blk_issue_K()
else:
    blk_issue_K(); blk_pre_q()
blk_ln()
issue_V(0)
blk_qphase()
issue_V(1)
if KDELAY != 2: blk_pre_att()
NQS = 2 if DUALQ else 1
a(f"s_waitcnt vmcnt({8 + NQS})")
stamp(4)
for b in range(2):
    for i in range(4):
        r = vKF + (b * 4 + i) * 4
        a(f"ds_read_b128 v[{r}:{r+3}], v{vKR+i} offset:{b*4096}")
a(f"s_waitcnt vmcnt({4 + NQS})")
perms(vVR, vVF, 0)
if EARLYG:
    issue_qpoll()
    a("s_waitcnt lgkmcnt(0)")
    for i in range(8): row_load(i)
    _rows[0] = 8
    xc_pt()
    a("s_waitcnt vmcnt(14)")
    perms(vVR, vVF, 1)
    stamp(5)
    a("s_waitcnt vmcnt(10)\ns_branch L_qchk0")
elif ROWPRE:
    a("s_waitcnt vmcnt(2)")
    issue_qpoll()
    a("s_waitcnt vmcnt(4) lgkmcnt(0)")
    for i in range(ROWPRE): row_load(i)
    _rows[0] = ROWPRE
    perms(vVR, vVF, 1)
    stamp(5)
    a(f"s_waitcnt vmcnt({ROWPRE})\ns_branch L_qchk0")
else:
    a("s_waitcnt vmcnt(2)")
    issue_qpoll()
    a("s_waitcnt vmcnt(4)")
    perms(vVR, vVF, 1)
    stamp(5)
t = vU
a(f"""
L_qcheck:
    s_waitcnt vmcnt(0)
L_qchk0:
    v_add_f32 v{t}, v{vQG}, v{vQG+4}
    v_add_f32 v{t+1}, v{vQG+1}, v{vQG+5}
    v_add_f32 v{t+2}, v{vQG+8}, v{vQG+12}
    v_add_f32 v{t+3}, v{vQG+9}, v{vQG+13}
    v_add_f32 v{t}, v{t}, v{t+2}
    v_add_f32 v{t+1}, v{t+1}, v{t+3}
    v_xor_b32 v{vQG+3}, s{sTBX}, v{vQG+3}
    v_cvt_pk_bf16_f32 v{t}, v{t}, v{t+1}
    v_xor_b32 v{vQG+7}, s{sTBX}, v{vQG+7}
    ds_write_b32 v{vQW}, v{t}
    v_xor_b32 v{vQG+11}, s{sTBX}, v{vQG+11}
    v_xor_b32 v{vQG+15}, s{sTBX}, v{vQG+15}
    v_xor_b32 v{vQG+2}, s{sTAG}, v{vQG+2}
    v_xor_b32 v{vQG+6}, s{sTAG}, v{vQG+6}
    v_xor_b32 v{vQG+10}, s{sTAG}, v{vQG+10}
    v_xor_b32 v{vQG+14}, s{sTAG}, v{vQG+14}
    v_or3_b32 v{vQG+3}, v{vQG+3}, v{vQG+7}, v{vQG+11}
    v_or3_b32 v{vQG+2}, v{vQG+2}, v{vQG+6}, v{vQG+10}
    v_or_b32 v{vQG+3}, v{vQG+3}, v{vQG+15}
    v_and_b32 v{vQG+7}, -8, v{vQG+3}
    v_or3_b32 v{vQG+2}, v{vQG+2}, v{vQG+14}, v{vQG+7}
    v_cmp_ne_u32 vcc, 0, v{vQG+2}
    s_cbranch_vccz L_qok
    {"s_sleep %d" % SLQ if SLQ else ""}""")
if DUALQ:
    for r in (sQG, sQ1, sQ2, sQ3): a(f"s_xor_b32 s{r}, s{r}, {QTOG}")
issue_qpoll()
spin("L_qcheck")
a("L_qok:\ns_waitcnt lgkmcnt(0)\ns_barrier")
for i in range(4): a(f"ds_read_b128 v[{vQ+4*i}:{vQ+4*i+3}], v{vQR} offset:{i*64}")
stamp(6)
row_slot(0)
a(f"""
    v_cmp_ne_u32 vcc, 0, v{vQG+3}
    s_cmp_lg_u64 vcc, 0
    s_cselect_b32 s{sMODE}, 1, 0
    v_mov_b32 v{vTMP}, s{sMODE}""")
row_slot(1)
a("s_waitcnt lgkmcnt(0)")
for i in range(4):
    for b in range(2): mfma(vS0 + 4 * b, vKF + (b * 4 + i) * 4, vQ + 4 * i, None if i == 0 else vS0 + 4 * b)
vP = vU; vR4 = vU + 8; vM = vU + 12; vMT = vU + 14
a(f"ds_write_b32 v{vMFW}, v{vTMP}")
row_slot(2)
for i in range(4): a(f"v_cvt_pk_bf16_f32 v{vR4+i}, v{vS0+2*i}, v{vS0+2*i+1}")
unpack8(vR4, vP)
row_slot(3)
for i in range(4): a(f"v_pk_mul_f32 v[{vP+2*i}:{vP+2*i+1}], v[{vP+2*i}:{vP+2*i+1}], s[{sSCALE}:{sSCALE+1}]")
for i in range(4): a(f"v_cvt_pk_bf16_f32 v{vR4+i}, v{vP+2*i}, v{vP+2*i+1}")
unpack8(vR4, vP)
row_slot(4)
a(f"""
    v_max3_f32 v{vM}, v{vP}, v{vP+1}, v{vP+2}
    v_max3_f32 v{vMT}, v{vP+3}, v{vP+4}, v{vP+5}
    v_max3_f32 v{vM}, v{vM}, v{vP+6}, v{vP+7}
    v_max_f32 v{vM}, v{vM}, v{vMT}
    v_mov_b32 v{vMT}, v{vM}
    v_permlane16_swap_b32 v{vM}, v{vMT}
    v_max_f32 v{vM}, v{vM}, v{vMT}
    v_mov_b32 v{vMT}, v{vM}
    v_permlane32_swap_b32 v{vM}, v{vMT}
    v_max_f32 v{vM}, v{vM}, v{vMT}
    v_mul_f32 v{vM}, s{sLOG2E}, v{vM}
    v_mul_f32 v{vMT}, -1.0, v{vM}
    v_mul_f32 v{vMT+1}, -1.0, v{vM}""")
for i in range(4): a(f"v_pk_fma_f32 v[{vP+2*i}:{vP+2*i+1}], v[{vP+2*i}:{vP+2*i+1}], s[{sLOG2E}:{sLOG2E+1}], v[{vMT}:{vMT+1}]")
row_slot(5)
for i in range(8): a(f"v_exp_f32 v{vP+i}, v{vP+i}")
for i in range(4): a(f"v_cvt_pk_bf16_f32 v{vR4+i}, v{vP+2*i}, v{vP+2*i+1}")
vL = vS0
mfma(vL, vR4, vONE, None)
for e in range(8): mfma(vO + 4 * e, vR4, vVF + 4 * e, None)
row_slot(6); row_slot(7)
a(f"v_mov_b32 v{vM+1}, v{vL}")
setexec(0x1000010000100001)
a(f"ds_write_b64 v{vMW}, v[{vM}:{vM+1}]")
setexec(-1)
for e in range(0, 8, 2): a(f"ds_write2_b32 v{vOW}, v{vO+4*e}, v{vO+4*e+4} offset0:{e} offset1:{e+1}")
vC = vU + 16; vG = vU + 36
a(f"""
    v_mov_b32 v{vTMP+1}, {MF}
    v_mov_b32 v{vG+3}, s{sTAG}
    s_waitcnt lgkmcnt(0)
    s_barrier
    ds_read_b128 v[{vC}:{vC+3}], v{vMR}
    ds_read_b128 v[{vC+4}:{vC+7}], v{vMR} offset:16""")
for src in range(4): a(f"ds_read2_b32 v[{vC+8+2*src}:{vC+9+2*src}], v{vORD+src} offset0:0 offset1:1")
a(f"ds_read_b128 v[{vQG}:{vQG+3}], v{vTMP+1}")
if not EARLYG: xc_pt()
a(f"""
    s_waitcnt lgkmcnt(5)
    v_max3_f32 v{vC+16}, v{vC}, v{vC+2}, v{vC+4}
    v_max_f32 v{vC+16}, v{vC+16}, v{vC+6}
    v_sub_f32 v{vC}, v{vC}, v{vC+16}
    v_sub_f32 v{vC+2}, v{vC+2}, v{vC+16}
    v_sub_f32 v{vC+4}, v{vC+4}, v{vC+16}
    v_sub_f32 v{vC+6}, v{vC+6}, v{vC+16}
    v_exp_f32 v{vC}, v{vC}
    v_exp_f32 v{vC+2}, v{vC+2}
    v_exp_f32 v{vC+4}, v{vC+4}
    v_exp_f32 v{vC+6}, v{vC+6}
    v_mul_f32 v{vC+17}, v{vC}, v{vC+1}
    v_fmac_f32 v{vC+17}, v{vC+2}, v{vC+3}
    v_fmac_f32 v{vC+17}, v{vC+4}, v{vC+5}
    v_fmac_f32 v{vC+17}, v{vC+6}, v{vC+7}
    s_waitcnt lgkmcnt(0)
    v_rcp_f32 v{vC+18}, v{vC+17}
    v_log_f32 v{vC+19}, v{vC+17}
    v_mul_f32 v{vC+8}, v{vC+8}, v{vC}
    v_mul_f32 v{vC+9}, v{vC+9}, v{vC}
    v_fmac_f32 v{vC+8}, v{vC+10}, v{vC+2}
    v_fmac_f32 v{vC+9}, v{vC+11}, v{vC+2}
    v_fmac_f32 v{vC+8}, v{vC+12}, v{vC+4}
    v_fmac_f32 v{vC+9}, v{vC+13}, v{vC+4}
    v_fmac_f32 v{vC+8}, v{vC+14}, v{vC+6}
    v_fmac_f32 v{vC+9}, v{vC+15}, v{vC+6}
    v_or3_b32 v{vQG}, v{vQG}, v{vQG+1}, v{vQG+2}
    v_mul_f32 v{vC+8}, v{vC+8}, v{vC+18}
    v_mul_f32 v{vC+9}, v{vC+9}, v{vC+18}
    v_or_b32 v{vQG}, v{vQG}, v{vQG+3}
    v_add_f32 v{vG+2}, v{vC+16}, v{vC+19}
    v_cvt_pk_bf16_f32 v{vG}, v{vC+8}, v{vC+9}
    v_readfirstlane_b32 s{sMODE}, v{vQG}""")
if FORCEG: a(f"s_mov_b32 s{sMODE}, 1")
a(f"v_mov_b32_dpp v{vG+1}, v{vG} quad_perm:[1,1,3,3] row_mask:0xf bank_mask:0xf")
setexec(0x5555555555555555)
local_store(f"buffer_store_dwordx4 v[{vG}:{vG+3}], v{vBP}, {WS}, s{sBP} offen")
setexec(-1)
stamp(7)
a(f"s_cmp_ge_u32 s{sJ}, 16\ns_cbranch_scc1 L_ftail")
NYOUNG = 3
vGA, vCA, vCW, vCR, vTW, vt0, vt1, vt2, vPI, vVAL = 10, 11, 12, 13, 14, 15, 16, 17, 18, 19
def tile_addrs():
    a(f"""
    v_lshrrev_b32 v{vt0}, 2, v{vN}
    v_lshl_or_b32 v{vt0}, v{vS}, 2, v{vt0}
    v_and_b32 v{vt1}, 7, v{vt0}
    v_lshlrev_b32 v{vt1}, 5, v{vt1}
    v_lshl_or_b32 v{vt1}, v{vt0}, 8, v{vt1}
    v_and_b32 v{vt0}, 3, v{vN}
    v_lshl_or_b32 v{vt1}, v{vt0}, 3, v{vt1}
    s_lshl_b32 s{sT0}, s{sW}, 13
    v_add_u32 v{vTW}, s{sT0}, v{vt1}""")
    for e in range(1, 8): a(f"v_xor_b32 v{vVR+e}, {e*32}, v{vTW}")
def tile_reads():
    for e in range(8):
        ad = vTW if e == 0 else vVR + e
        a(f"ds_read_b64_tr_b16 v[{vVF+4*e}:{vVF+4*e+1}], v{ad}\nds_read_b64_tr_b16 v[{vVF+4*e+2}:{vVF+4*e+3}], v{ad} offset:4096")
vG2 = vU; vB = vU + 4; sE0, sE1 = 58, 59; sBASE = 60; vGR = vU + 36
tile_addrs()
a(f"""
    s_mov_b32 s{sE0}, 0x3f80
    s_mov_b32 s{sE1}, 0x3f800000
    s_lshr_b32 s{sBASE}, s{sJ}, 1
    s_lshl_b32 s{sBASE}, s{sBASE}, 6
    s_and_b32 s{sT1}, s{sJ}, 1
    s_lshl_b32 s{sT1}, s{sT1}, 3
    s_add_u32 s{sBASE}, s{sBASE}, s{sT1}
    v_and_b32 v{vPI}, 1, v{vLane}
    v_and_b32 v{vVAL}, 1, v{vS}
    v_lshlrev_b32 v{vVAL}, 1, v{vVAL}
    v_lshrrev_b32 v{vt0}, 1, v{vS}
    v_or_b32 v{vVAL}, v{vVAL}, v{vt0}
    v_lshlrev_b32 v{vB+6}, 1, v{vVAL}
    v_lshl_or_b32 v{vB+6}, v{vPI}, 4, v{vB+6}
    s_and_b32 s{sT1}, s{sW}, 1
    s_lshl_b32 s{sT1}, s{sT1}, 5
    s_lshr_b32 s{sT2}, s{sW}, 1
    s_lshl_b32 s{sT2}, s{sT2}, 3
    s_add_u32 s{sT1}, s{sT1}, s{sT2}
    s_add_u32 s{sT1}, s{sT1}, {OB}
    v_add_u32 v{vB+6}, s{sT1}, v{vB+6}
    v_lshlrev_b32 v{vB+7}, 4, v{vS}
    v_add_u32 v{vB+7}, {OB}, v{vB+7}
    v_lshlrev_b32 v{vGA}, 4, v{vN}
    v_lshl_or_b32 v{vGA}, v{vS}, 8, v{vGA}
    v_lshrrev_b32 v{vCA}, 3, v{vLane}
    v_lshlrev_b32 v{vCA}, 11, v{vCA}
    v_and_b32 v{vt0}, 7, v{vLane}
    v_lshl_or_b32 v{vCA}, v{vt0}, 4, v{vCA}
    v_lshl_add_u32 v{vCW}, v{vVAL}, 3, v{vt0}
    s_lshl_b32 s{sT1}, s{sW}, 2
    s_add_u32 s{sT1}, s{sT1}, {QP}
    v_lshl_add_u32 v{vCW}, v{vCW}, 4, s{sT1}
    v_and_b32 v{vt0}, 31, v{vLane}
    v_lshlrev_b32 v{vCR}, 4, v{vt0}
    v_add_u32 v{vCR}, {QP}, v{vCR}
    v_mov_b32 v{vGR+2}, s{sTAG}
    v_mov_b32 v{vGR+3}, s{sTAGB}
    s_lshl_b32 s{sQS}, s{sF}, 11
    s_lshl_b32 s{sT1}, s{sW}, 9
    s_add_u32 s{sQS}, s{sQS}, s{sT1}
    s_add_u32 s{sQS}, s{sQS}, {PC}
    s_lshl_b32 s{sT1}, s{sW}, 16
    s_lshl_b32 s{sT2}, s{sJ}, 7
    s_add_u32 s{sT1}, s{sT1}, s{sT2}
    s_add_u32 s{sQG}, s{sT1}, {PC}
    s_add_u32 s{sQ1}, s{sQG}, 16384
    s_add_u32 s{sQ2}, s{sQG}, 32768
    s_add_u32 s{sQ3}, s{sQG}, 49152
    s_waitcnt vmcnt({NYOUNG})""")
tile_reads()
stamp(8)
a(f"""
L_bpoll:
    buffer_load_dwordx4 v[{vG2}:{vG2+3}], v{vBA}, {WS}, s{sBA} offen sc1
    s_waitcnt vmcnt(0)
    v_cmp_ne_u32 vcc, s{sTAG}, v{vG2+3}
    s_cbranch_vccz L_bok
    {"s_sleep %d" % SLB if SLB else ""}""")
spin("L_bpoll")
a("L_bok:")
stamp(9)
a(f"""
    v_max_f32_dpp v{vB}, v{vG2+2}, v{vG2+2} row_ror:8 row_mask:0xf bank_mask:0xf
    v_lshlrev_b32 v{vB+2}, 16, v{vG2}
    v_and_b32 v{vB+3}, 0xffff0000, v{vG2}
    v_max_f32_dpp v{vB}, v{vB}, v{vB} row_ror:4 row_mask:0xf bank_mask:0xf
    v_lshlrev_b32 v{vB+4}, 16, v{vG2+1}
    v_and_b32 v{vB+5}, 0xffff0000, v{vG2+1}
    v_max_f32_dpp v{vB}, v{vB}, v{vB} row_ror:2 row_mask:0xf bank_mask:0xf""")
allreduce([vB], "v_max_f32", [vB+1], steps=())
a(f"""
    v_sub_f32 v{vB}, v{vG2+2}, v{vB}
    v_exp_f32 v{vB}, v{vB}
    v_mul_f32 v{vB+2}, v{vB+2}, v{vB}
    v_mul_f32 v{vB+3}, v{vB+3}, v{vB}
    v_mul_f32 v{vB+4}, v{vB+4}, v{vB}
    v_mul_f32 v{vB+5}, v{vB+5}, v{vB}
    v_mov_b32 v{vB+1}, v{vB}
    v_permlane32_swap_b32 v{vB+2}, v{vB+3}
    v_permlane32_swap_b32 v{vB+4}, v{vB+5}
    v_permlane32_swap_b32 v{vB}, v{vB+1}
    v_add_f32 v{vB+2}, v{vB+2}, v{vB+3}
    v_add_f32 v{vB+4}, v{vB+4}, v{vB+5}
    v_add_f32 v{vB}, v{vB}, v{vB+1}
    v_mov_b32 v{vB+1}, v{vB}
    v_permlane16_swap_b32 v{vB+2}, v{vB+4}
    v_permlane16_swap_b32 v{vB}, v{vB+1}
    v_add_f32 v{vB+2}, v{vB+2}, v{vB+4}
    v_add_f32 v{vB}, v{vB}, v{vB+1}""")
for st in (8, 4, 2):
    a(f"v_add_f32_dpp v{vB+2}, v{vB+2}, v{vB+2} row_ror:{st} row_mask:0xf bank_mask:0xf")
    a(f"v_add_f32_dpp v{vB}, v{vB}, v{vB} row_ror:{st} row_mask:0xf bank_mask:0xf")
a(f"""
    v_rcp_f32 v{vB}, v{vB}
    v_mul_f32 v{vB+2}, v{vB+2}, v{vB}
    v_cvt_pk_bf16_f32 v{vB+2}, v{vB+2}, v{vB+2}""")
setexec(0x0003000300030003)
a(f"ds_write_b16 v{vB+6}, v{vB+2}")
setexec(-1)
a(f"s_waitcnt lgkmcnt(0)\ns_barrier\nds_read_b128 v[{vR4}:{vR4+3}], v{vB+7}\ns_waitcnt lgkmcnt(0)")
for e in range(8): mfma(vO + 4 * e, vR4, vVF + 4 * e, None)
a(f"""
    v_cndmask_b32 v{vU}, v{vO}, v{vO+16}, s[{sM1}:{sM1+1}]
    v_cndmask_b32 v{vU+1}, v{vO+4}, v{vO+20}, s[{sM1}:{sM1+1}]
    v_cndmask_b32 v{vU+2}, v{vO+8}, v{vO+24}, s[{sM1}:{sM1+1}]
    v_cndmask_b32 v{vU+3}, v{vO+12}, v{vO+28}, s[{sM1}:{sM1+1}]
    v_cvt_pk_bf16_f32 v{vGR}, v{vU}, v{vU+1}
    v_cvt_pk_bf16_f32 v{vGR+1}, v{vU+2}, v{vU+3}""")
setexec(0xffffffff)
a(f"buffer_store_dwordx4 v[{vGR}:{vGR+3}], v{vGA}, {WS}, s{sQS} offen sc1")
setexec(-1)
stamp(10)
vD = vU; vAcc = vD + 16; CA, CB = vKF, vKF + 16
def c_issue(R):
    for k, so in enumerate((sQG, sQ1, sQ2, sQ3)):
        a(f"buffer_load_dwordx4 v[{R+4*k}:{R+4*k+3}], v{vCA}, {WS}, s{so} offen sc1")
def c_process(R):
    for i in range(4):
        for c, (dw, se) in enumerate(((0, sE0), (0, sE1), (1, sE0), (1, sE1))):
            a(f"v_dot2_f32_bf16 v{vAcc+c}, v{R+4*i+dw}, s{se}, {'0' if i == 0 else 'v%d' % (vAcc+c)}")
    tagcheck(R, 4, vD + 20)
    a("s_cbranch_vccz L_cok")
if DLC: a(f"s_sleep {DLC}")
if CPIPE:
    c_issue(CA)
    if STGC: a(f"s_sleep {STGC}")
    c_issue(CB)
    a("L_cpoll:\ns_waitcnt vmcnt(4)")
    c_process(CA); c_issue(CA)
    a("s_waitcnt vmcnt(4)")
    c_process(CB); c_issue(CB)
    spin("L_cpoll")
else:
    a("L_cpoll:")
    c_issue(CA)
    a("s_waitcnt vmcnt(0)")
    c_process(CA)
    spin("L_cpoll")
a("L_cok:")
stamp(11)
a(f"""
    v_permlane32_swap_b32 v{vAcc}, v{vAcc+1}
    v_permlane32_swap_b32 v{vAcc+2}, v{vAcc+3}
    v_add_f32 v{vAcc}, v{vAcc}, v{vAcc+1}
    v_add_f32 v{vAcc+2}, v{vAcc+2}, v{vAcc+3}
    v_permlane16_swap_b32 v{vAcc}, v{vAcc+2}
    v_add_f32 v{vAcc}, v{vAcc}, v{vAcc+2}
    v_add_f32_dpp v{vAcc}, v{vAcc}, v{vAcc} row_ror:8 row_mask:0xf bank_mask:0xf""")
setexec(0x00ff00ff00ff00ff)
a(f"ds_write_b32 v{vCW}, v{vAcc}")
setexec(-1)
a(f"""
    v_lshlrev_b32 v{vXC}, 16, v{vXC}
    s_lshl_b32 s{sT0}, s{sG}, 11
    s_lshl_b32 s{sT1}, s{sBASE}, 2
    s_add_u32 s{sT0}, s{sT0}, s{sT1}
    s_add_u32 s{sT0}, s{sT0}, {PH}
    v_lshrrev_b32 v{vD+6}, 3, v{vLane}
    v_lshlrev_b32 v{vD+6}, 6, v{vD+6}
    v_bfe_u32 v{vD+5}, v{vLane}, 1, 2
    v_lshl_or_b32 v{vD+6}, v{vD+5}, 3, v{vD+6}
    v_mov_b32 v{vD+5}, s{sTAG}
    v_and_b32 v{vD+7}, 31, v{vLane}
    v_lshlrev_b32 v{vD+7}, 2, v{vD+7}
    v_add_u32 v{vD+7}, {HL}, v{vD+7}
    s_waitcnt lgkmcnt(0)
    s_barrier
    s_cmp_lg_u32 s{sW}, 0
    s_cbranch_scc1 L_fin
    ds_read_b128 v[{vD}:{vD+3}], v{vCR}
    s_waitcnt lgkmcnt(0)
    v_add_f32 v{vD}, v{vD}, v{vD+1}
    v_add_f32 v{vD+2}, v{vD+2}, v{vD+3}
    v_add_f32 v{vD}, v{vD}, v{vD+2}""")
round_bf16(vD)
a(f"v_add_f32 v{vH}, v{vXC}, v{vD}")
round_bf16(vH)
a(f"""
    v_mov_b32_dpp v{vD+1}, v{vH} quad_perm:[1,1,3,3] row_mask:0xf bank_mask:0xf
    ds_write_b32 v{vD+7}, v{vH}
    v_perm_b32 v{vD+4}, v{vD+1}, v{vH}, s{sSEL1}""")
setexec(0x55555555)
local_store(f"buffer_store_dwordx2 v[{vD+4}:{vD+5}], v{vD+6}, {WS}, s{sT0} offen")
setexec(-1)
stamp(12)
vEA = vCA
a(f"""
    v_lshrrev_b32 v{vEA}, 1, v{vLane}
    v_lshlrev_b32 v{vEA}, 12, v{vEA}
    v_lshl_or_b32 v{vEA}, v{vPI}, 4, v{vEA}
    s_lshr_b32 s{sT2}, s{sJ}, 1
    s_lshl_b32 s{sT2}, s{sT2}, 5
    s_and_b32 s{sT3}, s{sG}, 1
    s_lshl_b32 s{sT0}, s{sT3}, 4
    s_add_u32 s{sT2}, s{sT2}, s{sT0}
    s_and_b32 s{sT0}, s{sJ}, 1
    s_lshl_b32 s{sT0}, s{sT0}, 3
    s_add_u32 s{sT2}, s{sT2}, s{sT0}
    s_and_b32 s{sT0}, s{sG}, 6
    s_add_u32 s{sT2}, s{sT2}, s{sT0}
    s_lshl_b32 s{sT2}, s{sT2}, 4
    s_add_u32 s{sQG}, s{sT2}, {PE}
    s_add_u32 s{sQ1}, s{sQG}, 131072
    v_lshrrev_b32 v{vt0}, 5, v{vLane}
    s_lshl_b32 s{sT3}, s{sT3}, 1
    v_add_u32 v{vt0}, s{sT3}, v{vt0}
    v_add_u32 v{vt2}, s{sT0}, v{vPI}
    v_lshl_add_u32 v{vt1}, v{vt0}, 3, v{vt2}
    v_lshlrev_b32 v{vt1}, 2, v{vt1}
    v_add_u32 v{vt1}, {HL}, v{vt1}
    v_lshl_add_u32 v{vt0}, v{vt0}, 4, v{vt2}
    v_lshlrev_b32 v{vt0}, 1, v{vt0}
    s_lshl_b32 s{sT2}, s{sBASE}, 1
    s_mov_b32 s{SV}, s{pOUT}
    s_mov_b32 s{SV+1}, s{pOUT+1}
    s_mov_b32 s{SV+2}, 1024
    s_waitcnt lgkmcnt(0)
    ds_read_b32 v{vH}, v{vt1}""")
EA, EB = vVF, vVF + 8
for R in (EA, EB):
    a(f"v_mov_b32 v{R+4}, 0\nv_mov_b32 v{R+5}, 0\nv_mov_b32 v{R+6}, s{sTAG}\nv_mov_b32 v{R+7}, s{sTAGB}")
def e_issue(R):
    a(f"buffer_load_dwordx4 v[{R}:{R+3}], v{vEA}, {WS}, s{sQG} offen sc1")
    setexec(0xffffffffffff)
    a(f"buffer_load_dwordx4 v[{R+4}:{R+7}], v{vEA}, {WS}, s{sQ1} offen sc1")
    setexec(-1)
def e_process(R):
    a(f"""
    v_xor_b32 v{vD+4}, s{sTAG}, v{R+2}
    v_xor_b32 v{vD+5}, s{sTAGB}, v{R+3}
    v_xor_b32 v{vD+6}, s{sTAG}, v{R+6}
    v_xor_b32 v{vD+7}, s{sTAGB}, v{R+7}
    v_add_f32 v{vD}, v{R}, v{R+4}
    v_or3_b32 v{vD+4}, v{vD+4}, v{vD+5}, v{vD+6}
    v_add_f32 v{vD+1}, v{R+1}, v{R+5}
    v_or_b32 v{vD+4}, v{vD+4}, v{vD+7}
    v_cmp_ne_u32 vcc, 0, v{vD+4}
    s_cbranch_vccz L_eok""")
if DLE: a(f"s_sleep {DLE}")
if EFLAG:
    a(f"""
    s_lshl_b32 s{sT0}, s{sG}, 7
    s_add_u32 s{sT0}, s{sT0}, {PF}
    v_lshlrev_b32 v{vt2}, 2, v{vLane}
    s_mov_b32 exec_lo, 0xfffffff
    s_mov_b32 exec_hi, 0
L_fpoll:
    buffer_load_dword v{vD+8}, v{vt2}, {WS}, s{sT0} offen sc1
    s_waitcnt vmcnt(0)
    v_cmp_ne_u32 vcc, s{sTAG}, v{vD+8}
    s_cbranch_vccz L_fok
    s_sleep 1""")
    spin("L_fpoll")
    a("L_fok:\ns_mov_b64 exec, -1")
    if DLE2: a(f"s_sleep {DLE2}")
if EPIPE:
    e_issue(EA)
    if STGE: a(f"s_sleep {STGE}")
    e_issue(EB)
    a("L_epoll:\ns_waitcnt vmcnt(2)")
    e_process(EA)
    if SLE: a(f"s_sleep {SLE}")
    e_issue(EA)
    a("s_waitcnt vmcnt(2)")
    e_process(EB)
    if SLE: a(f"s_sleep {SLE}")
    e_issue(EB)
    spin("L_epoll")
else:
    a("L_epoll:")
    e_issue(EA)
    a("s_waitcnt vmcnt(0)")
    e_process(EA)
    if SLE: a(f"s_sleep {SLE}")
    spin("L_epoll")
a("L_eok:")
stamp(13)
a(f"""
    v_permlane32_swap_b32 v{vD}, v{vD+1}
    v_add_f32 v{vD}, v{vD}, v{vD+1}
    v_mov_b32 v{vD+2}, v{vD}
    v_permlane16_swap_b32 v{vD}, v{vD+2}
    v_add_f32 v{vD}, v{vD}, v{vD+2}""")
for st in (8, 4, 2): a(f"v_add_f32_dpp v{vD}, v{vD}, v{vD} row_ror:{st} row_mask:0xf bank_mask:0xf")
round_bf16(vD)
a(f"""
    s_waitcnt lgkmcnt(0)
    v_add_f32 v{vD}, v{vH}, v{vD}
    v_cvt_pk_bf16_f32 v{vD}, v{vD}, v{vD}""")
setexec(0x0000000300000003)
a(f"""
    buffer_store_short v{vD}, v{vt0}, s[{SV}:{SV+3}], s{sT2} offen
    s_cmp_lg_u32 s2, 0
    s_cbranch_scc1 L_w0done
    s_mov_b64 exec, 1
    v_mov_b32 v{vD+3}, s{sTAG}
    v_mov_b32 v{vD+4}, 0
    buffer_store_dword v{vD+3}, v{vD+4}, {WS}, 0 offen sc1
L_w0done:
    s_mov_b64 exec, -1""")
stamp(14)
a("s_branch L_fin")
a("L_ftail:")
vTR = 242; vQPW2 = 244; vXA2 = 240; vCSUM = 246
vXR0, vHS = 11, 12
a(f"s_cmp_ge_u32 s{sJ}, 23\ns_cbranch_scc1 L_idle")
a(f"""
    s_mov_b32 s{SK}, s{pW1}
    s_mov_b32 s{SK+1}, s{pW1+1}
    s_mov_b32 s{SK+2}, 1835008
    s_lshl_b32 s{sT0}, s{sF}, 6
    s_mul_i32 s{sT1}, s{sW}, {128*3584}
    s_add_u32 s{sT0}, s{sT0}, s{sT1}
    s_lshl_b32 s{sT1}, s{sW}, 13
    s_add_u32 s{sT1}, s{sT1}, {WL}
    s_mov_b32 m0, s{sT1}""")
for i in range(8):
    if i == 4: a(f"s_add_u32 s{sT1}, s{sT1}, 4096\ns_mov_b32 m0, s{sT1}")
    a(f"buffer_load_dwordx4 v{vW1c}, s[{SK}:{SK+3}], s{sT0} offen offset:{(i % 4) * 1024} {NT} lds")
    if i < 7: a(f"s_add_u32 s{sT0}, s{sT0}, {16 * 3584 - (1024 if i % 4 != 3 else -3072)}")
if FW2:
    a(f"""
    s_mov_b32 s{SROW+2}, 1835008
    s_lshl_b32 s{sRO}, s{sF}, 15
    s_lshl_b32 s{sT0}, s{sW}, 8
    s_add_u32 s{sRO}, s{sRO}, s{sT0}
    s_lshl_b32 s{sLM}, s{sW}, 13""")
    for i in range(8): row_load(i)
tile_addrs()
if not FW2:
    a(f"s_waitcnt vmcnt({NYOUNG + 8})")
    tile_reads()
vHG = vU; vGR = vU + 36; vAX = vQ; vCS = vO; vAC = vS0
a(f"""
    s_lshl_b32 s{sT0}, s{sW}, 13
    s_add_u32 s{sT0}, s{sT0}, {WL}
    v_lshrrev_b32 v{vt0}, 2, v{vN}
    v_lshl_or_b32 v{vt0}, v{vS}, 2, v{vt0}
    v_lshlrev_b32 v{vt0}, 6, v{vt0}
    v_and_b32 v{vt1}, 1, v{vS}
    v_lshl_or_b32 v{vt0}, v{vt1}, 5, v{vt0}
    v_and_b32 v{vt1}, 3, v{vN}
    v_lshl_or_b32 v{vt0}, v{vt1}, 3, v{vt0}
    v_add_u32 v{vTR}, s{sT0}, v{vt0}
    v_xor_b32 v{vTR+1}, 32, v{vTR}
    v_lshl_or_b32 v{vt0}, v{vS}, 4, v{vN}
    v_lshlrev_b32 v{vt0}, 4, v{vt0}
    s_lshl_b32 s{sT0}, s{sW}, 2
    s_add_u32 s{sT0}, s{sT0}, {QP}
    v_add_u32 v{vQPW2}, s{sT0}, v{vt0}
    v_lshrrev_b32 v{vt0}, 2, v{vLane}
    v_lshlrev_b32 v{vt0}, 6, v{vt0}
    v_and_b32 v{vt1}, 1, v{vLane}
    v_lshl_or_b32 v{vt0}, v{vt1}, 5, v{vt0}
    v_bfe_u32 v{vt1}, v{vLane}, 1, 1
    v_lshl_or_b32 v{vt0}, v{vt1}, 3, v{vt0}
    v_add_u32 v{vXA2}, {XN}, v{vt0}
    s_lshl_b32 s{sT0}, s{sW}, 8
    s_add_u32 s{sT0}, s{sT0}, {XN}
    v_lshl_add_u32 v{vXR0}, v{vS}, 4, s{sT0}
    v_lshlrev_b32 v{vHS}, 4, v{vLane}
    v_add_u32 v{vHS}, {XN}, v{vHS}
    v_and_b32 v{vU+15}, 31, v{vLane}
    v_lshlrev_b32 v{vU+16}, 4, v{vU+15}
    v_add_u32 v{vU+16}, {QP}, v{vU+16}
    s_lshl_b32 s{sT0}, s{sW}, 6
    s_add_u32 s{sT0}, s{sT0}, {AL}
    v_bfe_u32 v{vU+17}, v{vU+15}, 2, 2
    v_lshlrev_b32 v{vU+17}, 4, v{vU+17}
    v_lshrrev_b32 v{vU+19}, 4, v{vU+15}
    v_lshl_or_b32 v{vU+17}, v{vU+19}, 3, v{vU+17}
    v_and_b32 v{vU+19}, 3, v{vU+15}
    v_lshl_or_b32 v{vU+17}, v{vU+19}, 1, v{vU+17}
    v_add_u32 v{vU+17}, s{sT0}, v{vU+17}
    v_lshl_add_u32 v{vU+18}, v{vS}, 4, s{sT0}
    s_lshl_b32 s{sQS}, s{sF}, 12
    s_add_u32 s{sQS}, s{sQS}, {PE}
    v_lshlrev_b32 v{vGA}, 4, v{vN}
    v_lshl_or_b32 v{vGA}, v{vS}, 8, v{vGA}
    s_lshl_b32 s{sT1}, s{sW}, 10
    s_add_u32 s{sQS}, s{sQS}, s{sT1}
    v_mov_b32 v{vGR+2}, s{sTAG}
    v_mov_b32 v{vGR+3}, s{sTAGB}
    s_waitcnt vmcnt({8 if FW2 else 0})""")
for cb in range(2):
    for k in range(4):
        r = vKF + (cb * 4 + k) * 4
        a(f"ds_read_b64_tr_b16 v[{r}:{r+1}], v{vTR+cb} offset:{k*2048}\nds_read_b64_tr_b16 v[{r+2}:{r+3}], v{vTR+cb} offset:{k*2048+1024}")
a("s_waitcnt lgkmcnt(0)")
for k in range(4):
    for cb in range(2): mfma(vCS + 4 * cb, vONE, vKF + (cb * 4 + k) * 4, None if k == 0 else vCS + 4 * cb)
a(f"v_cndmask_b32 v{vCSUM}, v{vCS}, v{vCS+4}, s[{sM1}:{sM1+1}]")
if FW2:
    a("s_waitcnt vmcnt(0)")
    tile_reads()
stamp(8)
a(f"""
    s_cmp_lg_u32 s{sW}, 0
    s_cbranch_scc1 L_hwait
L_hpoll:
    buffer_load_dwordx4 v[{vHG}:{vHG+3}], v{vBA}, {WS}, s{sBA} offen sc1
    buffer_load_dwordx4 v[{vHG+4}:{vHG+7}], v{vBA}, {WS}, s{sBA} offen offset:16 sc1
    s_waitcnt vmcnt(0)
    v_xor_b32 v{vHG+8}, s{sTAG}, v{vHG+1}
    v_xor_b32 v{vHG+9}, s{sTAG}, v{vHG+3}
    v_xor_b32 v{vHG+10}, s{sTAG}, v{vHG+5}
    v_xor_b32 v{vHG+11}, s{sTAG}, v{vHG+7}
    ds_write2_b32 v{vXA2}, v{vHG}, v{vHG+2} offset0:0 offset1:1
    v_or3_b32 v{vHG+8}, v{vHG+8}, v{vHG+9}, v{vHG+10}
    ds_write2_b32 v{vXA2}, v{vHG+4}, v{vHG+6} offset0:4 offset1:5
    v_or_b32 v{vHG+8}, v{vHG+8}, v{vHG+11}
    v_cmp_ne_u32 vcc, 0, v{vHG+8}
    s_cbranch_vccz L_hok
    {"s_sleep %d" % SLH if SLH else ""}""")
spin("L_hpoll")
vS1, vS2 = vU + 12, vU + 13
a("L_hok:\ns_waitcnt lgkmcnt(0)\nL_hwait:\ns_barrier")
stamp(9)
a(f"ds_read_b128 v[{vHG}:{vHG+3}], v{vHS}")
for k in range(4): a(f"ds_read_b128 v[{vAX+4*k}:{vAX+4*k+3}], v{vXR0} offset:{k*64}")
a(f"v_mov_b32 v{vS1}, 0\nv_mov_b32 v{vS2}, 0\ns_waitcnt lgkmcnt(4)")
for i in range(4):
    a(f"v_dot2_f32_bf16 v{vS1}, v{vHG+i}, v{vONE}, v{vS1}\nv_dot2_f32_bf16 v{vS2}, v{vHG+i}, v{vHG+i}, v{vS2}")
a("s_waitcnt lgkmcnt(0)")
for k in range(4):
    for cb in range(2): mfma(vAC + 4 * cb, vAX + 4 * k, vKF + (cb * 4 + k) * 4, None if k == 0 else vAC + 4 * cb)
allreduce([vS1, vS2], "v_add_f32", [vU + 14, vU + 19])
a(f"""
    v_mul_f32 v{vS1}, 0x3b000000, v{vS1}
    v_mul_f32 v{vS2}, 0x3b000000, v{vS2}
    v_fma_f32 v{vS2}, -v{vS1}, v{vS1}, v{vS2}
    v_max_f32 v{vS2}, 0, v{vS2}""")
round_bf16(vS1); round_bf16(vS2)
a(f"""
    v_add_f32 v{vS2}, 0x3727c5ac, v{vS2}
    v_cndmask_b32 v{vU+14}, v{vAC}, v{vAC+4}, s[{sM1}:{sM1+1}]
    v_fma_f32 v{vU+14}, -v{vS1}, v{vCSUM}, v{vU+14}""")
setexec(0xffffffff)
a(f"ds_write_b32 v{vQPW2}, v{vU+14}")
setexec(-1)
round_bf16(vS2)
a(f"v_sqrt_f32 v{vS2}, v{vS2}")
round_bf16(vS2)
a(f"""
    v_rcp_f32 v{vS2}, v{vS2}
    s_waitcnt lgkmcnt(0)
    s_barrier
    ds_read_b128 v[{vU+20}:{vU+23}], v{vU+16}
    s_waitcnt lgkmcnt(0)
    v_add_f32 v{vU+20}, v{vU+20}, v{vU+21}
    v_add_f32 v{vU+22}, v{vU+22}, v{vU+23}
    v_add_f32 v{vU+20}, v{vU+20}, v{vU+22}
    v_mul_f32 v{vU+20}, v{vU+20}, v{vS2}""")
round_bf16(vU + 20)
a(f"""
    v_mul_f32 v{vU+21}, 0xbfb8aa3b, v{vU+20}
    v_exp_f32 v{vU+21}, v{vU+21}
    v_add_f32 v{vU+21}, 1.0, v{vU+21}
    v_rcp_f32 v{vU+21}, v{vU+21}
    v_mul_f32 v{vU+20}, v{vU+20}, v{vU+21}
    v_cvt_pk_bf16_f32 v{vU+20}, v{vU+20}, v{vU+20}
    ds_write_b16 v{vU+17}, v{vU+20}
    s_waitcnt lgkmcnt(0)
    ds_read_b128 v[{vR4}:{vR4+3}], v{vU+18}
    s_waitcnt lgkmcnt(0)""")
for e in range(8): mfma(vO + 4 * e, vR4, vVF + 4 * e, None)
a(f"""
    v_cndmask_b32 v{vGR}, v{vO}, v{vO+8}, s[{sM1}:{sM1+1}]
    v_cndmask_b32 v{vGR+1}, v{vO+4}, v{vO+12}, s[{sM1}:{sM1+1}]
    v_cndmask_b32 v{vGR}, v{vGR}, v{vO+16}, s[{sM2}:{sM2+1}]
    v_cndmask_b32 v{vGR+1}, v{vGR+1}, v{vO+20}, s[{sM2}:{sM2+1}]
    v_cndmask_b32 v{vGR}, v{vGR}, v{vO+24}, s[{sM3}:{sM3+1}]
    v_cndmask_b32 v{vGR+1}, v{vGR+1}, v{vO+28}, s[{sM3}:{sM3+1}]
    buffer_store_dwordx4 v[{vGR}:{vGR+3}], v{vGA}, {WS}, s{sQS} offen sc1""")
if EFLAG:
    a(f"""
    s_sub_u32 s{sT0}, s{sJ}, 16
    s_lshl_b32 s{sT0}, s{sT0}, 2
    s_add_u32 s{sT0}, s{sT0}, s{sW}
    s_lshl_b32 s{sT0}, s{sT0}, 2
    s_lshl_b32 s{sT1}, s{sG}, 7
    s_add_u32 s{sT0}, s{sT0}, s{sT1}
    s_add_u32 s{sT0}, s{sT0}, {PF}
    v_mov_b32 v{vt0}, 0
    s_mov_b64 exec, 1""")
    local_store(f"buffer_store_dword v{vGR+2}, v{vt0}, {WS}, s{sT0} offen")
    a("s_mov_b64 exec, -1")
stamp(10)
a("s_branch L_fin")
a("L_idle:")
if PTH:
    a(f"""
    s_sub_u32 s{sT0}, s{sJ}, 23
    s_lshl_b32 s{sT0}, s{sT0}, 2
    s_add_u32 s{sT0}, s{sT0}, s{sW}
    v_lshlrev_b32 v{vTMP}, 7, v{vLane}
    s_lshl_b32 s{sT1}, s{sT0}, 13
    s_add_u32 s{sT2}, s{sT1}, {PC}
    s_add_u32 s{sT3}, s{sT1}, {PE}
    s_cmp_ge_u32 s{sT0}, 32
    s_cbranch_scc1 L_fin
    buffer_load_dword v{vPT}, v{vTMP}, {WS}, s{sT2} offen sc1
    s_cmp_ge_u32 s{sT0}, 28
    s_cbranch_scc1 L_fin
    buffer_load_dword v{vPT}, v{vTMP}, {WS}, s{sT3} offen sc1""")
a("L_fin:")
if STAMPS:
    a(f"""
    s_waitcnt lgkmcnt(0)
    s_mov_b64 exec, 1
    s_lshl_b32 s{sT0}, s2, 2
    s_add_u32 s{sT0}, s{sT0}, s{sW}
    s_mul_i32 s{sT0}, s{sT0}, 128
    s_add_u32 s{sT0}, s{sT0}, {STAMP}
    v_mov_b32 v6, 0""")
    for i in range(16):
        if i < NST:
            a(f"v_mov_b32 v4, s{sST+2*i}\nv_mov_b32 v5, s{sST+2*i+1}")
        else:
            a("v_mov_b32 v4, 0\nv_mov_b32 v5, 0")
        a(f"buffer_store_dwordx2 v[4:5], v6, {WS}, s{sT0} offen offset:{i*8}")
a("L_end:\ns_endpgm")
body = a.text()
if STAMPS:
    body = "".join(f"s_mov_b32 s{sST+i}, 0\n" for i in range(2 * NST)) + body
body, n = fix(body)
print(wrap(body, 256, 256, LDS_SIZE, NVGPR, 102))
print(f"; inserted {n} nops", file=sys.stderr)
```

```python
import sys
from asmgen import *
from hazard import fix

STAMPS = "--stamps" in sys.argv
def opt(name, default):
    for x in sys.argv:
        if x.startswith(f"--{name}="):
            return type(default)(x.split("=", 1)[1])
    return default
NT = opt("nt", "nt")
SLQ = opt("slq", 1); SLB = opt("slb", 0); SLH = opt("slh", 1); SLE = opt("sle", 0)
DLC = opt("dlc", 10); STGC = opt("stgc", 5); STGE = opt("stge", 3); FORCEG = opt("forceg", 0)
KDELAY = opt("kdelay", 1)
EARLYG = opt("earlyg", 0)
ROWPOS = opt("rowpos", "early")
DLE = opt("dle", 0)
EPIPE = opt("epipe", 1)
CPIPE = opt("cpipe", 1)
FW2 = opt("fw2", 0)
EFLAG = opt("eflag", 1)
DLE2 = opt("dle2", 1)
ROWPRE = opt("rowpre", 0)
VORD = opt("vord", 0)
PAD = opt("pad", 3328)
WARM = opt("warm", 1)
FALIGN = opt("falign", 1)
DUALQ = opt("dualq", 1)
PTH = opt("pth", 0)
SPINMAX = 0x40000

PH = 0x1000; PF = 0x6000; QP_G = 0x40000; QTOG = 0x20000; PB = 0x80000; PC = 0x100000; PE = 0x140000; STAMP = 0x8000000
KL = 0x0; WL = 0x8000; XN = 0x10000; OL = 0x11000; ML = 0x13400; QP = 0x13480; OB = 0x13900; AL = 0x13980
QL = 0x13B00; MF = 0x13F40; HL = 0x13F80; LDS_SIZE = 86016
sG, sJ, sW, sSPIN, sRO = 3, 4, 5, 6, 7
SX, SK, SV, SROW, SWS = 8, 12, 16, 20, 24
pWO, pW2, pW1, pOUT = 28, 30, 32, 34
sSTA, sSTB, sLM, sXO, sQS, sX2 = 36, 37, 38, 39, 40, 41
sKV, sKV1, sTAG, sTAGB = 44, 45, 46, 47
sT0, sT1, sT2, sT3 = 48, 49, 50, 51
sM1, sM2, sM3 = 52, 54, 56
sLOG2E, sSCALE = 58, 60
sQG, sBP, sSEL0, sSEL1, sF, sTBX, sMODE, sBA = 62, 63, 64, 65, 66, 67, 68, 69
sQ1, sQ2, sQ3 = 42, 43, 2 + 0
sST = 70; NST = 15
sQ3 = 100
vLane, vN, vS = 1, 2, 3
vKD = 4
vVA, vQA = 8, 9
vT = 10
vOW, vMW, vORD, vQW, vQR, vMR, vBP = 10, 11, 12, 16, 17, 18, 19
vKR = 20
vW1, vW1b, vBA, vMFW, vXCA = 24, 25, 26, 27, 28
vTMP = 29
vKF = 32; vVR = 64; vVF = 96; vQ = 128; vQ2 = 144; vO = 160; vS0 = 192; vU = 200
vXA, vXR, vTQ = 240, 241, 242
vW1c = 247; vXC, vEP, vH, vPT = 248, 249, 250, 251; vONE = 252
NVGPR = 256

a = Asm()
def stamp(i):
    if STAMPS: a(f"s_memrealtime s[{sST+2*i}:{sST+2*i+1}]")
def setexec(mask):
    if mask == -1: a("s_mov_b64 exec, -1"); return
    if mask <= 64: a(f"s_mov_b64 exec, {mask}"); return
    a(f"s_mov_b32 exec_lo, {hex(mask & 0xffffffff)}\ns_mov_b32 exec_hi, {hex(mask >> 32)}")
def spin(loop):
    a(f"s_add_u32 s{sSPIN}, s{sSPIN}, 1\ns_cmp_lt_u32 s{sSPIN}, {SPINMAX}\ns_cbranch_scc1 {loop}\ns_branch L_fin")
def unpack8(src, dst):
    for i in range(4):
        a(f"v_lshlrev_b32 v{dst+2*i}, 16, v{src+i}\nv_and_b32 v{dst+2*i+1}, 0xffff0000, v{src+i}")
def round_bf16(r):
    a(f"v_cvt_pk_bf16_f32 v{r}, v{r}, v{r}\nv_lshlrev_b32 v{r}, 16, v{r}")
def allreduce(regs, op, tmps, steps=(8, 4, 2, 1)):
    for st in steps:
        for r in regs: a(f"{op}_dpp v{r}, v{r}, v{r} row_ror:{st} row_mask:0xf bank_mask:0xf")
    for sw in ("v_permlane16_swap_b32", "v_permlane32_swap_b32"):
        for r, t in zip(regs, tmps): a(f"v_mov_b32 v{t}, v{r}")
        for r, t in zip(regs, tmps): a(f"{sw} v{r}, v{t}")
        for r, t in zip(regs, tmps): a(f"{op} v{r}, v{r}, v{t}")
def perms(raw, frag, b):
    for e in range(8):
        sel = sSEL1 if e & 1 else sSEL0
        for h in range(2):
            r0 = raw + (b * 4 + 2 * h) * 4 + (e >> 1); r1 = raw + (b * 4 + 2 * h + 1) * 4 + (e >> 1)
            a(f"v_perm_b32 v{frag + e*4 + 2*b + h}, v{r1}, v{r0}, s{sel}")
def mfma(d, A, B, c):
    cs = "0" if c is None else f"v[{c}:{c+3}]"
    a(f"v_mfma_f32_16x16x32_bf16 v[{d}:{d+3}], v[{A}:{A+3}], v[{B}:{B+3}], {cs}")
_ls = [0]
def local_store(text):
    _ls[0] += 1; k = _ls[0]
    a(f"s_cmp_lg_u32 s{sMODE}, 0\ns_cbranch_scc1 L_lsg{k}\n{text}\ns_branch L_lsd{k}\nL_lsg{k}:\n{text} sc1\nL_lsd{k}:")
def tagcheck(base, n, acc):
    for i in range(n):
        a(f"v_xor_b32 v{base+4*i+2}, s{sTAG}, v{base+4*i+2}\nv_xor_b32 v{base+4*i+3}, s{sTAGB}, v{base+4*i+3}")
    a(f"v_or_b32 v{acc}, v{base+2}, v{base+3}")
    for i in range(1, n): a(f"v_or3_b32 v{acc}, v{acc}, v{base+4*i+2}, v{base+4*i+3}")
    a(f"v_cmp_ne_u32 vcc, 0, v{acc}")
WS = f"s[{SWS}:{SWS+3}]"

vX = vU; vXF = vU + 4; vA1, vA2, vA3 = vU + 12, vU + 13, vU + 14; vX2 = vU + 16; vPK = vQ2
vWQ = vTMP
vQPW, vQPR, vQPS = vU + 20, vU + 21, vU + 22
vGq = vU + 36

def blk_prologue():
    stamp(0)
    a(f"""
    s_lshr_b32 s{sJ}, s2, 3
    s_load_dwordx2 s[{SROW}:{SROW+1}], s[0:1], 24
    s_load_dwordx2 s[{SX}:{SX+1}], s[0:1], 0
    s_load_dwordx2 s[{SWS}:{SWS+1}], s[0:1], 80
    s_cmp_ge_u32 s{sJ}, 32
    s_cbranch_scc1 L_end
    v_lshrrev_b32 v{vT}, 6, v0
    v_and_b32 v{vLane}, 63, v0
    v_readfirstlane_b32 s{sW}, v{vT}
    v_bfe_u32 v{vS}, v0, 4, 2
    v_and_b32 v{vT+1}, 7, v0
    v_lshlrev_b32 v{vT+2}, 1, v{vS}
    v_xor_b32 v{vT+1}, v{vT+1}, v{vT+2}
    v_lshrrev_b32 v{vT}, 3, v{vLane}
    v_lshlrev_b32 v{vT}, 13, v{vT}
    v_lshl_or_b32 v{vWQ}, v{vT+1}, 4, v{vT}
    s_and_b32 s{sG}, s2, 7
    s_lshl_b32 s{sT1}, s{sG}, 10
    s_and_b32 s{sT2}, s{sJ}, 7
    s_lshl_b32 s{sT2}, s{sT2}, 7
    s_add_u32 s{sT1}, s{sT1}, s{sT2}
    s_lshr_b32 s{sT2}, s{sJ}, 3
    s_lshl_b32 s{sT2}, s{sT2}, 2
    s_add_u32 s{sT2}, s{sT2}, s{sW}
    s_lshl_b32 s{sX2}, s{sT2}, 6
    s_lshl_b32 s{sT2}, s{sT2}, 18
    s_add_u32 s{sT1}, s{sT1}, s{sT2}
    s_lshl_b32 s{sT2}, s{sW}, 12
    s_bitset1_b32 s{sT2}, 15
    s_mov_b32 m0, s{sT2}
    s_lshl_b32 s{SROW+3}, 1, 17
    s_lshl_b32 s{SROW+2}, 1, 22
    s_movk_i32 s{SX+2}, 0x400
    s_mov_b32 s{SX+3}, s{SROW+3}
    s_lshl_b32 s{SWS+2}, 1, 28
    s_mov_b32 s{SWS+3}, s{SROW+3}
    s_mov_b32 s{sT3}, {8 * 8192 - 1024}
    v_lshlrev_b32 v{vT}, 4, v{vLane}
    v_and_b32 v{vN}, 15, v0
    v_lshlrev_b32 v{vT+3}, 2, v{vN}
    s_waitcnt lgkmcnt(0)""")
    a(f"buffer_load_dwordx4 v[{vX}:{vX+3}], v{vT}, s[{SX}:{SX+3}], 0 offen")
    a(f"buffer_load_dword v{vX2}, v{vT+3}, s[{SX}:{SX+3}], s{sX2} offen")
    for i in range(4):
        a(f"buffer_load_dwordx4 v{vWQ}, s[{SROW}:{SROW+3}], s{sT1} offen offset:{i * 1024} {NT} lds")
        if i < 3: a(f"s_add_u32 s{sT1}, s{sT1}, s{sT3}")
    stamp(1)
    a(f"""
    s_load_dwordx2 s[{SK}:{SK+1}], s[0:1], 8
    s_load_dwordx2 s[{SV}:{SV+1}], s[0:1], 16
    buffer_load_dword v{vEP}, off, {WS}, 0 sc1
    s_load_dwordx2 s[{pWO}:{pWO+1}], s[0:1], 32
    s_load_dwordx2 s[{pW1}:{pW1+1}], s[0:1], 48
    s_load_dwordx2 s[{pW2}:{pW2+1}], s[0:1], 56
    s_load_dwordx2 s[{pOUT}:{pOUT+1}], s[0:1], 64""")

def blk_issue_K():
    a(f"""
    s_lshl_b32 s{sKV}, s{sG}, 23
    s_lshl_b32 s{sT0}, s{sJ}, 12
    s_add_u32 s{sKV}, s{sKV}, s{sT0}
    s_lshl_b32 s{sT0}, s{sW}, 18
    s_add_u32 s{sKV}, s{sKV}, s{sT0}
    s_add_u32 s{sKV}, s{sKV}, 7340032
    s_add_u32 s{sKV1}, s{sKV}, 131072
    v_xor_b32 v{vTMP}, v{vN}, v{vS}
    v_lshlrev_b32 v{vTMP}, 4, v{vTMP}
    v_lshl_or_b32 v{vKD}, v{vS}, 8, v{vTMP}
    v_xor_b32 v{vKD+1}, 64, v{vKD}
    v_xor_b32 v{vKD+2}, 128, v{vKD}
    v_xor_b32 v{vKD+3}, 192, v{vKD}
    s_lshl_b32 s{sT0}, s{sW}, 13
    s_mov_b32 m0, s{sT0}
    s_mov_b32 s{SK+2}, 67108864
    s_mov_b32 s{SK+3}, 0x20000
    s_waitcnt lgkmcnt(0)""")
    for i in range(4):
        a(f"buffer_load_dwordx4 v{vKD+i}, s[{SK}:{SK+3}], s{sKV} offen offset:{i*1024} {NT} lds")
    a(f"s_add_u32 s{sT0}, s{sT0}, 4096\ns_mov_b32 m0, s{sT0}")
    for i in range(4):
        a(f"buffer_load_dwordx4 v{vKD+i}, s[{SK}:{SK+3}], s{sKV1} offen offset:{i*1024} {NT} lds")

def blk_pre_q():
    t = vTMP
    a(f"""
    s_mov_b32 s{SV+2}, 67108864
    s_mov_b32 s{SV+3}, 0x20000
    v_lshlrev_b32 v{t}, 4, v{vN}
    v_lshl_or_b32 v{vVA}, v{vS}, 10, v{t}
    s_mov_b32 s{sSPIN}, 0
    s_mov_b32 s{sSEL0}, 0x05040100
    s_mov_b32 s{sSEL1}, 0x07060302
    s_mov_b32 s{sLOG2E}, 0x3fb8aa3b
    s_mov_b32 s{sLOG2E+1}, 0x3fb8aa3b
    s_mov_b32 s{sSCALE}, 0x3db504f3
    s_mov_b32 s{sSCALE+1}, 0x3db504f3
    v_cmp_eq_u32 s[{sM1}:{sM1+1}], 1, v{vS}
    v_cmp_eq_u32 s[{sM2}:{sM2+1}], 2, v{vS}
    v_cmp_eq_u32 s[{sM3}:{sM3+1}], 3, v{vS}
    s_lshl_b32 s{sT0}, s{sW}, 6
    s_add_u32 s{sT0}, s{sT0}, {XN}
    v_bfe_u32 v{t}, v{vN}, 1, 2
    v_lshlrev_b32 v{vXA}, 4, v{t}
    v_lshrrev_b32 v{t}, 3, v{vN}
    v_lshl_or_b32 v{vXA}, v{t}, 3, v{vXA}
    v_and_b32 v{t}, 1, v{vN}
    v_lshl_or_b32 v{vXA}, v{t}, 2, v{vXA}
    v_add_u32 v{vXA}, s{sT0}, v{vXA}
    v_lshl_add_u32 v{vXR}, v{vS}, 4, s{sT0}
    s_lshl_b32 s{sT0}, s{sW}, 12
    s_add_u32 s{sT0}, s{sT0}, {WL}
    v_lshrrev_b32 v{t}, 2, v{vN}
    v_lshl_or_b32 v{t+1}, v{vS}, 2, v{t}
    v_bfe_u32 v{t+2}, v{t+1}, 1, 2
    v_lshlrev_b32 v{t+1}, 7, v{t+1}
    v_lshl_or_b32 v{t+1}, v{t+2}, 5, v{t+1}
    v_and_b32 v{t+2}, 3, v{vN}
    v_lshl_or_b32 v{t+1}, v{t+2}, 3, v{t+1}
    v_add_u32 v{vTQ}, s{sT0}, v{t+1}
    v_xor_b32 v{vTQ+1}, 32, v{vTQ}
    v_xor_b32 v{vTQ+2}, 64, v{vTQ}
    v_xor_b32 v{vTQ+3}, 96, v{vTQ}
    s_lshl_b32 s{sT0}, s{sW}, 2
    s_add_u32 s{sT0}, s{sT0}, {QP}
    v_lshl_add_u32 v{vQPW}, v{vLane}, 4, s{sT0}
    s_lshl_b32 s{sT0}, s{sW}, 8
    s_add_u32 s{sT0}, s{sT0}, {QP}
    v_lshl_add_u32 v{vQPR}, v{vN}, 4, s{sT0}
    s_lshl_b32 s{sQG}, s{sG}, 14
    s_add_u32 s{sQG}, s{sQG}, {QP_G}
    s_lshr_b32 s{sT0}, s{sJ}, 3
    s_lshl_b32 s{sT0}, s{sT0}, 12
    s_and_b32 s{sT1}, s{sJ}, 7
    s_lshl_b32 s{sT1}, s{sT1}, 9
    s_add_u32 s{sT0}, s{sT0}, s{sT1}
    s_lshl_b32 s{sT1}, s{sW}, 7
    s_add_u32 s{sT0}, s{sT0}, s{sT1}
    s_add_u32 s{sQS}, s{sT0}, s{sQG}
    v_lshrrev_b32 v{vQPS}, 1, v{vN}
    v_lshlrev_b32 v{vQPS}, 4, v{vQPS}""")

def blk_pre_att():
    t = vTMP
    a(f"""
    s_lshl_b32 s{sT0}, s{sW}, 13
    v_xor_b32 v{t}, v{vN}, v{vS}
    v_lshlrev_b32 v{t}, 4, v{t}
    v_lshl_or_b32 v{t}, v{vN}, 8, v{t}
    v_add_u32 v{vKR}, s{sT0}, v{t}
    v_xor_b32 v{vKR+1}, 64, v{vKR}
    v_xor_b32 v{vKR+2}, 128, v{vKR}
    v_xor_b32 v{vKR+3}, 192, v{vKR}
    v_mov_b32 v{vONE}, 0x3f803f80
    v_mov_b32 v{vONE+1}, 0x3f803f80
    v_mov_b32 v{vONE+2}, 0x3f803f80
    v_mov_b32 v{vONE+3}, 0x3f803f80
    s_mul_i32 s{sT0}, s{sW}, 272
    s_add_u32 s{sT0}, s{sT0}, {QL}
    v_lshl_add_u32 v{vQW}, v{vLane}, 2, s{sT0}
    v_lshrrev_b32 v{vQR}, 2, v{vN}
    v_mul_u32_u24 v{vQR}, 272, v{vQR}
    v_lshl_add_u32 v{vQR}, v{vS}, 4, v{vQR}
    v_add_u32 v{vQR}, {QL}, v{vQR}
    s_lshl_b32 s{sT0}, s{sW}, 10
    s_add_u32 s{sQG}, s{sQG}, s{sT0}
    {"" if DUALQ else "s_xor_b32 s%d, s%d, %d" % (sQG, sQG, QTOG)}
    s_add_u32 s{sQ1}, s{sQG}, 4096
    s_add_u32 s{sQ2}, s{sQG}, 8192
    s_add_u32 s{sQ3}, s{sQG}, 12288
    v_lshlrev_b32 v{vQA}, 4, v{vLane}
    s_mul_i32 s{sT0}, s{sW}, 2304
    s_add_u32 s{sT0}, s{sT0}, {OL}
    v_mul_u32_u24 v{vOW}, 576, v{vS}
    v_mad_u32_u24 v{vOW}, v{vN}, 36, v{vOW}
    v_add_u32 v{vOW}, s{sT0}, v{vOW}
    s_lshl_b32 s{sT0}, s{sW}, 3
    s_add_u32 s{sT0}, s{sT0}, {ML}
    v_lshlrev_b32 v{vMW}, 5, v{vS}
    v_add_u32 v{vMW}, s{sT0}, v{vMW}
    s_mul_i32 s{sT0}, s{sW}, 576
    s_add_u32 s{sT0}, s{sT0}, {OL}
    v_lshrrev_b32 v{vORD}, 2, v{vLane}
    v_mul_u32_u24 v{vORD}, 36, v{vORD}
    v_and_b32 v{vORD+1}, 3, v{vLane}
    v_lshl_add_u32 v{vORD}, v{vORD+1}, 3, v{vORD}
    v_add_u32 v{vORD}, s{sT0}, v{vORD}
    v_add_u32 v{vORD+1}, 2304, v{vORD}
    v_add_u32 v{vORD+2}, 4608, v{vORD}
    v_add_u32 v{vORD+3}, 6912, v{vORD}
    s_lshl_b32 s{sT0}, s{sW}, 5
    s_add_u32 s{sT0}, s{sT0}, {ML}
    v_mov_b32 v{vMR}, s{sT0}
    s_lshl_b32 s{sT0}, s{sW}, 2
    s_add_u32 s{sT0}, s{sT0}, {MF}
    v_mov_b32 v{vMFW}, s{sT0}
    s_lshl_b32 s{sT0}, s{sG}, 4
    s_lshl_b32 s{sT1}, s{sW}, 2
    s_add_u32 s{sT0}, s{sT0}, s{sT1}
    s_lshl_b32 s{sT0}, s{sT0}, 5
    s_add_u32 s{sT0}, s{sT0}, s{sJ}
    s_lshl_b32 s{sT0}, s{sT0}, 7
    s_add_u32 s{sBP}, s{sT0}, {PB}
    v_lshrrev_b32 v{vBP}, 1, v{vN}
    v_lshlrev_b32 v{vBP}, 4, v{vBP}
    v_lshl_or_b32 v{vBP}, v{vS}, 12, v{vBP}
    v_lshlrev_b32 v{t}, 1, v{vS}
    v_xor_b32 v{t}, v{t}, v{vN}
    v_lshlrev_b32 v{t}, 4, v{t}
    v_lshl_or_b32 v{vW1}, v{vS}, 10, v{t}
    v_xor_b32 v{vW1b}, 128, v{vW1}
    s_mov_b32 s{sSTA}, {4096 - 1024}
    s_mov_b32 s{sSTB}, {4096 + 3072}
    s_lshl_b32 s{sLM}, s{sW}, 13
    s_lshr_b32 s{sXO}, s{sJ}, 1
    s_lshl_b32 s{sXO}, s{sXO}, 7
    s_and_b32 s{sT0}, s{sJ}, 1
    s_lshl_b32 s{sT0}, s{sT0}, 4
    s_add_u32 s{sXO}, s{sXO}, s{sT0}
    v_bfe_u32 v{vXCA}, v{vLane}, 3, 2
    v_lshlrev_b32 v{vXCA}, 5, v{vXCA}
    v_and_b32 v{t}, 7, v{vLane}
    v_lshl_or_b32 v{vXCA}, v{t}, 1, v{vXCA}
    s_cmp_ge_u32 s{sJ}, 16
    s_cbranch_scc1 L_pre_f
    s_lshl_b32 s{sF}, s{sG}, 4
    s_add_u32 s{sF}, s{sF}, s{sJ}
    s_lshl_b32 s{sBA}, s{sF}, 12
    s_add_u32 s{sBA}, s{sBA}, {PB}
    s_lshl_b32 s{sT0}, s{sW}, 5
    s_add_u32 s{sBA}, s{sBA}, s{sT0}
    v_lshrrev_b32 v{vBA}, 1, v{vLane}
    v_lshlrev_b32 v{vBA}, 7, v{vBA}
    v_and_b32 v{t}, 1, v{vLane}
    v_lshl_or_b32 v{vBA}, v{t}, 4, v{vBA}
    v_mov_b32 v{vW1c}, 0
    s_mov_b32 s{sT2}, 4194304
    s_waitcnt lgkmcnt(0)
    s_mov_b32 s{sT0}, s{pWO}
    s_mov_b32 s{sT1}, s{pWO+1}
    s_branch L_pre_d
L_pre_f:
    s_mul_i32 s{sF}, s{sG}, 7
    s_add_u32 s{sF}, s{sF}, s{sJ}
    s_sub_u32 s{sF}, s{sF}, 16
    s_lshl_b32 s{sBA}, s{sG}, 11
    s_add_u32 s{sBA}, s{sBA}, {PH}
    v_lshlrev_b32 v{vBA}, 5, v{vLane}
    v_lshrrev_b32 v{t}, 2, v{vLane}
    v_mul_u32_u24 v{vW1c}, 3584, v{t}
    v_and_b32 v{t}, 3, v{vLane}
    v_lshlrev_b32 v{t+1}, 1, v{vS}
    v_and_b32 v{t+1}, 2, v{t+1}
    v_xor_b32 v{t}, v{t}, v{t+1}
    v_lshl_add_u32 v{vW1c}, v{t}, 4, v{vW1c}
    s_cmp_ge_u32 s{sJ}, {0 if FW2 else 23}
    s_cselect_b32 s{sT2}, 0, 1835008
    s_waitcnt lgkmcnt(0)
    s_mov_b32 s{sT0}, s{pW2}
    s_mov_b32 s{sT1}, s{pW2+1}
L_pre_d:
    s_mov_b32 s{SROW}, s{sT0}
    s_mov_b32 s{SROW+1}, s{sT1}
    s_mov_b32 s{SROW+2}, s{sT2}
    s_lshl_b32 s{sRO}, s{sF}, 15
    s_lshl_b32 s{sT0}, s{sW}, 8
    s_add_u32 s{sRO}, s{sRO}, s{sT0}""")


def tagcalc():
    a(f"""
    v_readfirstlane_b32 s{sTAG}, v{vEP}
    s_getreg_b32 s{sTBX}, hwreg(HW_REG_XCC_ID)
    s_add_u32 s{sTAG}, s{sTAG}, 0x9e3779b8
    s_or_b32 s{sTAG}, s{sTAG}, 1
    s_xor_b32 s{sTAGB}, s{sTAG}, 0x5bd1e994
    s_and_b32 s{sTBX}, s{sTBX}, 7
    s_xor_b32 s{sTBX}, s{sTBX}, s{sTAGB}""")

def issue_V(b):
    for jj in range(4):
        r = vVR + (b * 4 + jj) * 4
        a(f"buffer_load_dwordx4 v[{r}:{r+3}], v{vVA}, s[{SV}:{SV+3}], s{sKV1 if b else sKV} offen offset:{jj*256} {NT}")

def blk_ln(extra=0):
    a(f"s_waitcnt vmcnt({14 + extra})")
    unpack8(vX, vXF)
    a(f"""
    v_pk_add_f32 v[{vPK}:{vPK+1}], v[{vXF}:{vXF+1}], v[{vXF+2}:{vXF+3}]
    v_pk_add_f32 v[{vPK+2}:{vPK+3}], v[{vXF+4}:{vXF+5}], v[{vXF+6}:{vXF+7}]
    v_pk_add_f32 v[{vPK}:{vPK+1}], v[{vPK}:{vPK+1}], v[{vPK+2}:{vPK+3}]
    v_add_f32 v{vA1}, v{vPK}, v{vPK+1}""")
    allreduce([vA1], "v_add_f32", [vA2])
    a(f"v_mul_f32 v{vA1}, 0xbb000000, v{vA1}\nv_mov_b32 v{vA2}, v{vA1}")
    for i in range(4):
        a(f"v_pk_add_f32 v[{vPK+2*i}:{vPK+2*i+1}], v[{vXF+2*i}:{vXF+2*i+1}], v[{vA1}:{vA2}]")
    a(f"v_pk_mul_f32 v[{vXF}:{vXF+1}], v[{vPK}:{vPK+1}], v[{vPK}:{vPK+1}]")
    for i in range(1, 4):
        a(f"v_pk_fma_f32 v[{vXF}:{vXF+1}], v[{vPK+2*i}:{vPK+2*i+1}], v[{vPK+2*i}:{vPK+2*i+1}], v[{vXF}:{vXF+1}]")
    a(f"v_add_f32 v{vA2}, v{vXF}, v{vXF+1}\nv_mul_f32 v{vA1}, -1.0, v{vA1}")
    allreduce([vA2], "v_add_f32", [vA3])
    a(f"v_mul_f32 v{vA2}, 0x3b000000, v{vA2}")
    round_bf16(vA1); round_bf16(vA2)
    a(f"v_add_f32 v{vA2}, 0x3727c5ac, v{vA2}")
    round_bf16(vA2)
    a(f"v_sqrt_f32 v{vA2}, v{vA2}")
    round_bf16(vA2)
    a(f"""
    v_rcp_f32 v{vA3}, v{vA2}
    s_waitcnt vmcnt({13 + extra})
    v_lshlrev_b32 v{vXF}, 16, v{vX2}
    v_and_b32 v{vXF+1}, 0xffff0000, v{vX2}
    v_sub_f32 v{vXF}, v{vXF}, v{vA1}
    v_sub_f32 v{vXF+1}, v{vXF+1}, v{vA1}
    v_cvt_pk_bf16_f32 v{vX2}, v{vXF}, v{vXF+1}
    v_lshlrev_b32 v{vXF}, 16, v{vX2}
    v_and_b32 v{vXF+1}, 0xffff0000, v{vX2}
    v_mul_f32 v{vXF+2}, v{vXF}, v{vA3}
    v_mul_f32 v{vXF+3}, v{vXF+1}, v{vA3}
    v_fma_f32 v{vXF}, -v{vXF+2}, v{vA2}, v{vXF}
    v_fma_f32 v{vXF+1}, -v{vXF+3}, v{vA2}, v{vXF+1}
    v_fma_f32 v{vXF}, v{vXF}, v{vA3}, v{vXF+2}
    v_fma_f32 v{vXF+1}, v{vXF+1}, v{vA3}, v{vXF+3}
    v_cvt_pk_bf16_f32 v{vX2}, v{vXF}, v{vXF+1}""")
    setexec(0xffff)
    a(f"ds_write_b32 v{vXA}, v{vX2}")
    setexec(-1)
    a(f"""
    s_waitcnt lgkmcnt(0)
    ds_read_b128 v[{vQ}:{vQ+3}], v{vXR}""")

def blk_qphase(nv=4):
    a(f"s_waitcnt vmcnt({8 + nv})")
    stamp(2)
    for c in range(4):
        r = vKF + c * 4
        a(f"ds_read_b64_tr_b16 v[{r}:{r+1}], v{vTQ+c}\nds_read_b64_tr_b16 v[{r+2}:{r+3}], v{vTQ+c} offset:2048")
    tagcalc()
    a(f"v_mov_b32 v{vGq+2}, s{sTAG}\nv_mov_b32 v{vGq+3}, s{sTBX}")
    a("s_waitcnt lgkmcnt(0)")
    for c in range(4): mfma(vO + 4 * c, vQ, vKF + 4 * c, None)
    t = vU
    a(f"""
    v_cndmask_b32 v{t}, v{vO}, v{vO+4}, s[{sM1}:{sM1+1}]
    v_cndmask_b32 v{t}, v{t}, v{vO+8}, s[{sM2}:{sM2+1}]
    v_cndmask_b32 v{t}, v{t}, v{vO+12}, s[{sM3}:{sM3+1}]
    ds_write_b32 v{vQPW}, v{t}
    s_waitcnt lgkmcnt(0)
    s_barrier
    ds_read_b128 v[{t+4}:{t+7}], v{vQPR}
    s_waitcnt lgkmcnt(0)
    v_pk_add_f32 v[{t+4}:{t+5}], v[{t+4}:{t+5}], v[{t+6}:{t+7}]
    v_add_f32 v{vGq}, v{t+4}, v{t+5}
    v_mov_b32_dpp v{vGq+1}, v{vGq} quad_perm:[1,1,3,3] row_mask:0xf bank_mask:0xf""")
    setexec(0x5555)
    if DUALQ:
        a(f"buffer_store_dwordx4 v[{vGq}:{vGq+3}], v{vQPS}, {WS}, s{sQS} offen")
    a(f"s_xor_b32 s{sQS}, s{sQS}, {QTOG}")
    a(f"buffer_store_dwordx4 v[{vGq}:{vGq+3}], v{vQPS}, {WS}, s{sQS} offen sc1")
    setexec(-1)
    stamp(3)

vQG = vQ2
def issue_qpoll():
    for kq, so in enumerate((sQG, sQ1, sQ2, sQ3)):
        a(f"buffer_load_dwordx4 v[{vQG+4*kq}:{vQG+4*kq+3}], v{vQA}, {WS}, s{so} offen sc1")
def row_load(i):
    if i == 0: a(f"s_mov_b32 m0, s{sLM}")
    if i == 4: a(f"s_add_u32 s{sLM}, s{sLM}, 4096\ns_mov_b32 m0, s{sLM}")
    a(f"buffer_load_dwordx4 v{vW1b if i & 1 else vW1}, s[{SROW}:{SROW+3}], s{sRO} offen offset:{(i & 3)*1024} {NT} lds")
    if i < 7: a(f"s_add_u32 s{sRO}, s{sRO}, s{sSTB if (i & 3) == 3 else sSTA}")
_rows = [0]
SCHED = {"early": [2, 0, 2, 1, 1, 1, 1, 0], "spread": [1] * 8, "burst": [4, 0, 4, 0, 0, 0, 0, 0]}[ROWPOS]
def row_slot(i):
    n = 8 if i == 7 else SCHED[i]
    for _ in range(n):
        if _rows[0] < 8:
            row_load(_rows[0]); _rows[0] += 1
def xc_pt():
    a(f"buffer_load_ushort v{vXC}, v{vXCA}, s[{SX}:{SX+3}], s{sXO} offen")
    a(f"buffer_load_dword v{vPT}, v{vBA}, {WS}, s{sBA} offen sc1")

blk_prologue()
if KDELAY == 2:
    blk_pre_q(); blk_pre_att(); blk_issue_K()
elif KDELAY == 1:
    blk_pre_q(); blk_issue_K()
else:
    blk_issue_K(); blk_pre_q()
NQS = 2 if DUALQ else 1
if VORD == 0:
    blk_ln(); issue_V(0); blk_qphase(4); issue_V(1)
    WK, WV0, WV1 = 8 + NQS, 4 + NQS, 2
elif VORD == 1:
    blk_ln(); issue_V(0); issue_V(1); blk_qphase(8)
    WK, WV0, WV1 = 8 + NQS, 4 + NQS, 2 + NQS
elif VORD == 2:
    issue_V(0); blk_ln(4); issue_V(1); blk_qphase(8)
    WK, WV0, WV1 = 8 + NQS, 4 + NQS, 2 + NQS
if KDELAY != 2: blk_pre_att()
if WARM:
    a("s_branch L_warm1\nL_warm1_ret:")
a(f"s_waitcnt vmcnt({WK})")
stamp(4)
for b in range(2):
    for i in range(4):
        r = vKF + (b * 4 + i) * 4
        a(f"ds_read_b128 v[{r}:{r+3}], v{vKR+i} offset:{b*4096}")
a(f"s_waitcnt vmcnt({WV0})")
perms(vVR, vVF, 0)
if EARLYG:
    issue_qpoll()
    a("s_waitcnt lgkmcnt(0)")
    for i in range(8): row_load(i)
    _rows[0] = 8
    xc_pt()
    a("s_waitcnt vmcnt(14)")
    perms(vVR, vVF, 1)
    stamp(5)
    a("s_waitcnt vmcnt(10)\ns_branch L_qchk0")
elif ROWPRE:
    a("s_waitcnt vmcnt(2)")
    issue_qpoll()
    a("s_waitcnt vmcnt(4) lgkmcnt(0)")
    for i in range(ROWPRE): row_load(i)
    _rows[0] = ROWPRE
    perms(vVR, vVF, 1)
    stamp(5)
    a(f"s_waitcnt vmcnt({ROWPRE})\ns_branch L_qchk0")
else:
    a(f"s_waitcnt vmcnt({WV1})")
    issue_qpoll()
    a(f"s_waitcnt vmcnt({4 + (NQS if VORD else 0)})")
    perms(vVR, vVF, 1)
    stamp(5)
t = vU
a(f"""
L_qcheck:
    s_waitcnt vmcnt(0)
L_qchk0:
    v_add_f32 v{t}, v{vQG}, v{vQG+4}
    v_add_f32 v{t+1}, v{vQG+1}, v{vQG+5}
    v_add_f32 v{t+2}, v{vQG+8}, v{vQG+12}
    v_add_f32 v{t+3}, v{vQG+9}, v{vQG+13}
    v_add_f32 v{t}, v{t}, v{t+2}
    v_add_f32 v{t+1}, v{t+1}, v{t+3}
    v_xor_b32 v{vQG+3}, s{sTBX}, v{vQG+3}
    v_cvt_pk_bf16_f32 v{t}, v{t}, v{t+1}
    v_xor_b32 v{vQG+7}, s{sTBX}, v{vQG+7}
    ds_write_b32 v{vQW}, v{t}
    v_xor_b32 v{vQG+11}, s{sTBX}, v{vQG+11}
    v_xor_b32 v{vQG+15}, s{sTBX}, v{vQG+15}
    v_xor_b32 v{vQG+2}, s{sTAG}, v{vQG+2}
    v_xor_b32 v{vQG+6}, s{sTAG}, v{vQG+6}
    v_xor_b32 v{vQG+10}, s{sTAG}, v{vQG+10}
    v_xor_b32 v{vQG+14}, s{sTAG}, v{vQG+14}
    v_or3_b32 v{vQG+3}, v{vQG+3}, v{vQG+7}, v{vQG+11}
    v_or3_b32 v{vQG+2}, v{vQG+2}, v{vQG+6}, v{vQG+10}
    v_or_b32 v{vQG+3}, v{vQG+3}, v{vQG+15}
    v_and_b32 v{vQG+7}, -8, v{vQG+3}
    v_or3_b32 v{vQG+2}, v{vQG+2}, v{vQG+14}, v{vQG+7}
    v_cmp_ne_u32 vcc, 0, v{vQG+2}
    s_cbranch_vccz L_qok
    {"s_sleep %d" % SLQ if SLQ else ""}""")
if DUALQ:
    for r in (sQG, sQ1, sQ2, sQ3): a(f"s_xor_b32 s{r}, s{r}, {QTOG}")
issue_qpoll()
spin("L_qcheck")
a("L_qok:\ns_waitcnt lgkmcnt(0)\ns_barrier")
for i in range(4): a(f"ds_read_b128 v[{vQ+4*i}:{vQ+4*i+3}], v{vQR} offset:{i*64}")
stamp(6)
row_slot(0)
a(f"""
    v_cmp_ne_u32 vcc, 0, v{vQG+3}
    s_cmp_lg_u64 vcc, 0
    s_cselect_b32 s{sMODE}, 1, 0
    v_mov_b32 v{vTMP}, s{sMODE}""")
row_slot(1)
a("s_waitcnt lgkmcnt(0)")
for i in range(4):
    for b in range(2): mfma(vS0 + 4 * b, vKF + (b * 4 + i) * 4, vQ + 4 * i, None if i == 0 else vS0 + 4 * b)
vP = vU; vR4 = vU + 8; vM = vU + 12; vMT = vU + 14
a(f"ds_write_b32 v{vMFW}, v{vTMP}")
row_slot(2)
for i in range(4): a(f"v_cvt_pk_bf16_f32 v{vR4+i}, v{vS0+2*i}, v{vS0+2*i+1}")
unpack8(vR4, vP)
row_slot(3)
for i in range(4): a(f"v_pk_mul_f32 v[{vP+2*i}:{vP+2*i+1}], v[{vP+2*i}:{vP+2*i+1}], s[{sSCALE}:{sSCALE+1}]")
for i in range(4): a(f"v_cvt_pk_bf16_f32 v{vR4+i}, v{vP+2*i}, v{vP+2*i+1}")
unpack8(vR4, vP)
row_slot(4)
a(f"""
    v_max3_f32 v{vM}, v{vP}, v{vP+1}, v{vP+2}
    v_max3_f32 v{vMT}, v{vP+3}, v{vP+4}, v{vP+5}
    v_max3_f32 v{vM}, v{vM}, v{vP+6}, v{vP+7}
    v_max_f32 v{vM}, v{vM}, v{vMT}
    v_mov_b32 v{vMT}, v{vM}
    v_permlane16_swap_b32 v{vM}, v{vMT}
    v_max_f32 v{vM}, v{vM}, v{vMT}
    v_mov_b32 v{vMT}, v{vM}
    v_permlane32_swap_b32 v{vM}, v{vMT}
    v_max_f32 v{vM}, v{vM}, v{vMT}
    v_mul_f32 v{vM}, s{sLOG2E}, v{vM}
    v_mul_f32 v{vMT}, -1.0, v{vM}
    v_mul_f32 v{vMT+1}, -1.0, v{vM}""")
for i in range(4): a(f"v_pk_fma_f32 v[{vP+2*i}:{vP+2*i+1}], v[{vP+2*i}:{vP+2*i+1}], s[{sLOG2E}:{sLOG2E+1}], v[{vMT}:{vMT+1}]")
row_slot(5)
for i in range(8): a(f"v_exp_f32 v{vP+i}, v{vP+i}")
for i in range(4): a(f"v_cvt_pk_bf16_f32 v{vR4+i}, v{vP+2*i}, v{vP+2*i+1}")
vL = vS0
mfma(vL, vR4, vONE, None)
for e in range(8): mfma(vO + 4 * e, vR4, vVF + 4 * e, None)
row_slot(6); row_slot(7)
a(f"v_mov_b32 v{vM+1}, v{vL}")
setexec(0x1000010000100001)
a(f"ds_write_b64 v{vMW}, v[{vM}:{vM+1}]")
setexec(-1)
for e in range(0, 8, 2): a(f"ds_write2_b32 v{vOW}, v{vO+4*e}, v{vO+4*e+4} offset0:{e} offset1:{e+1}")
vC = vU + 16; vG = vU + 36
a(f"""
    v_mov_b32 v{vTMP+1}, {MF}
    v_mov_b32 v{vG+3}, s{sTAG}
    s_waitcnt lgkmcnt(0)
    s_barrier
    ds_read_b128 v[{vC}:{vC+3}], v{vMR}
    ds_read_b128 v[{vC+4}:{vC+7}], v{vMR} offset:16""")
for src in range(4): a(f"ds_read2_b32 v[{vC+8+2*src}:{vC+9+2*src}], v{vORD+src} offset0:0 offset1:1")
a(f"ds_read_b128 v[{vQG}:{vQG+3}], v{vTMP+1}")
if not EARLYG: xc_pt()
a(f"""
    s_waitcnt lgkmcnt(5)
    v_max3_f32 v{vC+16}, v{vC}, v{vC+2}, v{vC+4}
    v_max_f32 v{vC+16}, v{vC+16}, v{vC+6}
    v_sub_f32 v{vC}, v{vC}, v{vC+16}
    v_sub_f32 v{vC+2}, v{vC+2}, v{vC+16}
    v_sub_f32 v{vC+4}, v{vC+4}, v{vC+16}
    v_sub_f32 v{vC+6}, v{vC+6}, v{vC+16}
    v_exp_f32 v{vC}, v{vC}
    v_exp_f32 v{vC+2}, v{vC+2}
    v_exp_f32 v{vC+4}, v{vC+4}
    v_exp_f32 v{vC+6}, v{vC+6}
    v_mul_f32 v{vC+17}, v{vC}, v{vC+1}
    v_fmac_f32 v{vC+17}, v{vC+2}, v{vC+3}
    v_fmac_f32 v{vC+17}, v{vC+4}, v{vC+5}
    v_fmac_f32 v{vC+17}, v{vC+6}, v{vC+7}
    s_waitcnt lgkmcnt(0)
    v_rcp_f32 v{vC+18}, v{vC+17}
    v_log_f32 v{vC+19}, v{vC+17}
    v_mul_f32 v{vC+8}, v{vC+8}, v{vC}
    v_mul_f32 v{vC+9}, v{vC+9}, v{vC}
    v_fmac_f32 v{vC+8}, v{vC+10}, v{vC+2}
    v_fmac_f32 v{vC+9}, v{vC+11}, v{vC+2}
    v_fmac_f32 v{vC+8}, v{vC+12}, v{vC+4}
    v_fmac_f32 v{vC+9}, v{vC+13}, v{vC+4}
    v_fmac_f32 v{vC+8}, v{vC+14}, v{vC+6}
    v_fmac_f32 v{vC+9}, v{vC+15}, v{vC+6}
    v_or3_b32 v{vQG}, v{vQG}, v{vQG+1}, v{vQG+2}
    v_mul_f32 v{vC+8}, v{vC+8}, v{vC+18}
    v_mul_f32 v{vC+9}, v{vC+9}, v{vC+18}
    v_or_b32 v{vQG}, v{vQG}, v{vQG+3}
    v_add_f32 v{vG+2}, v{vC+16}, v{vC+19}
    v_cvt_pk_bf16_f32 v{vG}, v{vC+8}, v{vC+9}
    v_readfirstlane_b32 s{sMODE}, v{vQG}""")
if FORCEG: a(f"s_mov_b32 s{sMODE}, 1")
a(f"v_mov_b32_dpp v{vG+1}, v{vG} quad_perm:[1,1,3,3] row_mask:0xf bank_mask:0xf")
setexec(0x5555555555555555)
local_store(f"buffer_store_dwordx4 v[{vG}:{vG+3}], v{vBP}, {WS}, s{sBP} offen")
setexec(-1)
stamp(7)
if STAMPS: a("@@ZI@@")
a(f"s_cmp_ge_u32 s{sJ}, 16\ns_cbranch_scc1 L_ftail")
NYOUNG = 3
vGA, vCA, vCW, vCR, vTW, vt0, vt1, vt2, vPI, vVAL = 10, 11, 12, 13, 14, 15, 16, 17, 18, 19
def tile_addrs():
    a(f"""
    v_lshrrev_b32 v{vt0}, 2, v{vN}
    v_lshl_or_b32 v{vt0}, v{vS}, 2, v{vt0}
    v_and_b32 v{vt1}, 7, v{vt0}
    v_lshlrev_b32 v{vt1}, 5, v{vt1}
    v_lshl_or_b32 v{vt1}, v{vt0}, 8, v{vt1}
    v_and_b32 v{vt0}, 3, v{vN}
    v_lshl_or_b32 v{vt1}, v{vt0}, 3, v{vt1}
    s_lshl_b32 s{sT0}, s{sW}, 13
    v_add_u32 v{vTW}, s{sT0}, v{vt1}""")
    for e in range(1, 8): a(f"v_xor_b32 v{vVR+e}, {e*32}, v{vTW}")
def tile_reads():
    for e in range(8):
        ad = vTW if e == 0 else vVR + e
        a(f"ds_read_b64_tr_b16 v[{vVF+4*e}:{vVF+4*e+1}], v{ad}\nds_read_b64_tr_b16 v[{vVF+4*e+2}:{vVF+4*e+3}], v{ad} offset:4096")
vG2 = vU; vB = vU + 4; sE0, sE1 = 58, 59; sBASE = 60; vGR = vU + 36
tile_addrs()
a(f"""
    s_mov_b32 s{sE0}, 0x3f80
    s_mov_b32 s{sE1}, 0x3f800000
    s_lshr_b32 s{sBASE}, s{sJ}, 1
    s_lshl_b32 s{sBASE}, s{sBASE}, 6
    s_and_b32 s{sT1}, s{sJ}, 1
    s_lshl_b32 s{sT1}, s{sT1}, 3
    s_add_u32 s{sBASE}, s{sBASE}, s{sT1}
    v_and_b32 v{vPI}, 1, v{vLane}
    v_and_b32 v{vVAL}, 1, v{vS}
    v_lshlrev_b32 v{vVAL}, 1, v{vVAL}
    v_lshrrev_b32 v{vt0}, 1, v{vS}
    v_or_b32 v{vVAL}, v{vVAL}, v{vt0}
    v_lshlrev_b32 v{vB+6}, 1, v{vVAL}
    v_lshl_or_b32 v{vB+6}, v{vPI}, 4, v{vB+6}
    s_and_b32 s{sT1}, s{sW}, 1
    s_lshl_b32 s{sT1}, s{sT1}, 5
    s_lshr_b32 s{sT2}, s{sW}, 1
    s_lshl_b32 s{sT2}, s{sT2}, 3
    s_add_u32 s{sT1}, s{sT1}, s{sT2}
    s_add_u32 s{sT1}, s{sT1}, {OB}
    v_add_u32 v{vB+6}, s{sT1}, v{vB+6}
    v_lshlrev_b32 v{vB+7}, 4, v{vS}
    v_add_u32 v{vB+7}, {OB}, v{vB+7}
    v_lshlrev_b32 v{vGA}, 4, v{vN}
    v_lshl_or_b32 v{vGA}, v{vS}, 8, v{vGA}
    v_lshrrev_b32 v{vCA}, 3, v{vLane}
    v_lshlrev_b32 v{vCA}, 11, v{vCA}
    v_and_b32 v{vt0}, 7, v{vLane}
    v_lshl_or_b32 v{vCA}, v{vt0}, 4, v{vCA}
    v_lshl_add_u32 v{vCW}, v{vVAL}, 3, v{vt0}
    s_lshl_b32 s{sT1}, s{sW}, 2
    s_add_u32 s{sT1}, s{sT1}, {QP}
    v_lshl_add_u32 v{vCW}, v{vCW}, 4, s{sT1}
    v_and_b32 v{vt0}, 31, v{vLane}
    v_lshlrev_b32 v{vCR}, 4, v{vt0}
    v_add_u32 v{vCR}, {QP}, v{vCR}
    v_mov_b32 v{vGR+2}, s{sTAG}
    v_mov_b32 v{vGR+3}, s{sTAGB}
    s_lshl_b32 s{sQS}, s{sF}, 11
    s_lshl_b32 s{sT1}, s{sW}, 9
    s_add_u32 s{sQS}, s{sQS}, s{sT1}
    s_add_u32 s{sQS}, s{sQS}, {PC}
    s_lshl_b32 s{sT1}, s{sW}, 16
    s_lshl_b32 s{sT2}, s{sJ}, 7
    s_add_u32 s{sT1}, s{sT1}, s{sT2}
    s_add_u32 s{sQG}, s{sT1}, {PC}
    s_add_u32 s{sQ1}, s{sQG}, 16384
    s_add_u32 s{sQ2}, s{sQG}, 32768
    s_add_u32 s{sQ3}, s{sQG}, 49152
    s_waitcnt vmcnt({NYOUNG})""")
tile_reads()
stamp(8)
a(f"""
L_bpoll:
    buffer_load_dwordx4 v[{vG2}:{vG2+3}], v{vBA}, {WS}, s{sBA} offen sc1
    s_waitcnt vmcnt(0)
    v_cmp_ne_u32 vcc, s{sTAG}, v{vG2+3}
    s_cbranch_vccz L_bok
    {"s_sleep %d" % SLB if SLB else ""}""")
spin("L_bpoll")
a("L_bok:")
stamp(9)
a(f"""
    v_max_f32_dpp v{vB}, v{vG2+2}, v{vG2+2} row_ror:8 row_mask:0xf bank_mask:0xf
    v_lshlrev_b32 v{vB+2}, 16, v{vG2}
    v_and_b32 v{vB+3}, 0xffff0000, v{vG2}
    v_max_f32_dpp v{vB}, v{vB}, v{vB} row_ror:4 row_mask:0xf bank_mask:0xf
    v_lshlrev_b32 v{vB+4}, 16, v{vG2+1}
    v_and_b32 v{vB+5}, 0xffff0000, v{vG2+1}
    v_max_f32_dpp v{vB}, v{vB}, v{vB} row_ror:2 row_mask:0xf bank_mask:0xf""")
allreduce([vB], "v_max_f32", [vB+1], steps=())
a(f"""
    v_sub_f32 v{vB}, v{vG2+2}, v{vB}
    v_exp_f32 v{vB}, v{vB}
    v_mul_f32 v{vB+2}, v{vB+2}, v{vB}
    v_mul_f32 v{vB+3}, v{vB+3}, v{vB}
    v_mul_f32 v{vB+4}, v{vB+4}, v{vB}
    v_mul_f32 v{vB+5}, v{vB+5}, v{vB}
    v_mov_b32 v{vB+1}, v{vB}
    v_permlane32_swap_b32 v{vB+2}, v{vB+3}
    v_permlane32_swap_b32 v{vB+4}, v{vB+5}
    v_permlane32_swap_b32 v{vB}, v{vB+1}
    v_add_f32 v{vB+2}, v{vB+2}, v{vB+3}
    v_add_f32 v{vB+4}, v{vB+4}, v{vB+5}
    v_add_f32 v{vB}, v{vB}, v{vB+1}
    v_mov_b32 v{vB+1}, v{vB}
    v_permlane16_swap_b32 v{vB+2}, v{vB+4}
    v_permlane16_swap_b32 v{vB}, v{vB+1}
    v_add_f32 v{vB+2}, v{vB+2}, v{vB+4}
    v_add_f32 v{vB}, v{vB}, v{vB+1}""")
for st in (8, 4, 2):
    a(f"v_add_f32_dpp v{vB+2}, v{vB+2}, v{vB+2} row_ror:{st} row_mask:0xf bank_mask:0xf")
    a(f"v_add_f32_dpp v{vB}, v{vB}, v{vB} row_ror:{st} row_mask:0xf bank_mask:0xf")
a(f"""
    v_rcp_f32 v{vB}, v{vB}
    v_mul_f32 v{vB+2}, v{vB+2}, v{vB}
    v_cvt_pk_bf16_f32 v{vB+2}, v{vB+2}, v{vB+2}""")
setexec(0x0003000300030003)
a(f"ds_write_b16 v{vB+6}, v{vB+2}")
setexec(-1)
a(f"s_waitcnt lgkmcnt(0)\ns_barrier\nds_read_b128 v[{vR4}:{vR4+3}], v{vB+7}\ns_waitcnt lgkmcnt(0)")
for e in range(8): mfma(vO + 4 * e, vR4, vVF + 4 * e, None)
a(f"""
    v_cndmask_b32 v{vU}, v{vO}, v{vO+16}, s[{sM1}:{sM1+1}]
    v_cndmask_b32 v{vU+1}, v{vO+4}, v{vO+20}, s[{sM1}:{sM1+1}]
    v_cndmask_b32 v{vU+2}, v{vO+8}, v{vO+24}, s[{sM1}:{sM1+1}]
    v_cndmask_b32 v{vU+3}, v{vO+12}, v{vO+28}, s[{sM1}:{sM1+1}]
    v_cvt_pk_bf16_f32 v{vGR}, v{vU}, v{vU+1}
    v_cvt_pk_bf16_f32 v{vGR+1}, v{vU+2}, v{vU+3}""")
setexec(0xffffffff)
a(f"buffer_store_dwordx4 v[{vGR}:{vGR+3}], v{vGA}, {WS}, s{sQS} offen sc1")
setexec(-1)
stamp(10)
vD = vU; vAcc = vD + 16; CA, CB = vKF, vKF + 16
def c_issue(R):
    for k, so in enumerate((sQG, sQ1, sQ2, sQ3)):
        a(f"buffer_load_dwordx4 v[{R+4*k}:{R+4*k+3}], v{vCA}, {WS}, s{so} offen sc1")
def c_process(R):
    for i in range(4):
        for c, (dw, se) in enumerate(((0, sE0), (0, sE1), (1, sE0), (1, sE1))):
            a(f"v_dot2_f32_bf16 v{vAcc+c}, v{R+4*i+dw}, s{se}, {'0' if i == 0 else 'v%d' % (vAcc+c)}")
    tagcheck(R, 4, vD + 20)
    a("s_cbranch_vccz L_cok")
if DLC: a(f"s_sleep {DLC}")
if CPIPE:
    c_issue(CA)
    if STGC: a(f"s_sleep {STGC}")
    c_issue(CB)
    a("L_cpoll:\ns_waitcnt vmcnt(4)")
    c_process(CA); c_issue(CA)
    a("s_waitcnt vmcnt(4)")
    c_process(CB); c_issue(CB)
    spin("L_cpoll")
else:
    a("L_cpoll:")
    c_issue(CA)
    a("s_waitcnt vmcnt(0)")
    c_process(CA)
    spin("L_cpoll")
a("L_cok:")
stamp(11)
a(f"""
    v_permlane32_swap_b32 v{vAcc}, v{vAcc+1}
    v_permlane32_swap_b32 v{vAcc+2}, v{vAcc+3}
    v_add_f32 v{vAcc}, v{vAcc}, v{vAcc+1}
    v_add_f32 v{vAcc+2}, v{vAcc+2}, v{vAcc+3}
    v_permlane16_swap_b32 v{vAcc}, v{vAcc+2}
    v_add_f32 v{vAcc}, v{vAcc}, v{vAcc+2}
    v_add_f32_dpp v{vAcc}, v{vAcc}, v{vAcc} row_ror:8 row_mask:0xf bank_mask:0xf""")
setexec(0x00ff00ff00ff00ff)
a(f"ds_write_b32 v{vCW}, v{vAcc}")
setexec(-1)
a(f"""
    v_lshlrev_b32 v{vXC}, 16, v{vXC}
    s_lshl_b32 s{sT0}, s{sG}, 11
    s_lshl_b32 s{sT1}, s{sBASE}, 2
    s_add_u32 s{sT0}, s{sT0}, s{sT1}
    s_add_u32 s{sT0}, s{sT0}, {PH}
    v_lshrrev_b32 v{vD+6}, 3, v{vLane}
    v_lshlrev_b32 v{vD+6}, 6, v{vD+6}
    v_bfe_u32 v{vD+5}, v{vLane}, 1, 2
    v_lshl_or_b32 v{vD+6}, v{vD+5}, 3, v{vD+6}
    v_mov_b32 v{vD+5}, s{sTAG}
    v_and_b32 v{vD+7}, 31, v{vLane}
    v_lshlrev_b32 v{vD+7}, 2, v{vD+7}
    v_add_u32 v{vD+7}, {HL}, v{vD+7}
    s_waitcnt lgkmcnt(0)
    s_barrier
    s_cmp_lg_u32 s{sW}, 0
    s_cbranch_scc1 L_fin
    ds_read_b128 v[{vD}:{vD+3}], v{vCR}
    s_waitcnt lgkmcnt(0)
    v_add_f32 v{vD}, v{vD}, v{vD+1}
    v_add_f32 v{vD+2}, v{vD+2}, v{vD+3}
    v_add_f32 v{vD}, v{vD}, v{vD+2}""")
round_bf16(vD)
a(f"v_add_f32 v{vH}, v{vXC}, v{vD}")
round_bf16(vH)
a(f"""
    v_mov_b32_dpp v{vD+1}, v{vH} quad_perm:[1,1,3,3] row_mask:0xf bank_mask:0xf
    ds_write_b32 v{vD+7}, v{vH}
    v_perm_b32 v{vD+4}, v{vD+1}, v{vH}, s{sSEL1}""")
setexec(0x55555555)
local_store(f"buffer_store_dwordx2 v[{vD+4}:{vD+5}], v{vD+6}, {WS}, s{sT0} offen")
setexec(-1)
stamp(12)
vEA = vCA
a(f"""
    v_lshrrev_b32 v{vEA}, 1, v{vLane}
    v_lshlrev_b32 v{vEA}, 12, v{vEA}
    v_lshl_or_b32 v{vEA}, v{vPI}, 4, v{vEA}
    s_lshr_b32 s{sT2}, s{sJ}, 1
    s_lshl_b32 s{sT2}, s{sT2}, 5
    s_and_b32 s{sT3}, s{sG}, 1
    s_lshl_b32 s{sT0}, s{sT3}, 4
    s_add_u32 s{sT2}, s{sT2}, s{sT0}
    s_and_b32 s{sT0}, s{sJ}, 1
    s_lshl_b32 s{sT0}, s{sT0}, 3
    s_add_u32 s{sT2}, s{sT2}, s{sT0}
    s_and_b32 s{sT0}, s{sG}, 6
    s_add_u32 s{sT2}, s{sT2}, s{sT0}
    s_lshl_b32 s{sT2}, s{sT2}, 4
    s_add_u32 s{sQG}, s{sT2}, {PE}
    s_add_u32 s{sQ1}, s{sQG}, 131072
    v_lshrrev_b32 v{vt0}, 5, v{vLane}
    s_lshl_b32 s{sT3}, s{sT3}, 1
    v_add_u32 v{vt0}, s{sT3}, v{vt0}
    v_add_u32 v{vt2}, s{sT0}, v{vPI}
    v_lshl_add_u32 v{vt1}, v{vt0}, 3, v{vt2}
    v_lshlrev_b32 v{vt1}, 2, v{vt1}
    v_add_u32 v{vt1}, {HL}, v{vt1}
    v_lshl_add_u32 v{vt0}, v{vt0}, 4, v{vt2}
    v_lshlrev_b32 v{vt0}, 1, v{vt0}
    s_lshl_b32 s{sT2}, s{sBASE}, 1
    s_mov_b32 s{SV}, s{pOUT}
    s_mov_b32 s{SV+1}, s{pOUT+1}
    s_mov_b32 s{SV+2}, 1024
    s_waitcnt lgkmcnt(0)
    ds_read_b32 v{vH}, v{vt1}""")
EA, EB = vVF, vVF + 8
for R in (EA, EB):
    a(f"v_mov_b32 v{R+4}, 0\nv_mov_b32 v{R+5}, 0\nv_mov_b32 v{R+6}, s{sTAG}\nv_mov_b32 v{R+7}, s{sTAGB}")
def e_issue(R):
    a(f"buffer_load_dwordx4 v[{R}:{R+3}], v{vEA}, {WS}, s{sQG} offen sc1")
    setexec(0xffffffffffff)
    a(f"buffer_load_dwordx4 v[{R+4}:{R+7}], v{vEA}, {WS}, s{sQ1} offen sc1")
    setexec(-1)
def e_process(R):
    a(f"""
    v_xor_b32 v{vD+4}, s{sTAG}, v{R+2}
    v_xor_b32 v{vD+5}, s{sTAGB}, v{R+3}
    v_xor_b32 v{vD+6}, s{sTAG}, v{R+6}
    v_xor_b32 v{vD+7}, s{sTAGB}, v{R+7}
    v_add_f32 v{vD}, v{R}, v{R+4}
    v_or3_b32 v{vD+4}, v{vD+4}, v{vD+5}, v{vD+6}
    v_add_f32 v{vD+1}, v{R+1}, v{R+5}
    v_or_b32 v{vD+4}, v{vD+4}, v{vD+7}
    v_cmp_ne_u32 vcc, 0, v{vD+4}
    s_cbranch_vccz L_eok""")
if DLE: a(f"s_sleep {DLE}")
if EFLAG:
    a(f"""
    s_lshl_b32 s{sT0}, s{sG}, 7
    s_add_u32 s{sT0}, s{sT0}, {PF}
    v_lshlrev_b32 v{vt2}, 2, v{vLane}
    s_mov_b32 exec_lo, 0xfffffff
    s_mov_b32 exec_hi, 0
L_fpoll:
    buffer_load_dword v{vD+8}, v{vt2}, {WS}, s{sT0} offen sc1
    s_waitcnt vmcnt(0)
    v_cmp_ne_u32 vcc, s{sTAG}, v{vD+8}
    s_cbranch_vccz L_fok
    s_sleep 1""")
    spin("L_fpoll")
    a("L_fok:\ns_mov_b64 exec, -1")
    if DLE2: a(f"s_sleep {DLE2}")
if EPIPE:
    e_issue(EA)
    if STGE: a(f"s_sleep {STGE}")
    e_issue(EB)
    a("L_epoll:\ns_waitcnt vmcnt(2)")
    e_process(EA)
    if SLE: a(f"s_sleep {SLE}")
    e_issue(EA)
    a("s_waitcnt vmcnt(2)")
    e_process(EB)
    if SLE: a(f"s_sleep {SLE}")
    e_issue(EB)
    spin("L_epoll")
else:
    a("L_epoll:")
    e_issue(EA)
    a("s_waitcnt vmcnt(0)")
    e_process(EA)
    if SLE: a(f"s_sleep {SLE}")
    spin("L_epoll")
a("L_eok:")
stamp(13)
a(f"""
    v_permlane32_swap_b32 v{vD}, v{vD+1}
    v_add_f32 v{vD}, v{vD}, v{vD+1}
    v_mov_b32 v{vD+2}, v{vD}
    v_permlane16_swap_b32 v{vD}, v{vD+2}
    v_add_f32 v{vD}, v{vD}, v{vD+2}""")
for st in (8, 4, 2): a(f"v_add_f32_dpp v{vD}, v{vD}, v{vD} row_ror:{st} row_mask:0xf bank_mask:0xf")
round_bf16(vD)
a(f"""
    s_waitcnt lgkmcnt(0)
    v_add_f32 v{vD}, v{vH}, v{vD}
    v_cvt_pk_bf16_f32 v{vD}, v{vD}, v{vD}""")
setexec(0x0000000300000003)
a(f"""
    buffer_store_short v{vD}, v{vt0}, s[{SV}:{SV+3}], s{sT2} offen
    s_cmp_lg_u32 s2, 0
    s_cbranch_scc1 L_w0done
    s_mov_b64 exec, 1
    v_mov_b32 v{vD+3}, s{sTAG}
    v_mov_b32 v{vD+4}, 0
    buffer_store_dword v{vD+3}, v{vD+4}, {WS}, 0 offen sc1
L_w0done:
    s_mov_b64 exec, -1""")
stamp(14)
a("s_branch L_fin")
if FALIGN: a(".p2align 12")
if WARM: a("L_warm1:\ns_branch L_warm1_ret")
a("L_ftail:")
vTR = 242; vQPW2 = 244; vXA2 = 240; vCSUM = 246
vXR0, vHS = 11, 12
a(f"s_cmp_ge_u32 s{sJ}, 23\ns_cbranch_scc1 L_idle")
a(f"""
    s_mov_b32 s{SK}, s{pW1}
    s_mov_b32 s{SK+1}, s{pW1+1}
    s_mov_b32 s{SK+2}, 1835008
    s_lshl_b32 s{sT0}, s{sF}, 6
    s_mul_i32 s{sT1}, s{sW}, {128*3584}
    s_add_u32 s{sT0}, s{sT0}, s{sT1}
    s_lshl_b32 s{sT1}, s{sW}, 13
    s_add_u32 s{sT1}, s{sT1}, {WL}
    s_mov_b32 m0, s{sT1}""")
for i in range(8):
    if i == 4: a(f"s_add_u32 s{sT1}, s{sT1}, 4096\ns_mov_b32 m0, s{sT1}")
    a(f"buffer_load_dwordx4 v{vW1c}, s[{SK}:{SK+3}], s{sT0} offen offset:{(i % 4) * 1024} {NT} lds")
    if i < 7: a(f"s_add_u32 s{sT0}, s{sT0}, {16 * 3584 - (1024 if i % 4 != 3 else -3072)}")
if FW2:
    a(f"""
    s_mov_b32 s{SROW+2}, 1835008
    s_lshl_b32 s{sRO}, s{sF}, 15
    s_lshl_b32 s{sT0}, s{sW}, 8
    s_add_u32 s{sRO}, s{sRO}, s{sT0}
    s_lshl_b32 s{sLM}, s{sW}, 13""")
    for i in range(8): row_load(i)
tile_addrs()
if not FW2:
    a(f"s_waitcnt vmcnt({NYOUNG + 8})")
    tile_reads()
vHG = vU; vGR = vU + 36; vAX = vQ; vCS = vO; vAC = vS0
a(f"""
    s_lshl_b32 s{sT0}, s{sW}, 13
    s_add_u32 s{sT0}, s{sT0}, {WL}
    v_lshrrev_b32 v{vt0}, 2, v{vN}
    v_lshl_or_b32 v{vt0}, v{vS}, 2, v{vt0}
    v_lshlrev_b32 v{vt0}, 6, v{vt0}
    v_and_b32 v{vt1}, 1, v{vS}
    v_lshl_or_b32 v{vt0}, v{vt1}, 5, v{vt0}
    v_and_b32 v{vt1}, 3, v{vN}
    v_lshl_or_b32 v{vt0}, v{vt1}, 3, v{vt0}
    v_add_u32 v{vTR}, s{sT0}, v{vt0}
    v_xor_b32 v{vTR+1}, 32, v{vTR}
    v_lshl_or_b32 v{vt0}, v{vS}, 4, v{vN}
    v_lshlrev_b32 v{vt0}, 4, v{vt0}
    s_lshl_b32 s{sT0}, s{sW}, 2
    s_add_u32 s{sT0}, s{sT0}, {QP}
    v_add_u32 v{vQPW2}, s{sT0}, v{vt0}
    v_lshrrev_b32 v{vt0}, 2, v{vLane}
    v_lshlrev_b32 v{vt0}, 6, v{vt0}
    v_and_b32 v{vt1}, 1, v{vLane}
    v_lshl_or_b32 v{vt0}, v{vt1}, 5, v{vt0}
    v_bfe_u32 v{vt1}, v{vLane}, 1, 1
    v_lshl_or_b32 v{vt0}, v{vt1}, 3, v{vt0}
    v_add_u32 v{vXA2}, {XN}, v{vt0}
    s_lshl_b32 s{sT0}, s{sW}, 8
    s_add_u32 s{sT0}, s{sT0}, {XN}
    v_lshl_add_u32 v{vXR0}, v{vS}, 4, s{sT0}
    v_lshlrev_b32 v{vHS}, 4, v{vLane}
    v_add_u32 v{vHS}, {XN}, v{vHS}
    v_and_b32 v{vU+15}, 31, v{vLane}
    v_lshlrev_b32 v{vU+16}, 4, v{vU+15}
    v_add_u32 v{vU+16}, {QP}, v{vU+16}
    s_lshl_b32 s{sT0}, s{sW}, 6
    s_add_u32 s{sT0}, s{sT0}, {AL}
    v_bfe_u32 v{vU+17}, v{vU+15}, 2, 2
    v_lshlrev_b32 v{vU+17}, 4, v{vU+17}
    v_lshrrev_b32 v{vU+19}, 4, v{vU+15}
    v_lshl_or_b32 v{vU+17}, v{vU+19}, 3, v{vU+17}
    v_and_b32 v{vU+19}, 3, v{vU+15}
    v_lshl_or_b32 v{vU+17}, v{vU+19}, 1, v{vU+17}
    v_add_u32 v{vU+17}, s{sT0}, v{vU+17}
    v_lshl_add_u32 v{vU+18}, v{vS}, 4, s{sT0}
    s_lshl_b32 s{sQS}, s{sF}, 12
    s_add_u32 s{sQS}, s{sQS}, {PE}
    v_lshlrev_b32 v{vGA}, 4, v{vN}
    v_lshl_or_b32 v{vGA}, v{vS}, 8, v{vGA}
    s_lshl_b32 s{sT1}, s{sW}, 10
    s_add_u32 s{sQS}, s{sQS}, s{sT1}
    v_mov_b32 v{vGR+2}, s{sTAG}
    v_mov_b32 v{vGR+3}, s{sTAGB}
    s_waitcnt vmcnt({8 if FW2 else 0})""")
for cb in range(2):
    for k in range(4):
        r = vKF + (cb * 4 + k) * 4
        a(f"ds_read_b64_tr_b16 v[{r}:{r+1}], v{vTR+cb} offset:{k*2048}\nds_read_b64_tr_b16 v[{r+2}:{r+3}], v{vTR+cb} offset:{k*2048+1024}")
a("s_waitcnt lgkmcnt(0)")
for k in range(4):
    for cb in range(2): mfma(vCS + 4 * cb, vONE, vKF + (cb * 4 + k) * 4, None if k == 0 else vCS + 4 * cb)
a(f"v_cndmask_b32 v{vCSUM}, v{vCS}, v{vCS+4}, s[{sM1}:{sM1+1}]")
if FW2:
    a("s_waitcnt vmcnt(0)")
    tile_reads()
stamp(8)
a(f"""
    s_cmp_lg_u32 s{sW}, 0
    s_cbranch_scc1 L_hwait
L_hpoll:
    buffer_load_dwordx4 v[{vHG}:{vHG+3}], v{vBA}, {WS}, s{sBA} offen sc1
    buffer_load_dwordx4 v[{vHG+4}:{vHG+7}], v{vBA}, {WS}, s{sBA} offen offset:16 sc1
    s_waitcnt vmcnt(0)
    v_xor_b32 v{vHG+8}, s{sTAG}, v{vHG+1}
    v_xor_b32 v{vHG+9}, s{sTAG}, v{vHG+3}
    v_xor_b32 v{vHG+10}, s{sTAG}, v{vHG+5}
    v_xor_b32 v{vHG+11}, s{sTAG}, v{vHG+7}
    ds_write2_b32 v{vXA2}, v{vHG}, v{vHG+2} offset0:0 offset1:1
    v_or3_b32 v{vHG+8}, v{vHG+8}, v{vHG+9}, v{vHG+10}
    ds_write2_b32 v{vXA2}, v{vHG+4}, v{vHG+6} offset0:4 offset1:5
    v_or_b32 v{vHG+8}, v{vHG+8}, v{vHG+11}
    v_cmp_ne_u32 vcc, 0, v{vHG+8}
    s_cbranch_vccz L_hok
    {"s_sleep %d" % SLH if SLH else ""}""")
spin("L_hpoll")
vS1, vS2 = vU + 12, vU + 13
a("L_hok:\ns_waitcnt lgkmcnt(0)\nL_hwait:\ns_barrier")
stamp(9)
a(f"ds_read_b128 v[{vHG}:{vHG+3}], v{vHS}")
for k in range(4): a(f"ds_read_b128 v[{vAX+4*k}:{vAX+4*k+3}], v{vXR0} offset:{k*64}")
a(f"v_mov_b32 v{vS1}, 0\nv_mov_b32 v{vS2}, 0\ns_waitcnt lgkmcnt(4)")
for i in range(4):
    a(f"v_dot2_f32_bf16 v{vS1}, v{vHG+i}, v{vONE}, v{vS1}\nv_dot2_f32_bf16 v{vS2}, v{vHG+i}, v{vHG+i}, v{vS2}")
a("s_waitcnt lgkmcnt(0)")
for k in range(4):
    for cb in range(2): mfma(vAC + 4 * cb, vAX + 4 * k, vKF + (cb * 4 + k) * 4, None if k == 0 else vAC + 4 * cb)
allreduce([vS1, vS2], "v_add_f32", [vU + 14, vU + 19])
a(f"""
    v_mul_f32 v{vS1}, 0x3b000000, v{vS1}
    v_mul_f32 v{vS2}, 0x3b000000, v{vS2}
    v_fma_f32 v{vS2}, -v{vS1}, v{vS1}, v{vS2}
    v_max_f32 v{vS2}, 0, v{vS2}""")
round_bf16(vS1); round_bf16(vS2)
a(f"""
    v_add_f32 v{vS2}, 0x3727c5ac, v{vS2}
    v_cndmask_b32 v{vU+14}, v{vAC}, v{vAC+4}, s[{sM1}:{sM1+1}]
    v_fma_f32 v{vU+14}, -v{vS1}, v{vCSUM}, v{vU+14}""")
setexec(0xffffffff)
a(f"ds_write_b32 v{vQPW2}, v{vU+14}")
setexec(-1)
round_bf16(vS2)
a(f"v_sqrt_f32 v{vS2}, v{vS2}")
round_bf16(vS2)
a(f"""
    v_rcp_f32 v{vS2}, v{vS2}
    s_waitcnt lgkmcnt(0)
    s_barrier
    ds_read_b128 v[{vU+20}:{vU+23}], v{vU+16}
    s_waitcnt lgkmcnt(0)
    v_add_f32 v{vU+20}, v{vU+20}, v{vU+21}
    v_add_f32 v{vU+22}, v{vU+22}, v{vU+23}
    v_add_f32 v{vU+20}, v{vU+20}, v{vU+22}
    v_mul_f32 v{vU+20}, v{vU+20}, v{vS2}""")
round_bf16(vU + 20)
a(f"""
    v_mul_f32 v{vU+21}, 0xbfb8aa3b, v{vU+20}
    v_exp_f32 v{vU+21}, v{vU+21}
    v_add_f32 v{vU+21}, 1.0, v{vU+21}
    v_rcp_f32 v{vU+21}, v{vU+21}
    v_mul_f32 v{vU+20}, v{vU+20}, v{vU+21}
    v_cvt_pk_bf16_f32 v{vU+20}, v{vU+20}, v{vU+20}
    ds_write_b16 v{vU+17}, v{vU+20}
    s_waitcnt lgkmcnt(0)
    ds_read_b128 v[{vR4}:{vR4+3}], v{vU+18}
    s_waitcnt lgkmcnt(0)""")
for e in range(8): mfma(vO + 4 * e, vR4, vVF + 4 * e, None)
a(f"""
    v_cndmask_b32 v{vGR}, v{vO}, v{vO+8}, s[{sM1}:{sM1+1}]
    v_cndmask_b32 v{vGR+1}, v{vO+4}, v{vO+12}, s[{sM1}:{sM1+1}]
    v_cndmask_b32 v{vGR}, v{vGR}, v{vO+16}, s[{sM2}:{sM2+1}]
    v_cndmask_b32 v{vGR+1}, v{vGR+1}, v{vO+20}, s[{sM2}:{sM2+1}]
    v_cndmask_b32 v{vGR}, v{vGR}, v{vO+24}, s[{sM3}:{sM3+1}]
    v_cndmask_b32 v{vGR+1}, v{vGR+1}, v{vO+28}, s[{sM3}:{sM3+1}]
    buffer_store_dwordx4 v[{vGR}:{vGR+3}], v{vGA}, {WS}, s{sQS} offen sc1""")
if EFLAG:
    a(f"""
    s_sub_u32 s{sT0}, s{sJ}, 16
    s_lshl_b32 s{sT0}, s{sT0}, 2
    s_add_u32 s{sT0}, s{sT0}, s{sW}
    s_lshl_b32 s{sT0}, s{sT0}, 2
    s_lshl_b32 s{sT1}, s{sG}, 7
    s_add_u32 s{sT0}, s{sT0}, s{sT1}
    s_add_u32 s{sT0}, s{sT0}, {PF}
    v_mov_b32 v{vt0}, 0
    s_mov_b64 exec, 1""")
    local_store(f"buffer_store_dword v{vGR+2}, v{vt0}, {WS}, s{sT0} offen")
    a("s_mov_b64 exec, -1")
stamp(10)
a("s_branch L_fin")
a("L_idle:")
if PTH:
    a(f"""
    s_sub_u32 s{sT0}, s{sJ}, 23
    s_lshl_b32 s{sT0}, s{sT0}, 2
    s_add_u32 s{sT0}, s{sT0}, s{sW}
    v_lshlrev_b32 v{vTMP}, 7, v{vLane}
    s_lshl_b32 s{sT1}, s{sT0}, 13
    s_add_u32 s{sT2}, s{sT1}, {PC}
    s_add_u32 s{sT3}, s{sT1}, {PE}
    s_cmp_ge_u32 s{sT0}, 32
    s_cbranch_scc1 L_fin
    buffer_load_dword v{vPT}, v{vTMP}, {WS}, s{sT2} offen sc1
    s_cmp_ge_u32 s{sT0}, 28
    s_cbranch_scc1 L_fin
    buffer_load_dword v{vPT}, v{vTMP}, {WS}, s{sT3} offen sc1""")
a("L_fin:")
if STAMPS:
    a(f"""
    s_waitcnt lgkmcnt(0)
    s_mov_b64 exec, 1
    s_lshl_b32 s{sT0}, s2, 2
    s_add_u32 s{sT0}, s{sT0}, s{sW}
    s_mul_i32 s{sT0}, s{sT0}, 128
    s_add_u32 s{sT0}, s{sT0}, {STAMP}
    v_mov_b32 v6, 0""")
    for i in range(16):
        if i < NST:
            a(f"v_mov_b32 v4, s{sST+2*i}\nv_mov_b32 v5, s{sST+2*i+1}")
        else:
            a("v_mov_b32 v4, 0\nv_mov_b32 v5, 0")
        a(f"buffer_store_dwordx2 v[4:5], v6, {WS}, s{sT0} offen offset:{i*8}")
a("L_end:\ns_endpgm")
body = a.text()
if STAMPS:
    zi = "".join(f"s_mov_b32 s{sST+i}, 0\n" for i in range(16, 2 * NST))
    body = body.replace("@@ZI@@", zi)
body, n = fix(body)
print(wrap(body, 256, 256, LDS_SIZE, NVGPR, 102, pad=(PAD if PAD >= 0 else None)))
print(f"; inserted {n} nops", file=sys.stderr)
```

```python
import sys
from asmgen import *
from hazard import fix

STAMPS = "--stamps" in sys.argv
def opt(name, default):
    for x in sys.argv:
        if x.startswith(f"--{name}="):
            return type(default)(x.split("=", 1)[1])
    return default
NT = opt("nt", "nt")
SLQ = opt("slq", 1); SLB = opt("slb", 0); SLH = opt("slh", 1); SLE = opt("sle", 0)
DLC = opt("dlc", 10); STGC = opt("stgc", 5); STGE = opt("stge", 3); FORCEG = opt("forceg", 0)
KDELAY = opt("kdelay", 1)
EARLYG = opt("earlyg", 0)
ROWPOS = opt("rowpos", "early")
DLE = opt("dle", 0)
EPIPE = opt("epipe", 1)
CPIPE = opt("cpipe", 1)
FW2 = opt("fw2", 0)
EFLAG = opt("eflag", 1)
DLE2 = opt("dle2", 1)
ROWPRE = opt("rowpre", 0)
VORD = opt("vord", 0)
PAD = opt("pad", 3328)
WARM = opt("warm", 1)
FALIGN = opt("falign", 1)
OPT1 = opt("opt1", 1)
DUALQ = opt("dualq", 1)
PTH = opt("pth", 0)
SPINMAX = 0x40000

PH = 0x1000; PF = 0x6000; QP_G = 0x40000; QTOG = 0x20000; PB = 0x80000; PC = 0x100000; PE = 0x140000; STAMP = 0x8000000
KL = 0x0; WL = 0x8000; XN = 0x10000; OL = 0x11000; ML = 0x13400; QP = 0x13480; OB = 0x13900; AL = 0x13980
QL = 0x13B00; MF = 0x13F40; HL = 0x13F80; LDS_SIZE = 86016
sG, sJ, sW, sSPIN, sRO = 3, 4, 5, 6, 7
SX, SK, SV, SROW, SWS = 8, 12, 16, 20, 24
pWO, pW2, pW1, pOUT = 28, 30, 32, 34
sSTA, sSTB, sLM, sXO, sQS, sX2 = 36, 37, 38, 39, 40, 41
sKV, sKV1, sTAG, sTAGB = 44, 45, 46, 47
sT0, sT1, sT2, sT3 = 48, 49, 50, 51
sM1, sM2, sM3 = 52, 54, 56
sLOG2E, sSCALE = 58, 60
sQG, sBP, sSEL0, sSEL1, sF, sTBX, sMODE, sBA = 62, 63, 64, 65, 66, 67, 68, 69
sQ1, sQ2, sQ3 = 42, 43, 2 + 0
sST = 70; NST = 15
sQ3 = 100
vLane, vN, vS = 1, 2, 3
vKD = 4
vVA, vQA = 8, 9
vT = 10
vOW, vMW, vORD, vQW, vQR, vMR, vBP = 10, 11, 12, 16, 17, 18, 19
vKR = 20
vW1, vW1b, vBA, vMFW, vXCA = 24, 25, 26, 27, 28
vTMP = 29
vKF = 32; vVR = 64; vVF = 96; vQ = 128; vQ2 = 144; vO = 160; vS0 = 192; vU = 200
vXA, vXR, vTQ = 240, 241, 242
vW1c = 247; vXC, vEP, vH, vPT = 248, 249, 250, 251; vONE = 252
NVGPR = 256

a = Asm()
def stamp(i):
    if STAMPS: a(f"s_memrealtime s[{sST+2*i}:{sST+2*i+1}]")
def setexec(mask):
    if mask == -1: a("s_mov_b64 exec, -1"); return
    if mask <= 64: a(f"s_mov_b64 exec, {mask}"); return
    a(f"s_mov_b32 exec_lo, {hex(mask & 0xffffffff)}\ns_mov_b32 exec_hi, {hex(mask >> 32)}")
def spin(loop):
    a(f"s_add_u32 s{sSPIN}, s{sSPIN}, 1\ns_cmp_lt_u32 s{sSPIN}, {SPINMAX}\ns_cbranch_scc1 {loop}\ns_branch L_fin")
def unpack8(src, dst):
    for i in range(4):
        a(f"v_lshlrev_b32 v{dst+2*i}, 16, v{src+i}\nv_and_b32 v{dst+2*i+1}, 0xffff0000, v{src+i}")
def round_bf16(r):
    a(f"v_cvt_pk_bf16_f32 v{r}, v{r}, v{r}\nv_lshlrev_b32 v{r}, 16, v{r}")
def allreduce(regs, op, tmps, steps=(8, 4, 2, 1)):
    for st in steps:
        for r in regs: a(f"{op}_dpp v{r}, v{r}, v{r} row_ror:{st} row_mask:0xf bank_mask:0xf")
    for sw in ("v_permlane16_swap_b32", "v_permlane32_swap_b32"):
        for r, t in zip(regs, tmps): a(f"v_mov_b32 v{t}, v{r}")
        for r, t in zip(regs, tmps): a(f"{sw} v{r}, v{t}")
        for r, t in zip(regs, tmps): a(f"{op} v{r}, v{r}, v{t}")
def perms(raw, frag, b):
    for e in range(8):
        sel = sSEL1 if e & 1 else sSEL0
        for h in range(2):
            r0 = raw + (b * 4 + 2 * h) * 4 + (e >> 1); r1 = raw + (b * 4 + 2 * h + 1) * 4 + (e >> 1)
            a(f"v_perm_b32 v{frag + e*4 + 2*b + h}, v{r1}, v{r0}, s{sel}")
def mfma(d, A, B, c):
    cs = "0" if c is None else f"v[{c}:{c+3}]"
    a(f"v_mfma_f32_16x16x32_bf16 v[{d}:{d+3}], v[{A}:{A+3}], v[{B}:{B+3}], {cs}")
_ls = [0]
def local_store(text):
    _ls[0] += 1; k = _ls[0]
    a(f"s_cmp_lg_u32 s{sMODE}, 0\ns_cbranch_scc1 L_lsg{k}\n{text}\ns_branch L_lsd{k}\nL_lsg{k}:\n{text} sc1\nL_lsd{k}:")
def tagcheck(base, n, acc):
    for i in range(n):
        a(f"v_xor_b32 v{base+4*i+2}, s{sTAG}, v{base+4*i+2}\nv_xor_b32 v{base+4*i+3}, s{sTAGB}, v{base+4*i+3}")
    a(f"v_or_b32 v{acc}, v{base+2}, v{base+3}")
    for i in range(1, n): a(f"v_or3_b32 v{acc}, v{acc}, v{base+4*i+2}, v{base+4*i+3}")
    a(f"v_cmp_ne_u32 vcc, 0, v{acc}")
WS = f"s[{SWS}:{SWS+3}]"

vX = vU; vXF = vU + 4; vA1, vA2, vA3 = vU + 12, vU + 13, vU + 14; vX2 = vU + 16; vPK = vQ2
vWQ = vTMP
vQPW, vQPR, vQPS = vU + 20, vU + 21, vU + 22
vGq = vU + 36

def blk_prologue():
    stamp(0)
    a(f"""
    s_lshr_b32 s{sJ}, s2, 3
    s_load_dwordx2 s[{SROW}:{SROW+1}], s[0:1], 24
    s_load_dwordx2 s[{SX}:{SX+1}], s[0:1], 0
    s_load_dwordx2 s[{SWS}:{SWS+1}], s[0:1], 80
    s_cmp_ge_u32 s{sJ}, 32
    s_cbranch_scc1 L_end
    v_lshrrev_b32 v{vT}, 6, v0
    v_and_b32 v{vLane}, 63, v0
    v_readfirstlane_b32 s{sW}, v{vT}
    v_bfe_u32 v{vS}, v0, 4, 2
    v_and_b32 v{vT+1}, 7, v0
    v_lshlrev_b32 v{vT+2}, 1, v{vS}
    v_xor_b32 v{vT+1}, v{vT+1}, v{vT+2}
    v_lshrrev_b32 v{vT}, 3, v{vLane}
    v_lshlrev_b32 v{vT}, 13, v{vT}
    v_lshl_or_b32 v{vWQ}, v{vT+1}, 4, v{vT}
    s_and_b32 s{sG}, s2, 7
    s_lshl_b32 s{sT1}, s{sG}, 10
    s_and_b32 s{sT2}, s{sJ}, 7
    s_lshl_b32 s{sT2}, s{sT2}, 7
    s_add_u32 s{sT1}, s{sT1}, s{sT2}
    s_lshr_b32 s{sT2}, s{sJ}, 3
    s_lshl_b32 s{sT2}, s{sT2}, 2
    s_add_u32 s{sT2}, s{sT2}, s{sW}
    s_lshl_b32 s{sX2}, s{sT2}, 6
    s_lshl_b32 s{sT2}, s{sT2}, 18
    s_add_u32 s{sT1}, s{sT1}, s{sT2}
    s_lshl_b32 s{sT2}, s{sW}, 12
    s_bitset1_b32 s{sT2}, 15
    s_mov_b32 m0, s{sT2}
    s_lshl_b32 s{SROW+3}, 1, 17
    s_lshl_b32 s{SROW+2}, 1, 22
    s_movk_i32 s{SX+2}, 0x400
    s_mov_b32 s{SX+3}, s{SROW+3}
    s_lshl_b32 s{SWS+2}, 1, 28
    s_mov_b32 s{SWS+3}, s{SROW+3}
    s_mov_b32 s{sT3}, {8 * 8192 - 1024}
    v_lshlrev_b32 v{vT}, 4, v{vLane}
    v_and_b32 v{vN}, 15, v0
    v_lshlrev_b32 v{vT+3}, 2, v{vN}
    s_waitcnt lgkmcnt(0)""")
    a(f"buffer_load_dwordx4 v[{vX}:{vX+3}], v{vT}, s[{SX}:{SX+3}], 0 offen")
    a(f"buffer_load_dword v{vX2}, v{vT+3}, s[{SX}:{SX+3}], s{sX2} offen")
    for i in range(4):
        a(f"buffer_load_dwordx4 v{vWQ}, s[{SROW}:{SROW+3}], s{sT1} offen offset:{i * 1024} {NT} lds")
        if i < 3: a(f"s_add_u32 s{sT1}, s{sT1}, s{sT3}")
    stamp(1)
    a(f"""
    s_load_dwordx2 s[{SK}:{SK+1}], s[0:1], 8
    s_load_dwordx2 s[{SV}:{SV+1}], s[0:1], 16
    buffer_load_dword v{vEP}, off, {WS}, 0 sc1
    s_load_dwordx2 s[{pWO}:{pWO+1}], s[0:1], 32
    s_load_dwordx2 s[{pW1}:{pW1+1}], s[0:1], 48
    s_load_dwordx2 s[{pW2}:{pW2+1}], s[0:1], 56
    s_load_dwordx2 s[{pOUT}:{pOUT+1}], s[0:1], 64""")

def blk_issue_K():
    a(f"""
    s_lshl_b32 s{sKV}, s{sG}, 23
    s_lshl_b32 s{sT0}, s{sJ}, 12
    s_add_u32 s{sKV}, s{sKV}, s{sT0}
    s_lshl_b32 s{sT0}, s{sW}, 18
    s_add_u32 s{sKV}, s{sKV}, s{sT0}
    s_add_u32 s{sKV}, s{sKV}, 7340032
    s_add_u32 s{sKV1}, s{sKV}, 131072
    v_xor_b32 v{vTMP}, v{vN}, v{vS}
    v_lshlrev_b32 v{vTMP}, 4, v{vTMP}
    v_lshl_or_b32 v{vKD}, v{vS}, 8, v{vTMP}
    v_xor_b32 v{vKD+1}, 64, v{vKD}
    v_xor_b32 v{vKD+2}, 128, v{vKD}
    v_xor_b32 v{vKD+3}, 192, v{vKD}
    s_lshl_b32 s{sT0}, s{sW}, 13
    s_mov_b32 m0, s{sT0}
    s_mov_b32 s{SK+2}, 67108864
    s_mov_b32 s{SK+3}, 0x20000
    s_waitcnt lgkmcnt(0)""")
    for i in range(4):
        a(f"buffer_load_dwordx4 v{vKD+i}, s[{SK}:{SK+3}], s{sKV} offen offset:{i*1024} {NT} lds")
    a(f"s_add_u32 s{sT0}, s{sT0}, 4096\ns_mov_b32 m0, s{sT0}")
    for i in range(4):
        a(f"buffer_load_dwordx4 v{vKD+i}, s[{SK}:{SK+3}], s{sKV1} offen offset:{i*1024} {NT} lds")

def blk_pre_q():
    t = vTMP
    a(f"""
    s_mov_b32 s{SV+2}, 67108864
    s_mov_b32 s{SV+3}, 0x20000
    v_lshlrev_b32 v{t}, 4, v{vN}
    v_lshl_or_b32 v{vVA}, v{vS}, 10, v{t}
    s_mov_b32 s{sSPIN}, 0
    s_mov_b32 s{sSEL0}, 0x05040100
    s_mov_b32 s{sSEL1}, 0x07060302
    s_mov_b32 s{sLOG2E}, 0x3fb8aa3b
    s_mov_b32 s{sLOG2E+1}, 0x3fb8aa3b
    s_mov_b32 s{sSCALE}, 0x3db504f3
    s_mov_b32 s{sSCALE+1}, 0x3db504f3
    v_cmp_eq_u32 s[{sM1}:{sM1+1}], 1, v{vS}
    v_cmp_eq_u32 s[{sM2}:{sM2+1}], 2, v{vS}
    v_cmp_eq_u32 s[{sM3}:{sM3+1}], 3, v{vS}
    s_lshl_b32 s{sT0}, s{sW}, 6
    s_add_u32 s{sT0}, s{sT0}, {XN}
    v_bfe_u32 v{t}, v{vN}, 1, 2
    v_lshlrev_b32 v{vXA}, 4, v{t}
    v_lshrrev_b32 v{t}, 3, v{vN}
    v_lshl_or_b32 v{vXA}, v{t}, 3, v{vXA}
    v_and_b32 v{t}, 1, v{vN}
    v_lshl_or_b32 v{vXA}, v{t}, 2, v{vXA}
    v_add_u32 v{vXA}, s{sT0}, v{vXA}
    v_lshl_add_u32 v{vXR}, v{vS}, 4, s{sT0}
    s_lshl_b32 s{sT0}, s{sW}, 12
    s_add_u32 s{sT0}, s{sT0}, {WL}
    v_lshrrev_b32 v{t}, 2, v{vN}
    v_lshl_or_b32 v{t+1}, v{vS}, 2, v{t}
    v_bfe_u32 v{t+2}, v{t+1}, 1, 2
    v_lshlrev_b32 v{t+1}, 7, v{t+1}
    v_lshl_or_b32 v{t+1}, v{t+2}, 5, v{t+1}
    v_and_b32 v{t+2}, 3, v{vN}
    v_lshl_or_b32 v{t+1}, v{t+2}, 3, v{t+1}
    v_add_u32 v{vTQ}, s{sT0}, v{t+1}
    v_xor_b32 v{vTQ+1}, 32, v{vTQ}
    v_xor_b32 v{vTQ+2}, 64, v{vTQ}
    v_xor_b32 v{vTQ+3}, 96, v{vTQ}
    s_lshl_b32 s{sT0}, s{sW}, 2
    s_add_u32 s{sT0}, s{sT0}, {QP}
    v_lshl_add_u32 v{vQPW}, v{vLane}, 4, s{sT0}
    s_lshl_b32 s{sT0}, s{sW}, 8
    s_add_u32 s{sT0}, s{sT0}, {QP}
    v_lshl_add_u32 v{vQPR}, v{vN}, 4, s{sT0}
    s_lshl_b32 s{sQG}, s{sG}, 14
    s_add_u32 s{sQG}, s{sQG}, {QP_G}
    s_lshr_b32 s{sT0}, s{sJ}, 3
    s_lshl_b32 s{sT0}, s{sT0}, 12
    s_and_b32 s{sT1}, s{sJ}, 7
    s_lshl_b32 s{sT1}, s{sT1}, 9
    s_add_u32 s{sT0}, s{sT0}, s{sT1}
    s_lshl_b32 s{sT1}, s{sW}, 7
    s_add_u32 s{sT0}, s{sT0}, s{sT1}
    s_add_u32 s{sQS}, s{sT0}, s{sQG}
    v_lshrrev_b32 v{vQPS}, 1, v{vN}
    v_lshlrev_b32 v{vQPS}, 4, v{vQPS}""")

def blk_pre_att():
    t = vTMP
    a(f"""
    s_lshl_b32 s{sT0}, s{sW}, 13
    v_xor_b32 v{t}, v{vN}, v{vS}
    v_lshlrev_b32 v{t}, 4, v{t}
    v_lshl_or_b32 v{t}, v{vN}, 8, v{t}
    v_add_u32 v{vKR}, s{sT0}, v{t}
    v_xor_b32 v{vKR+1}, 64, v{vKR}
    v_xor_b32 v{vKR+2}, 128, v{vKR}
    v_xor_b32 v{vKR+3}, 192, v{vKR}
    v_mov_b32 v{vONE}, 0x3f803f80
    v_mov_b32 v{vONE+1}, 0x3f803f80
    v_mov_b32 v{vONE+2}, 0x3f803f80
    v_mov_b32 v{vONE+3}, 0x3f803f80
    s_mul_i32 s{sT0}, s{sW}, 272
    s_add_u32 s{sT0}, s{sT0}, {QL}
    v_lshl_add_u32 v{vQW}, v{vLane}, 2, s{sT0}
    v_lshrrev_b32 v{vQR}, 2, v{vN}
    v_mul_u32_u24 v{vQR}, 272, v{vQR}
    v_lshl_add_u32 v{vQR}, v{vS}, 4, v{vQR}
    v_add_u32 v{vQR}, {QL}, v{vQR}
    s_lshl_b32 s{sT0}, s{sW}, 10
    s_add_u32 s{sQG}, s{sQG}, s{sT0}
    {"" if DUALQ else "s_xor_b32 s%d, s%d, %d" % (sQG, sQG, QTOG)}
    s_add_u32 s{sQ1}, s{sQG}, 4096
    s_add_u32 s{sQ2}, s{sQG}, 8192
    s_add_u32 s{sQ3}, s{sQG}, 12288
    v_lshlrev_b32 v{vQA}, 4, v{vLane}
    s_mul_i32 s{sT0}, s{sW}, 2304
    s_add_u32 s{sT0}, s{sT0}, {OL}
    v_mul_u32_u24 v{vOW}, 576, v{vS}
    v_mad_u32_u24 v{vOW}, v{vN}, 36, v{vOW}
    v_add_u32 v{vOW}, s{sT0}, v{vOW}
    s_lshl_b32 s{sT0}, s{sW}, 3
    s_add_u32 s{sT0}, s{sT0}, {ML}
    v_lshlrev_b32 v{vMW}, 5, v{vS}
    v_add_u32 v{vMW}, s{sT0}, v{vMW}
    s_mul_i32 s{sT0}, s{sW}, 576
    s_add_u32 s{sT0}, s{sT0}, {OL}
    v_lshrrev_b32 v{vORD}, 2, v{vLane}
    v_mul_u32_u24 v{vORD}, 36, v{vORD}
    v_and_b32 v{vORD+1}, 3, v{vLane}
    v_lshl_add_u32 v{vORD}, v{vORD+1}, 3, v{vORD}
    v_add_u32 v{vORD}, s{sT0}, v{vORD}
    v_add_u32 v{vORD+1}, 2304, v{vORD}
    v_add_u32 v{vORD+2}, 4608, v{vORD}
    v_add_u32 v{vORD+3}, 6912, v{vORD}
    s_lshl_b32 s{sT0}, s{sW}, 5
    s_add_u32 s{sT0}, s{sT0}, {ML}
    v_mov_b32 v{vMR}, s{sT0}
    s_lshl_b32 s{sT0}, s{sW}, 2
    s_add_u32 s{sT0}, s{sT0}, {MF}
    v_mov_b32 v{vMFW}, s{sT0}
    s_lshl_b32 s{sT0}, s{sG}, 4
    s_lshl_b32 s{sT1}, s{sW}, 2
    s_add_u32 s{sT0}, s{sT0}, s{sT1}
    s_lshl_b32 s{sT0}, s{sT0}, 5
    s_add_u32 s{sT0}, s{sT0}, s{sJ}
    s_lshl_b32 s{sT0}, s{sT0}, 7
    s_add_u32 s{sBP}, s{sT0}, {PB}
    v_lshrrev_b32 v{vBP}, 1, v{vN}
    v_lshlrev_b32 v{vBP}, 4, v{vBP}
    v_lshl_or_b32 v{vBP}, v{vS}, 12, v{vBP}
    v_lshlrev_b32 v{t}, 1, v{vS}
    v_xor_b32 v{t}, v{t}, v{vN}
    v_lshlrev_b32 v{t}, 4, v{t}
    v_lshl_or_b32 v{vW1}, v{vS}, 10, v{t}
    v_xor_b32 v{vW1b}, 128, v{vW1}
    s_mov_b32 s{sSTA}, {4096 - 1024}
    s_mov_b32 s{sSTB}, {4096 + 3072}
    s_lshl_b32 s{sLM}, s{sW}, 13
    s_lshr_b32 s{sXO}, s{sJ}, 1
    s_lshl_b32 s{sXO}, s{sXO}, 7
    s_and_b32 s{sT0}, s{sJ}, 1
    s_lshl_b32 s{sT0}, s{sT0}, 4
    s_add_u32 s{sXO}, s{sXO}, s{sT0}
    v_bfe_u32 v{vXCA}, v{vLane}, 3, 2
    v_lshlrev_b32 v{vXCA}, 5, v{vXCA}
    v_and_b32 v{t}, 7, v{vLane}
    v_lshl_or_b32 v{vXCA}, v{t}, 1, v{vXCA}
    s_cmp_ge_u32 s{sJ}, 16
    s_cbranch_scc1 L_pre_f
    s_lshl_b32 s{sF}, s{sG}, 4
    s_add_u32 s{sF}, s{sF}, s{sJ}
    s_lshl_b32 s{sBA}, s{sF}, 12
    s_add_u32 s{sBA}, s{sBA}, {PB}
    s_lshl_b32 s{sT0}, s{sW}, 5
    s_add_u32 s{sBA}, s{sBA}, s{sT0}
    v_lshrrev_b32 v{vBA}, 1, v{vLane}
    v_lshlrev_b32 v{vBA}, 7, v{vBA}
    v_and_b32 v{t}, 1, v{vLane}
    v_lshl_or_b32 v{vBA}, v{t}, 4, v{vBA}
    v_mov_b32 v{vW1c}, 0
    s_mov_b32 s{sT2}, 4194304
    s_waitcnt lgkmcnt(0)
    s_mov_b32 s{sT0}, s{pWO}
    s_mov_b32 s{sT1}, s{pWO+1}
    s_branch L_pre_d
L_pre_f:
    s_mul_i32 s{sF}, s{sG}, 7
    s_add_u32 s{sF}, s{sF}, s{sJ}
    s_sub_u32 s{sF}, s{sF}, 16
    s_lshl_b32 s{sBA}, s{sG}, 11
    s_add_u32 s{sBA}, s{sBA}, {PH}
    v_lshlrev_b32 v{vBA}, 5, v{vLane}
    v_lshrrev_b32 v{t}, 2, v{vLane}
    v_mul_u32_u24 v{vW1c}, 3584, v{t}
    v_and_b32 v{t}, 3, v{vLane}
    v_lshlrev_b32 v{t+1}, 1, v{vS}
    v_and_b32 v{t+1}, 2, v{t+1}
    v_xor_b32 v{t}, v{t}, v{t+1}
    v_lshl_add_u32 v{vW1c}, v{t}, 4, v{vW1c}
    s_cmp_ge_u32 s{sJ}, {0 if FW2 else 23}
    s_cselect_b32 s{sT2}, 0, 1835008
    s_waitcnt lgkmcnt(0)
    s_mov_b32 s{sT0}, s{pW2}
    s_mov_b32 s{sT1}, s{pW2+1}
L_pre_d:
    s_mov_b32 s{SROW}, s{sT0}
    s_mov_b32 s{SROW+1}, s{sT1}
    s_mov_b32 s{SROW+2}, s{sT2}
    s_lshl_b32 s{sRO}, s{sF}, 15
    s_lshl_b32 s{sT0}, s{sW}, 8
    s_add_u32 s{sRO}, s{sRO}, s{sT0}""")


def tagcalc():
    a(f"""
    v_readfirstlane_b32 s{sTAG}, v{vEP}
    s_getreg_b32 s{sTBX}, hwreg(HW_REG_XCC_ID)
    s_nop 1
    s_add_u32 s{sTAG}, s{sTAG}, 0x9e3779b8
    s_or_b32 s{sTAG}, s{sTAG}, 1
    s_xor_b32 s{sTAGB}, s{sTAG}, 0x5bd1e994
    s_and_b32 s{sTBX}, s{sTBX}, 7
    s_xor_b32 s{sTBX}, s{sTBX}, s{sTAGB}""")

def issue_V(b):
    for jj in range(4):
        r = vVR + (b * 4 + jj) * 4
        a(f"buffer_load_dwordx4 v[{r}:{r+3}], v{vVA}, s[{SV}:{SV+3}], s{sKV1 if b else sKV} offen offset:{jj*256} {NT}")

def blk_ln(extra=0):
    a(f"s_waitcnt vmcnt({14 + extra})")
    unpack8(vX, vXF)
    a(f"""
    v_pk_add_f32 v[{vPK}:{vPK+1}], v[{vXF}:{vXF+1}], v[{vXF+2}:{vXF+3}]
    v_pk_add_f32 v[{vPK+2}:{vPK+3}], v[{vXF+4}:{vXF+5}], v[{vXF+6}:{vXF+7}]
    v_pk_add_f32 v[{vPK}:{vPK+1}], v[{vPK}:{vPK+1}], v[{vPK+2}:{vPK+3}]
    v_add_f32 v{vA1}, v{vPK}, v{vPK+1}""")
    allreduce([vA1], "v_add_f32", [vA2])
    a(f"v_mul_f32 v{vA1}, 0xbb000000, v{vA1}\nv_mov_b32 v{vA2}, v{vA1}")
    for i in range(4):
        a(f"v_pk_add_f32 v[{vPK+2*i}:{vPK+2*i+1}], v[{vXF+2*i}:{vXF+2*i+1}], v[{vA1}:{vA2}]")
    a(f"v_pk_mul_f32 v[{vXF}:{vXF+1}], v[{vPK}:{vPK+1}], v[{vPK}:{vPK+1}]")
    for i in range(1, 4):
        a(f"v_pk_fma_f32 v[{vXF}:{vXF+1}], v[{vPK+2*i}:{vPK+2*i+1}], v[{vPK+2*i}:{vPK+2*i+1}], v[{vXF}:{vXF+1}]")
    a(f"v_add_f32 v{vA2}, v{vXF}, v{vXF+1}\nv_mul_f32 v{vA1}, -1.0, v{vA1}")
    allreduce([vA2], "v_add_f32", [vA3])
    a(f"v_mul_f32 v{vA2}, 0x3b000000, v{vA2}")
    round_bf16(vA1); round_bf16(vA2)
    a(f"v_add_f32 v{vA2}, 0x3727c5ac, v{vA2}")
    round_bf16(vA2)
    a(f"v_sqrt_f32 v{vA2}, v{vA2}")
    round_bf16(vA2)
    a(f"""
    v_rcp_f32 v{vA3}, v{vA2}
    s_waitcnt vmcnt({13 + extra})
    v_lshlrev_b32 v{vXF}, 16, v{vX2}
    v_and_b32 v{vXF+1}, 0xffff0000, v{vX2}
    v_sub_f32 v{vXF}, v{vXF}, v{vA1}
    v_sub_f32 v{vXF+1}, v{vXF+1}, v{vA1}
    v_cvt_pk_bf16_f32 v{vX2}, v{vXF}, v{vXF+1}
    v_lshlrev_b32 v{vXF}, 16, v{vX2}
    v_and_b32 v{vXF+1}, 0xffff0000, v{vX2}
    v_mul_f32 v{vXF+2}, v{vXF}, v{vA3}
    v_mul_f32 v{vXF+3}, v{vXF+1}, v{vA3}
    v_fma_f32 v{vXF}, -v{vXF+2}, v{vA2}, v{vXF}
    v_fma_f32 v{vXF+1}, -v{vXF+3}, v{vA2}, v{vXF+1}
    v_fma_f32 v{vXF}, v{vXF}, v{vA3}, v{vXF+2}
    v_fma_f32 v{vXF+1}, v{vXF+1}, v{vA3}, v{vXF+3}
    v_cvt_pk_bf16_f32 v{vX2}, v{vXF}, v{vXF+1}""")
    setexec(0xffff)
    a(f"ds_write_b32 v{vXA}, v{vX2}")
    setexec(-1)
    a(f"""
    s_waitcnt lgkmcnt(0)
    ds_read_b128 v[{vQ}:{vQ+3}], v{vXR}""")

def blk_qphase(nv=4):
    a(f"s_waitcnt vmcnt({8 + nv})")
    stamp(2)
    for c in range(4):
        r = vKF + c * 4
        a(f"ds_read_b64_tr_b16 v[{r}:{r+1}], v{vTQ+c}\nds_read_b64_tr_b16 v[{r+2}:{r+3}], v{vTQ+c} offset:2048")
    tagcalc()
    a(f"v_mov_b32 v{vGq+2}, s{sTAG}\nv_mov_b32 v{vGq+3}, s{sTBX}")
    a("s_waitcnt lgkmcnt(0)")
    for c in range(4): mfma(vO + 4 * c, vQ, vKF + 4 * c, None)
    t = vU
    a(f"""
    v_cndmask_b32 v{t}, v{vO}, v{vO+4}, s[{sM1}:{sM1+1}]
    v_cndmask_b32 v{t}, v{t}, v{vO+8}, s[{sM2}:{sM2+1}]
    v_cndmask_b32 v{t}, v{t}, v{vO+12}, s[{sM3}:{sM3+1}]
    ds_write_b32 v{vQPW}, v{t}
    s_waitcnt lgkmcnt(0)
    s_barrier
    ds_read_b128 v[{t+4}:{t+7}], v{vQPR}
    s_waitcnt lgkmcnt(0)
    v_pk_add_f32 v[{t+4}:{t+5}], v[{t+4}:{t+5}], v[{t+6}:{t+7}]
    v_add_f32 v{vGq}, v{t+4}, v{t+5}
    v_mov_b32_dpp v{vGq+1}, v{vGq} quad_perm:[1,1,3,3] row_mask:0xf bank_mask:0xf""")
    setexec(0x5555)
    if DUALQ:
        a(f"buffer_store_dwordx4 v[{vGq}:{vGq+3}], v{vQPS}, {WS}, s{sQS} offen")
    a(f"s_xor_b32 s{sQS}, s{sQS}, {QTOG}")
    a(f"buffer_store_dwordx4 v[{vGq}:{vGq+3}], v{vQPS}, {WS}, s{sQS} offen sc1")
    setexec(-1)
    stamp(3)

vQG = vQ2
def issue_qpoll():
    for kq, so in enumerate((sQG, sQ1, sQ2, sQ3)):
        a(f"buffer_load_dwordx4 v[{vQG+4*kq}:{vQG+4*kq+3}], v{vQA}, {WS}, s{so} offen sc1")
def row_load(i):
    if i == 0: a(f"s_mov_b32 m0, s{sLM}")
    if i == 4: a(f"s_add_u32 s{sLM}, s{sLM}, 4096\ns_mov_b32 m0, s{sLM}")
    a(f"buffer_load_dwordx4 v{vW1b if i & 1 else vW1}, s[{SROW}:{SROW+3}], s{sRO} offen offset:{(i & 3)*1024} {NT} lds")
    if i < 7: a(f"s_add_u32 s{sRO}, s{sRO}, s{sSTB if (i & 3) == 3 else sSTA}")
_rows = [0]
SCHED = {"early": [2, 0, 2, 1, 1, 1, 1, 0], "spread": [1] * 8, "burst": [4, 0, 4, 0, 0, 0, 0, 0]}[ROWPOS]
def row_slot(i):
    n = 8 if i == 7 else SCHED[i]
    for _ in range(n):
        if _rows[0] < 8:
            row_load(_rows[0]); _rows[0] += 1
def xc_pt():
    a(f"buffer_load_ushort v{vXC}, v{vXCA}, s[{SX}:{SX+3}], s{sXO} offen")
    a(f"buffer_load_dword v{vPT}, v{vBA}, {WS}, s{sBA} offen sc1")

blk_prologue()
if KDELAY == 2:
    blk_pre_q(); blk_pre_att(); blk_issue_K()
elif KDELAY == 1:
    blk_pre_q(); blk_issue_K()
else:
    blk_issue_K(); blk_pre_q()
NQS = 2 if DUALQ else 1
if VORD == 0:
    blk_ln(); issue_V(0); blk_qphase(4); issue_V(1)
    WK, WV0, WV1 = 8 + NQS, 4 + NQS, 2
elif VORD == 1:
    blk_ln(); issue_V(0); issue_V(1); blk_qphase(8)
    WK, WV0, WV1 = 8 + NQS, 4 + NQS, 2 + NQS
elif VORD == 2:
    issue_V(0); blk_ln(4); issue_V(1); blk_qphase(8)
    WK, WV0, WV1 = 8 + NQS, 4 + NQS, 2 + NQS
if KDELAY != 2: blk_pre_att()
if WARM == 1:
    a("s_branch L_warm1\nL_warm_ret:")
elif WARM == 2:
    a(f"s_cmp_ge_u32 s{sJ}, 16\ns_cbranch_scc1 L_warm1\ns_branch L_warm2\nL_warm_ret:")
a(f"s_waitcnt vmcnt({WK})")
stamp(4)
for b in range(2):
    for i in range(4):
        r = vKF + (b * 4 + i) * 4
        a(f"ds_read_b128 v[{r}:{r+3}], v{vKR+i} offset:{b*4096}")
a(f"s_waitcnt vmcnt({WV0})")
perms(vVR, vVF, 0)
if EARLYG:
    issue_qpoll()
    a("s_waitcnt lgkmcnt(0)")
    for i in range(8): row_load(i)
    _rows[0] = 8
    xc_pt()
    a("s_waitcnt vmcnt(14)")
    perms(vVR, vVF, 1)
    stamp(5)
    a("s_waitcnt vmcnt(10)\ns_branch L_qchk0")
elif ROWPRE:
    a("s_waitcnt vmcnt(2)")
    issue_qpoll()
    a("s_waitcnt vmcnt(4) lgkmcnt(0)")
    for i in range(ROWPRE): row_load(i)
    _rows[0] = ROWPRE
    perms(vVR, vVF, 1)
    stamp(5)
    a(f"s_waitcnt vmcnt({ROWPRE})\ns_branch L_qchk0")
else:
    a(f"s_waitcnt vmcnt({WV1})")
    issue_qpoll()
    if not OPT1:
        a(f"s_waitcnt vmcnt({4 + (NQS if VORD else 0)})")
        perms(vVR, vVF, 1)
    stamp(5)
t = vU
a(f"""
L_qcheck:
    s_waitcnt vmcnt(0)
L_qchk0:
    v_add_f32 v{t}, v{vQG}, v{vQG+4}
    v_add_f32 v{t+1}, v{vQG+1}, v{vQG+5}
    v_add_f32 v{t+2}, v{vQG+8}, v{vQG+12}
    v_add_f32 v{t+3}, v{vQG+9}, v{vQG+13}
    v_add_f32 v{t}, v{t}, v{t+2}
    v_add_f32 v{t+1}, v{t+1}, v{t+3}
    v_xor_b32 v{vQG+2}, s{sTAG}, v{vQG+2}
    v_cvt_pk_bf16_f32 v{t}, v{t}, v{t+1}
    v_xor_b32 v{vQG+6}, s{sTAG}, v{vQG+6}
    ds_write_b32 v{vQW}, v{t}
    v_xor_b32 v{vQG+10}, s{sTAG}, v{vQG+10}
    v_xor_b32 v{vQG+14}, s{sTAG}, v{vQG+14}
    v_or3_b32 v{vQG+2}, v{vQG+2}, v{vQG+6}, v{vQG+10}
    v_or_b32 v{vQG+2}, v{vQG+2}, v{vQG+14}
    v_cmp_ne_u32 vcc, 0, v{vQG+2}
    s_cbranch_vccz L_qok
    {"s_sleep %d" % SLQ if SLQ else ""}""")
if DUALQ:
    for r in (sQG, sQ1, sQ2, sQ3): a(f"s_xor_b32 s{r}, s{r}, {QTOG}")
issue_qpoll()
spin("L_qcheck")
a("L_qok:\ns_waitcnt lgkmcnt(0)\ns_barrier")
for i in range(4): a(f"ds_read_b128 v[{vQ+4*i}:{vQ+4*i+3}], v{vQR} offset:{i*64}")
stamp(6)
row_slot(0)
a(f"""
    v_xor_b32 v{vQG+3}, s{sTBX}, v{vQG+3}
    v_xor_b32 v{vQG+7}, s{sTBX}, v{vQG+7}
    v_xor_b32 v{vQG+11}, s{sTBX}, v{vQG+11}
    v_xor_b32 v{vQG+15}, s{sTBX}, v{vQG+15}
    v_or3_b32 v{vQG+3}, v{vQG+3}, v{vQG+7}, v{vQG+11}
    v_or_b32 v{vQG+3}, v{vQG+3}, v{vQG+15}
    v_cmp_ne_u32 vcc, 0, v{vQG+3}
    s_cmp_lg_u64 vcc, 0
    s_cselect_b32 s{sMODE}, 1, 0
    v_mov_b32 v{vTMP}, s{sMODE}""")
row_slot(1)
a("s_waitcnt lgkmcnt(0)")
for i in range(4):
    for b in range(2): mfma(vS0 + 4 * b, vKF + (b * 4 + i) * 4, vQ + 4 * i, None if i == 0 else vS0 + 4 * b)
vP = vU; vR4 = vU + 8; vM = vU + 12; vMT = vU + 14
if OPT1 and not EARLYG and not ROWPRE:
    perms(vVR, vVF, 1)
a(f"ds_write_b32 v{vMFW}, v{vTMP}")
row_slot(2)
for i in range(4): a(f"v_cvt_pk_bf16_f32 v{vR4+i}, v{vS0+2*i}, v{vS0+2*i+1}")
unpack8(vR4, vP)
row_slot(3)
for i in range(4): a(f"v_pk_mul_f32 v[{vP+2*i}:{vP+2*i+1}], v[{vP+2*i}:{vP+2*i+1}], s[{sSCALE}:{sSCALE+1}]")
for i in range(4): a(f"v_cvt_pk_bf16_f32 v{vR4+i}, v{vP+2*i}, v{vP+2*i+1}")
unpack8(vR4, vP)
row_slot(4)
a(f"""
    v_max3_f32 v{vM}, v{vP}, v{vP+1}, v{vP+2}
    v_max3_f32 v{vMT}, v{vP+3}, v{vP+4}, v{vP+5}
    v_max3_f32 v{vM}, v{vM}, v{vP+6}, v{vP+7}
    v_max_f32 v{vM}, v{vM}, v{vMT}
    v_mov_b32 v{vMT}, v{vM}
    v_permlane16_swap_b32 v{vM}, v{vMT}
    v_max_f32 v{vM}, v{vM}, v{vMT}
    v_mov_b32 v{vMT}, v{vM}
    v_permlane32_swap_b32 v{vM}, v{vMT}
    v_max_f32 v{vM}, v{vM}, v{vMT}
    v_mul_f32 v{vM}, s{sLOG2E}, v{vM}""")
for i in range(4): a(f"v_pk_fma_f32 v[{vP+2*i}:{vP+2*i+1}], v[{vP+2*i}:{vP+2*i+1}], s[{sLOG2E}:{sLOG2E+1}], v[{vM}:{vM+1}] op_sel_hi:[1,1,0] neg_lo:[0,0,1] neg_hi:[0,0,1]")
row_slot(5)
for i in range(8): a(f"v_exp_f32 v{vP+i}, v{vP+i}")
for i in range(4): a(f"v_cvt_pk_bf16_f32 v{vR4+i}, v{vP+2*i}, v{vP+2*i+1}")
vL = vS0
mfma(vL, vR4, vONE, None)
for e in range(8): mfma(vO + 4 * e, vR4, vVF + 4 * e, None)
row_slot(6); row_slot(7)
a(f"v_mov_b32 v{vM+1}, v{vL}")
setexec(0x1000010000100001)
a(f"ds_write_b64 v{vMW}, v[{vM}:{vM+1}]")
setexec(-1)
for e in range(0, 8, 2): a(f"ds_write2_b32 v{vOW}, v{vO+4*e}, v{vO+4*e+4} offset0:{e} offset1:{e+1}")
vC = vU + 16; vG = vU + 36
a(f"""
    v_mov_b32 v{vTMP+1}, {MF}
    v_mov_b32 v{vG+3}, s{sTAG}
    s_waitcnt lgkmcnt(0)
    s_barrier
    ds_read_b128 v[{vC}:{vC+3}], v{vMR}
    ds_read_b128 v[{vC+4}:{vC+7}], v{vMR} offset:16""")
for src in range(4): a(f"ds_read2_b32 v[{vC+8+2*src}:{vC+9+2*src}], v{vORD+src} offset0:0 offset1:1")
a(f"ds_read_b128 v[{vQG}:{vQG+3}], v{vTMP+1}")
if not EARLYG: xc_pt()
a(f"""
    s_waitcnt lgkmcnt(5)
    v_max3_f32 v{vC+16}, v{vC}, v{vC+2}, v{vC+4}
    v_max_f32 v{vC+16}, v{vC+16}, v{vC+6}
    v_sub_f32 v{vC}, v{vC}, v{vC+16}
    v_sub_f32 v{vC+2}, v{vC+2}, v{vC+16}
    v_sub_f32 v{vC+4}, v{vC+4}, v{vC+16}
    v_sub_f32 v{vC+6}, v{vC+6}, v{vC+16}
    v_exp_f32 v{vC}, v{vC}
    v_exp_f32 v{vC+2}, v{vC+2}
    v_exp_f32 v{vC+4}, v{vC+4}
    v_exp_f32 v{vC+6}, v{vC+6}
    v_mul_f32 v{vC+17}, v{vC}, v{vC+1}
    v_fmac_f32 v{vC+17}, v{vC+2}, v{vC+3}
    v_fmac_f32 v{vC+17}, v{vC+4}, v{vC+5}
    v_fmac_f32 v{vC+17}, v{vC+6}, v{vC+7}
    s_waitcnt lgkmcnt(0)
    v_rcp_f32 v{vC+18}, v{vC+17}
    v_log_f32 v{vC+19}, v{vC+17}
    v_mul_f32 v{vC+8}, v{vC+8}, v{vC}
    v_mul_f32 v{vC+9}, v{vC+9}, v{vC}
    v_fmac_f32 v{vC+8}, v{vC+10}, v{vC+2}
    v_fmac_f32 v{vC+9}, v{vC+11}, v{vC+2}
    v_fmac_f32 v{vC+8}, v{vC+12}, v{vC+4}
    v_fmac_f32 v{vC+9}, v{vC+13}, v{vC+4}
    v_fmac_f32 v{vC+8}, v{vC+14}, v{vC+6}
    v_fmac_f32 v{vC+9}, v{vC+15}, v{vC+6}
    v_or3_b32 v{vQG}, v{vQG}, v{vQG+1}, v{vQG+2}
    v_mul_f32 v{vC+8}, v{vC+8}, v{vC+18}
    v_mul_f32 v{vC+9}, v{vC+9}, v{vC+18}
    v_or_b32 v{vQG}, v{vQG}, v{vQG+3}
    v_add_f32 v{vG+2}, v{vC+16}, v{vC+19}
    v_cvt_pk_bf16_f32 v{vG}, v{vC+8}, v{vC+9}
    v_readfirstlane_b32 s{sMODE}, v{vQG}""")
if FORCEG: a(f"s_mov_b32 s{sMODE}, 1")
a(f"v_mov_b32_dpp v{vG+1}, v{vG} quad_perm:[1,1,3,3] row_mask:0xf bank_mask:0xf")
setexec(0x5555555555555555)
local_store(f"buffer_store_dwordx4 v[{vG}:{vG+3}], v{vBP}, {WS}, s{sBP} offen")
setexec(-1)
stamp(7)
if STAMPS: a("@@ZI@@")
a(f"s_cmp_ge_u32 s{sJ}, 16\ns_cbranch_scc1 L_ftail")
if WARM == 2:
    a("s_branch L_wtail\n.p2align 12\nL_warm2:\ns_branch L_warm_ret\nL_wtail:")
NYOUNG = 3
vGA, vCA, vCW, vCR, vTW, vt0, vt1, vt2, vPI, vVAL = 10, 11, 12, 13, 14, 15, 16, 17, 18, 19
def tile_addrs():
    a(f"""
    v_lshrrev_b32 v{vt0}, 2, v{vN}
    v_lshl_or_b32 v{vt0}, v{vS}, 2, v{vt0}
    v_and_b32 v{vt1}, 7, v{vt0}
    v_lshlrev_b32 v{vt1}, 5, v{vt1}
    v_lshl_or_b32 v{vt1}, v{vt0}, 8, v{vt1}
    v_and_b32 v{vt0}, 3, v{vN}
    v_lshl_or_b32 v{vt1}, v{vt0}, 3, v{vt1}
    s_lshl_b32 s{sT0}, s{sW}, 13
    v_add_u32 v{vTW}, s{sT0}, v{vt1}""")
    for e in range(1, 8): a(f"v_xor_b32 v{vVR+e}, {e*32}, v{vTW}")
def tile_reads():
    for e in range(8):
        ad = vTW if e == 0 else vVR + e
        a(f"ds_read_b64_tr_b16 v[{vVF+4*e}:{vVF+4*e+1}], v{ad}\nds_read_b64_tr_b16 v[{vVF+4*e+2}:{vVF+4*e+3}], v{ad} offset:4096")
vG2 = vU; vB = vU + 4; sE0, sE1 = 58, 59; sBASE = 60; vGR = vU + 36
tile_addrs()
a(f"""
    s_mov_b32 s{sE0}, 0x3f80
    s_mov_b32 s{sE1}, 0x3f800000
    s_lshr_b32 s{sBASE}, s{sJ}, 1
    s_lshl_b32 s{sBASE}, s{sBASE}, 6
    s_and_b32 s{sT1}, s{sJ}, 1
    s_lshl_b32 s{sT1}, s{sT1}, 3
    s_add_u32 s{sBASE}, s{sBASE}, s{sT1}
    v_and_b32 v{vPI}, 1, v{vLane}
    v_and_b32 v{vVAL}, 1, v{vS}
    v_lshlrev_b32 v{vVAL}, 1, v{vVAL}
    v_lshrrev_b32 v{vt0}, 1, v{vS}
    v_or_b32 v{vVAL}, v{vVAL}, v{vt0}
    v_lshlrev_b32 v{vB+6}, 1, v{vVAL}
    v_lshl_or_b32 v{vB+6}, v{vPI}, 4, v{vB+6}
    s_and_b32 s{sT1}, s{sW}, 1
    s_lshl_b32 s{sT1}, s{sT1}, 5
    s_lshr_b32 s{sT2}, s{sW}, 1
    s_lshl_b32 s{sT2}, s{sT2}, 3
    s_add_u32 s{sT1}, s{sT1}, s{sT2}
    s_add_u32 s{sT1}, s{sT1}, {OB}
    v_add_u32 v{vB+6}, s{sT1}, v{vB+6}
    v_lshlrev_b32 v{vB+7}, 4, v{vS}
    v_add_u32 v{vB+7}, {OB}, v{vB+7}
    v_lshlrev_b32 v{vGA}, 4, v{vN}
    v_lshl_or_b32 v{vGA}, v{vS}, 8, v{vGA}
    v_lshrrev_b32 v{vCA}, 3, v{vLane}
    v_lshlrev_b32 v{vCA}, 11, v{vCA}
    v_and_b32 v{vt0}, 7, v{vLane}
    v_lshl_or_b32 v{vCA}, v{vt0}, 4, v{vCA}
    v_lshl_add_u32 v{vCW}, v{vVAL}, 3, v{vt0}
    s_lshl_b32 s{sT1}, s{sW}, 2
    s_add_u32 s{sT1}, s{sT1}, {QP}
    v_lshl_add_u32 v{vCW}, v{vCW}, 4, s{sT1}
    v_and_b32 v{vt0}, 31, v{vLane}
    v_lshlrev_b32 v{vCR}, 4, v{vt0}
    v_add_u32 v{vCR}, {QP}, v{vCR}
    v_mov_b32 v{vGR+2}, s{sTAG}
    v_mov_b32 v{vGR+3}, s{sTAGB}
    s_lshl_b32 s{sQS}, s{sF}, 11
    s_lshl_b32 s{sT1}, s{sW}, 9
    s_add_u32 s{sQS}, s{sQS}, s{sT1}
    s_add_u32 s{sQS}, s{sQS}, {PC}
    s_lshl_b32 s{sT1}, s{sW}, 16
    s_lshl_b32 s{sT2}, s{sJ}, 7
    s_add_u32 s{sT1}, s{sT1}, s{sT2}
    s_add_u32 s{sQG}, s{sT1}, {PC}
    s_add_u32 s{sQ1}, s{sQG}, 16384
    s_add_u32 s{sQ2}, s{sQG}, 32768
    s_add_u32 s{sQ3}, s{sQG}, 49152
    s_waitcnt vmcnt({NYOUNG})""")
tile_reads()
stamp(8)
a(f"""
L_bpoll:
    buffer_load_dwordx4 v[{vG2}:{vG2+3}], v{vBA}, {WS}, s{sBA} offen sc1
    s_waitcnt vmcnt(0)
    v_cmp_ne_u32 vcc, s{sTAG}, v{vG2+3}
    s_cbranch_vccz L_bok
    {"s_sleep %d" % SLB if SLB else ""}""")
spin("L_bpoll")
a("L_bok:")
stamp(9)
a(f"""
    v_max_f32_dpp v{vB}, v{vG2+2}, v{vG2+2} row_ror:8 row_mask:0xf bank_mask:0xf
    v_lshlrev_b32 v{vB+2}, 16, v{vG2}
    v_and_b32 v{vB+3}, 0xffff0000, v{vG2}
    v_max_f32_dpp v{vB}, v{vB}, v{vB} row_ror:4 row_mask:0xf bank_mask:0xf
    v_lshlrev_b32 v{vB+4}, 16, v{vG2+1}
    v_and_b32 v{vB+5}, 0xffff0000, v{vG2+1}
    v_max_f32_dpp v{vB}, v{vB}, v{vB} row_ror:2 row_mask:0xf bank_mask:0xf""")
allreduce([vB], "v_max_f32", [vB+1], steps=())
a(f"""
    v_sub_f32 v{vB}, v{vG2+2}, v{vB}
    v_exp_f32 v{vB}, v{vB}
    v_mul_f32 v{vB+2}, v{vB+2}, v{vB}
    v_mul_f32 v{vB+3}, v{vB+3}, v{vB}
    v_mul_f32 v{vB+4}, v{vB+4}, v{vB}
    v_mul_f32 v{vB+5}, v{vB+5}, v{vB}
    v_mov_b32 v{vB+1}, v{vB}
    v_permlane32_swap_b32 v{vB+2}, v{vB+3}
    v_permlane32_swap_b32 v{vB+4}, v{vB+5}
    v_permlane32_swap_b32 v{vB}, v{vB+1}
    v_add_f32 v{vB+2}, v{vB+2}, v{vB+3}
    v_add_f32 v{vB+4}, v{vB+4}, v{vB+5}
    v_add_f32 v{vB}, v{vB}, v{vB+1}
    v_mov_b32 v{vB+1}, v{vB}
    v_permlane16_swap_b32 v{vB+2}, v{vB+4}
    v_permlane16_swap_b32 v{vB}, v{vB+1}
    v_add_f32 v{vB+2}, v{vB+2}, v{vB+4}
    v_add_f32 v{vB}, v{vB}, v{vB+1}""")
for st in (8, 4, 2):
    a(f"v_add_f32_dpp v{vB+2}, v{vB+2}, v{vB+2} row_ror:{st} row_mask:0xf bank_mask:0xf")
    a(f"v_add_f32_dpp v{vB}, v{vB}, v{vB} row_ror:{st} row_mask:0xf bank_mask:0xf")
a(f"""
    v_rcp_f32 v{vB}, v{vB}
    v_mul_f32 v{vB+2}, v{vB+2}, v{vB}
    v_cvt_pk_bf16_f32 v{vB+2}, v{vB+2}, v{vB+2}""")
setexec(0x0003000300030003)
a(f"ds_write_b16 v{vB+6}, v{vB+2}")
setexec(-1)
a(f"s_waitcnt lgkmcnt(0)\ns_barrier\nds_read_b128 v[{vR4}:{vR4+3}], v{vB+7}\ns_waitcnt lgkmcnt(0)")
for e in range(8): mfma(vO + 4 * e, vR4, vVF + 4 * e, None)
a(f"""
    v_cndmask_b32 v{vU}, v{vO}, v{vO+16}, s[{sM1}:{sM1+1}]
    v_cndmask_b32 v{vU+1}, v{vO+4}, v{vO+20}, s[{sM1}:{sM1+1}]
    v_cndmask_b32 v{vU+2}, v{vO+8}, v{vO+24}, s[{sM1}:{sM1+1}]
    v_cndmask_b32 v{vU+3}, v{vO+12}, v{vO+28}, s[{sM1}:{sM1+1}]
    v_cvt_pk_bf16_f32 v{vGR}, v{vU}, v{vU+1}
    v_cvt_pk_bf16_f32 v{vGR+1}, v{vU+2}, v{vU+3}""")
setexec(0xffffffff)
a(f"buffer_store_dwordx4 v[{vGR}:{vGR+3}], v{vGA}, {WS}, s{sQS} offen sc1")
setexec(-1)
stamp(10)
vD = vU; vAcc = vD + 16; CA, CB = vKF, vKF + 16
def c_issue(R):
    for k, so in enumerate((sQG, sQ1, sQ2, sQ3)):
        a(f"buffer_load_dwordx4 v[{R+4*k}:{R+4*k+3}], v{vCA}, {WS}, s{so} offen sc1")
def c_process(R):
    for i in range(4):
        for c, (dw, se) in enumerate(((0, sE0), (0, sE1), (1, sE0), (1, sE1))):
            a(f"v_dot2_f32_bf16 v{vAcc+c}, v{R+4*i+dw}, s{se}, {'0' if i == 0 else 'v%d' % (vAcc+c)}")
    tagcheck(R, 4, vD + 20)
    a("s_cbranch_vccz L_cok")
if DLC: a(f"s_sleep {DLC}")
if CPIPE:
    c_issue(CA)
    if STGC: a(f"s_sleep {STGC}")
    c_issue(CB)
    a("L_cpoll:\ns_waitcnt vmcnt(4)")
    c_process(CA); c_issue(CA)
    a("s_waitcnt vmcnt(4)")
    c_process(CB); c_issue(CB)
    spin("L_cpoll")
else:
    a("L_cpoll:")
    c_issue(CA)
    a("s_waitcnt vmcnt(0)")
    c_process(CA)
    spin("L_cpoll")
a("L_cok:")
stamp(11)
a(f"""
    v_permlane32_swap_b32 v{vAcc}, v{vAcc+1}
    v_permlane32_swap_b32 v{vAcc+2}, v{vAcc+3}
    v_add_f32 v{vAcc}, v{vAcc}, v{vAcc+1}
    v_add_f32 v{vAcc+2}, v{vAcc+2}, v{vAcc+3}
    v_permlane16_swap_b32 v{vAcc}, v{vAcc+2}
    v_add_f32 v{vAcc}, v{vAcc}, v{vAcc+2}
    v_add_f32_dpp v{vAcc}, v{vAcc}, v{vAcc} row_ror:8 row_mask:0xf bank_mask:0xf""")
setexec(0x00ff00ff00ff00ff)
a(f"ds_write_b32 v{vCW}, v{vAcc}")
setexec(-1)
a(f"""
    v_lshlrev_b32 v{vXC}, 16, v{vXC}
    s_lshl_b32 s{sT0}, s{sG}, 11
    s_lshl_b32 s{sT1}, s{sBASE}, 2
    s_add_u32 s{sT0}, s{sT0}, s{sT1}
    s_add_u32 s{sT0}, s{sT0}, {PH}
    v_lshrrev_b32 v{vD+6}, 3, v{vLane}
    v_lshlrev_b32 v{vD+6}, 6, v{vD+6}
    v_bfe_u32 v{vD+5}, v{vLane}, 1, 2
    v_lshl_or_b32 v{vD+6}, v{vD+5}, 3, v{vD+6}
    v_mov_b32 v{vD+5}, s{sTAG}
    v_and_b32 v{vD+7}, 31, v{vLane}
    v_lshlrev_b32 v{vD+7}, 2, v{vD+7}
    v_add_u32 v{vD+7}, {HL}, v{vD+7}
    s_waitcnt lgkmcnt(0)
    s_barrier
    s_cmp_lg_u32 s{sW}, 0
    s_cbranch_scc1 L_fin
    ds_read_b128 v[{vD}:{vD+3}], v{vCR}
    s_waitcnt lgkmcnt(0)
    v_add_f32 v{vD}, v{vD}, v{vD+1}
    v_add_f32 v{vD+2}, v{vD+2}, v{vD+3}
    v_add_f32 v{vD}, v{vD}, v{vD+2}""")
round_bf16(vD)
a(f"v_add_f32 v{vH}, v{vXC}, v{vD}")
round_bf16(vH)
a(f"""
    v_mov_b32_dpp v{vD+1}, v{vH} quad_perm:[1,1,3,3] row_mask:0xf bank_mask:0xf
    ds_write_b32 v{vD+7}, v{vH}
    v_perm_b32 v{vD+4}, v{vD+1}, v{vH}, s{sSEL1}""")
setexec(0x55555555)
local_store(f"buffer_store_dwordx2 v[{vD+4}:{vD+5}], v{vD+6}, {WS}, s{sT0} offen")
setexec(-1)
stamp(12)
vEA = vCA
a(f"""
    v_lshrrev_b32 v{vEA}, 1, v{vLane}
    v_lshlrev_b32 v{vEA}, 12, v{vEA}
    v_lshl_or_b32 v{vEA}, v{vPI}, 4, v{vEA}
    s_lshr_b32 s{sT2}, s{sJ}, 1
    s_lshl_b32 s{sT2}, s{sT2}, 5
    s_and_b32 s{sT3}, s{sG}, 1
    s_lshl_b32 s{sT0}, s{sT3}, 4
    s_add_u32 s{sT2}, s{sT2}, s{sT0}
    s_and_b32 s{sT0}, s{sJ}, 1
    s_lshl_b32 s{sT0}, s{sT0}, 3
    s_add_u32 s{sT2}, s{sT2}, s{sT0}
    s_and_b32 s{sT0}, s{sG}, 6
    s_add_u32 s{sT2}, s{sT2}, s{sT0}
    s_lshl_b32 s{sT2}, s{sT2}, 4
    s_add_u32 s{sQG}, s{sT2}, {PE}
    s_add_u32 s{sQ1}, s{sQG}, 131072
    v_lshrrev_b32 v{vt0}, 5, v{vLane}
    s_lshl_b32 s{sT3}, s{sT3}, 1
    v_add_u32 v{vt0}, s{sT3}, v{vt0}
    v_add_u32 v{vt2}, s{sT0}, v{vPI}
    v_lshl_add_u32 v{vt1}, v{vt0}, 3, v{vt2}
    v_lshlrev_b32 v{vt1}, 2, v{vt1}
    v_add_u32 v{vt1}, {HL}, v{vt1}
    v_lshl_add_u32 v{vt0}, v{vt0}, 4, v{vt2}
    v_lshlrev_b32 v{vt0}, 1, v{vt0}
    s_lshl_b32 s{sT2}, s{sBASE}, 1
    s_mov_b32 s{SV}, s{pOUT}
    s_mov_b32 s{SV+1}, s{pOUT+1}
    s_mov_b32 s{SV+2}, 1024
    s_waitcnt lgkmcnt(0)
    ds_read_b32 v{vH}, v{vt1}""")
EA, EB = vVF, vVF + 8
for R in (EA, EB):
    a(f"v_mov_b32 v{R+4}, 0\nv_mov_b32 v{R+5}, 0\nv_mov_b32 v{R+6}, s{sTAG}\nv_mov_b32 v{R+7}, s{sTAGB}")
def e_issue(R):
    a(f"buffer_load_dwordx4 v[{R}:{R+3}], v{vEA}, {WS}, s{sQG} offen sc1")
    setexec(0xffffffffffff)
    a(f"buffer_load_dwordx4 v[{R+4}:{R+7}], v{vEA}, {WS}, s{sQ1} offen sc1")
    setexec(-1)
def e_process(R):
    a(f"""
    v_xor_b32 v{vD+4}, s{sTAG}, v{R+2}
    v_xor_b32 v{vD+5}, s{sTAGB}, v{R+3}
    v_xor_b32 v{vD+6}, s{sTAG}, v{R+6}
    v_xor_b32 v{vD+7}, s{sTAGB}, v{R+7}
    v_add_f32 v{vD}, v{R}, v{R+4}
    v_or3_b32 v{vD+4}, v{vD+4}, v{vD+5}, v{vD+6}
    v_add_f32 v{vD+1}, v{R+1}, v{R+5}
    v_or_b32 v{vD+4}, v{vD+4}, v{vD+7}
    v_cmp_ne_u32 vcc, 0, v{vD+4}
    s_cbranch_vccz L_eok""")
if DLE: a(f"s_sleep {DLE}")
if EFLAG:
    a(f"""
    s_lshl_b32 s{sT0}, s{sG}, 7
    s_add_u32 s{sT0}, s{sT0}, {PF}
    v_lshlrev_b32 v{vt2}, 2, v{vLane}
    s_mov_b32 exec_lo, 0xfffffff
    s_mov_b32 exec_hi, 0
L_fpoll:
    buffer_load_dword v{vD+8}, v{vt2}, {WS}, s{sT0} offen sc1
    s_waitcnt vmcnt(0)
    v_cmp_ne_u32 vcc, s{sTAG}, v{vD+8}
    s_cbranch_vccz L_fok
    s_sleep 1""")
    spin("L_fpoll")
    a("L_fok:\ns_mov_b64 exec, -1")
    if DLE2: a(f"s_sleep {DLE2}")
if EPIPE:
    e_issue(EA)
    if STGE: a(f"s_sleep {STGE}")
    e_issue(EB)
    a("L_epoll:\ns_waitcnt vmcnt(2)")
    e_process(EA)
    if SLE: a(f"s_sleep {SLE}")
    e_issue(EA)
    a("s_waitcnt vmcnt(2)")
    e_process(EB)
    if SLE: a(f"s_sleep {SLE}")
    e_issue(EB)
    spin("L_epoll")
else:
    a("L_epoll:")
    e_issue(EA)
    a("s_waitcnt vmcnt(0)")
    e_process(EA)
    if SLE: a(f"s_sleep {SLE}")
    spin("L_epoll")
a("L_eok:")
stamp(13)
a(f"""
    v_permlane32_swap_b32 v{vD}, v{vD+1}
    v_add_f32 v{vD}, v{vD}, v{vD+1}
    v_mov_b32 v{vD+2}, v{vD}
    v_permlane16_swap_b32 v{vD}, v{vD+2}
    v_add_f32 v{vD}, v{vD}, v{vD+2}""")
for st in (8, 4, 2): a(f"v_add_f32_dpp v{vD}, v{vD}, v{vD} row_ror:{st} row_mask:0xf bank_mask:0xf")
round_bf16(vD)
a(f"""
    s_waitcnt lgkmcnt(0)
    v_add_f32 v{vD}, v{vH}, v{vD}
    v_cvt_pk_bf16_f32 v{vD}, v{vD}, v{vD}""")
setexec(0x0000000300000003)
a(f"""
    buffer_store_short v{vD}, v{vt0}, s[{SV}:{SV+3}], s{sT2} offen
    s_cmp_lg_u32 s2, 0
    s_cbranch_scc1 L_w0done
    s_mov_b64 exec, 1
    v_mov_b32 v{vD+3}, s{sTAG}
    v_mov_b32 v{vD+4}, 0
    buffer_store_dword v{vD+3}, v{vD+4}, {WS}, 0 offen sc1
L_w0done:
    s_mov_b64 exec, -1""")
stamp(14)
a("s_branch L_fin")
if FALIGN: a(".p2align 12")
if WARM: a("L_warm1:\ns_branch L_warm_ret")
a("L_ftail:")
vTR = 242; vQPW2 = 244; vXA2 = 240; vCSUM = 246
vXR0, vHS = 11, 12
a(f"s_cmp_ge_u32 s{sJ}, 23\ns_cbranch_scc1 L_idle")
a(f"""
    s_mov_b32 s{SK}, s{pW1}
    s_mov_b32 s{SK+1}, s{pW1+1}
    s_mov_b32 s{SK+2}, 1835008
    s_lshl_b32 s{sT0}, s{sF}, 6
    s_mul_i32 s{sT1}, s{sW}, {128*3584}
    s_add_u32 s{sT0}, s{sT0}, s{sT1}
    s_lshl_b32 s{sT1}, s{sW}, 13
    s_add_u32 s{sT1}, s{sT1}, {WL}
    s_mov_b32 m0, s{sT1}""")
for i in range(8):
    if i == 4: a(f"s_add_u32 s{sT1}, s{sT1}, 4096\ns_mov_b32 m0, s{sT1}")
    a(f"buffer_load_dwordx4 v{vW1c}, s[{SK}:{SK+3}], s{sT0} offen offset:{(i % 4) * 1024} {NT} lds")
    if i < 7: a(f"s_add_u32 s{sT0}, s{sT0}, {16 * 3584 - (1024 if i % 4 != 3 else -3072)}")
if FW2:
    a(f"""
    s_mov_b32 s{SROW+2}, 1835008
    s_lshl_b32 s{sRO}, s{sF}, 15
    s_lshl_b32 s{sT0}, s{sW}, 8
    s_add_u32 s{sRO}, s{sRO}, s{sT0}
    s_lshl_b32 s{sLM}, s{sW}, 13""")
    for i in range(8): row_load(i)
tile_addrs()
if not FW2:
    a(f"s_waitcnt vmcnt({NYOUNG + 8})")
    tile_reads()
vHG = vU; vGR = vU + 36; vAX = vQ; vCS = vO; vAC = vS0
a(f"""
    s_lshl_b32 s{sT0}, s{sW}, 13
    s_add_u32 s{sT0}, s{sT0}, {WL}
    v_lshrrev_b32 v{vt0}, 2, v{vN}
    v_lshl_or_b32 v{vt0}, v{vS}, 2, v{vt0}
    v_lshlrev_b32 v{vt0}, 6, v{vt0}
    v_and_b32 v{vt1}, 1, v{vS}
    v_lshl_or_b32 v{vt0}, v{vt1}, 5, v{vt0}
    v_and_b32 v{vt1}, 3, v{vN}
    v_lshl_or_b32 v{vt0}, v{vt1}, 3, v{vt0}
    v_add_u32 v{vTR}, s{sT0}, v{vt0}
    v_xor_b32 v{vTR+1}, 32, v{vTR}
    v_lshl_or_b32 v{vt0}, v{vS}, 4, v{vN}
    v_lshlrev_b32 v{vt0}, 4, v{vt0}
    s_lshl_b32 s{sT0}, s{sW}, 2
    s_add_u32 s{sT0}, s{sT0}, {QP}
    v_add_u32 v{vQPW2}, s{sT0}, v{vt0}
    v_lshrrev_b32 v{vt0}, 2, v{vLane}
    v_lshlrev_b32 v{vt0}, 6, v{vt0}
    v_and_b32 v{vt1}, 1, v{vLane}
    v_lshl_or_b32 v{vt0}, v{vt1}, 5, v{vt0}
    v_bfe_u32 v{vt1}, v{vLane}, 1, 1
    v_lshl_or_b32 v{vt0}, v{vt1}, 3, v{vt0}
    v_add_u32 v{vXA2}, {XN}, v{vt0}
    s_lshl_b32 s{sT0}, s{sW}, 8
    s_add_u32 s{sT0}, s{sT0}, {XN}
    v_lshl_add_u32 v{vXR0}, v{vS}, 4, s{sT0}
    v_lshlrev_b32 v{vHS}, 4, v{vLane}
    v_add_u32 v{vHS}, {XN}, v{vHS}
    v_and_b32 v{vU+15}, 3, v{vN}
    v_lshl_or_b32 v{vU+15}, v{vS}, 2, v{vU+15}
    v_bfe_u32 v{vU+17}, v{vN}, 2, 1
    v_lshl_or_b32 v{vU+15}, v{vU+17}, 4, v{vU+15}
    v_lshlrev_b32 v{vU+16}, 4, v{vU+15}
    v_add_u32 v{vU+16}, {QP}, v{vU+16}
    s_lshl_b32 s{sQS}, s{sF}, 12
    s_add_u32 s{sQS}, s{sQS}, {PE}
    v_lshlrev_b32 v{vGA}, 4, v{vN}
    v_lshl_or_b32 v{vGA}, v{vS}, 8, v{vGA}
    s_lshl_b32 s{sT1}, s{sW}, 10
    s_add_u32 s{sQS}, s{sQS}, s{sT1}
    v_mov_b32 v{vGR+2}, s{sTAG}
    v_mov_b32 v{vGR+3}, s{sTAGB}
    s_waitcnt vmcnt({8 if FW2 else 0})""")
for cb in range(2):
    for k in range(4):
        r = vKF + (cb * 4 + k) * 4
        a(f"ds_read_b64_tr_b16 v[{r}:{r+1}], v{vTR+cb} offset:{k*2048}\nds_read_b64_tr_b16 v[{r+2}:{r+3}], v{vTR+cb} offset:{k*2048+1024}")
a("s_waitcnt lgkmcnt(0)")
for k in range(4):
    for cb in range(2): mfma(vCS + 4 * cb, vONE, vKF + (cb * 4 + k) * 4, None if k == 0 else vCS + 4 * cb)
a(f"v_cndmask_b32 v{vCSUM}, v{vCS}, v{vCS+4}, s[{sM1}:{sM1+1}]")
if FW2:
    a("s_waitcnt vmcnt(0)")
    tile_reads()
stamp(8)
a(f"""
    s_cmp_lg_u32 s{sW}, 0
    s_cbranch_scc1 L_hwait
L_hpoll:
    buffer_load_dwordx4 v[{vHG}:{vHG+3}], v{vBA}, {WS}, s{sBA} offen sc1
    buffer_load_dwordx4 v[{vHG+4}:{vHG+7}], v{vBA}, {WS}, s{sBA} offen offset:16 sc1
    s_waitcnt vmcnt(0)
    v_xor_b32 v{vHG+8}, s{sTAG}, v{vHG+1}
    v_xor_b32 v{vHG+9}, s{sTAG}, v{vHG+3}
    v_xor_b32 v{vHG+10}, s{sTAG}, v{vHG+5}
    v_xor_b32 v{vHG+11}, s{sTAG}, v{vHG+7}
    ds_write2_b32 v{vXA2}, v{vHG}, v{vHG+2} offset0:0 offset1:1
    v_or3_b32 v{vHG+8}, v{vHG+8}, v{vHG+9}, v{vHG+10}
    ds_write2_b32 v{vXA2}, v{vHG+4}, v{vHG+6} offset0:4 offset1:5
    v_or_b32 v{vHG+8}, v{vHG+8}, v{vHG+11}
    v_cmp_ne_u32 vcc, 0, v{vHG+8}
    s_cbranch_vccz L_hok
    {"s_sleep %d" % SLH if SLH else ""}""")
spin("L_hpoll")
vS1, vS2 = vU + 12, vU + 13
a("L_hok:\ns_waitcnt lgkmcnt(0)\nL_hwait:\ns_barrier")
stamp(9)
a(f"ds_read_b128 v[{vHG}:{vHG+3}], v{vHS}")
for k in range(4): a(f"ds_read_b128 v[{vAX+4*k}:{vAX+4*k+3}], v{vXR0} offset:{k*64}")
a(f"v_mov_b32 v{vS1}, 0\nv_mov_b32 v{vS2}, 0\ns_waitcnt lgkmcnt(4)")
for i in range(4):
    a(f"v_dot2_f32_bf16 v{vS1}, v{vHG+i}, v{vONE}, v{vS1}\nv_dot2_f32_bf16 v{vS2}, v{vHG+i}, v{vHG+i}, v{vS2}")
a("s_waitcnt lgkmcnt(0)")
for k in range(4):
    for cb in range(2): mfma(vAC + 4 * cb, vAX + 4 * k, vKF + (cb * 4 + k) * 4, None if k == 0 else vAC + 4 * cb)
allreduce([vS1, vS2], "v_add_f32", [vU + 14, vU + 19])
a(f"""
    v_mul_f32 v{vS1}, 0x3b000000, v{vS1}
    v_mul_f32 v{vS2}, 0x3b000000, v{vS2}
    v_fma_f32 v{vS2}, -v{vS1}, v{vS1}, v{vS2}
    v_max_f32 v{vS2}, 0, v{vS2}""")
round_bf16(vS1); round_bf16(vS2)
a(f"""
    v_add_f32 v{vS2}, 0x3727c5ac, v{vS2}
    v_cndmask_b32 v{vU+14}, v{vAC}, v{vAC+4}, s[{sM1}:{sM1+1}]
    v_fma_f32 v{vU+14}, -v{vS1}, v{vCSUM}, v{vU+14}""")
setexec(0xffffffff)
a(f"ds_write_b32 v{vQPW2}, v{vU+14}")
setexec(-1)
round_bf16(vS2)
a(f"v_sqrt_f32 v{vS2}, v{vS2}")
round_bf16(vS2)
a(f"""
    v_rcp_f32 v{vS2}, v{vS2}
    s_waitcnt lgkmcnt(0)
    s_barrier
    ds_read_b128 v[{vU+20}:{vU+23}], v{vU+16}
    s_waitcnt lgkmcnt(0)
    v_add_f32 v{vU+20}, v{vU+20}, v{vU+21}
    v_add_f32 v{vU+22}, v{vU+22}, v{vU+23}
    v_add_f32 v{vU+20}, v{vU+20}, v{vU+22}
    v_mul_f32 v{vU+20}, v{vU+20}, v{vS2}""")
round_bf16(vU + 20)
a(f"""
    v_mul_f32 v{vU+21}, 0xbfb8aa3b, v{vU+20}
    v_exp_f32 v{vU+21}, v{vU+21}
    v_add_f32 v{vU+21}, 1.0, v{vU+21}
    v_rcp_f32 v{vU+21}, v{vU+21}
    v_mul_f32 v{vU+20}, v{vU+20}, v{vU+21}
    v_mov_b32_dpp v{vU+21}, v{vU+20} quad_perm:[1,1,3,3] row_mask:0xf bank_mask:0xf
    v_cvt_pk_bf16_f32 v{vU+20}, v{vU+20}, v{vU+21}
    v_mov_b32_dpp v{vR4}, v{vU+20} row_newbcast:0 row_mask:0xf bank_mask:0xf
    v_mov_b32_dpp v{vR4+1}, v{vU+20} row_newbcast:2 row_mask:0xf bank_mask:0xf
    v_mov_b32_dpp v{vR4+2}, v{vU+20} row_newbcast:4 row_mask:0xf bank_mask:0xf
    v_mov_b32_dpp v{vR4+3}, v{vU+20} row_newbcast:6 row_mask:0xf bank_mask:0xf""")
for e in range(8): mfma(vO + 4 * e, vR4, vVF + 4 * e, None)
a(f"""
    v_cndmask_b32 v{vGR}, v{vO}, v{vO+8}, s[{sM1}:{sM1+1}]
    v_cndmask_b32 v{vGR+1}, v{vO+4}, v{vO+12}, s[{sM1}:{sM1+1}]
    v_cndmask_b32 v{vGR}, v{vGR}, v{vO+16}, s[{sM2}:{sM2+1}]
    v_cndmask_b32 v{vGR+1}, v{vGR+1}, v{vO+20}, s[{sM2}:{sM2+1}]
    v_cndmask_b32 v{vGR}, v{vGR}, v{vO+24}, s[{sM3}:{sM3+1}]
    v_cndmask_b32 v{vGR+1}, v{vGR+1}, v{vO+28}, s[{sM3}:{sM3+1}]
    buffer_store_dwordx4 v[{vGR}:{vGR+3}], v{vGA}, {WS}, s{sQS} offen sc1""")
if EFLAG:
    a(f"""
    s_sub_u32 s{sT0}, s{sJ}, 16
    s_lshl_b32 s{sT0}, s{sT0}, 2
    s_add_u32 s{sT0}, s{sT0}, s{sW}
    s_lshl_b32 s{sT0}, s{sT0}, 2
    s_lshl_b32 s{sT1}, s{sG}, 7
    s_add_u32 s{sT0}, s{sT0}, s{sT1}
    s_add_u32 s{sT0}, s{sT0}, {PF}
    v_mov_b32 v{vt0}, 0
    s_mov_b64 exec, 1""")
    local_store(f"buffer_store_dword v{vGR+2}, v{vt0}, {WS}, s{sT0} offen")
    a("s_mov_b64 exec, -1")
stamp(10)
a("s_branch L_fin")
a("L_idle:")
if PTH:
    a(f"""
    s_sub_u32 s{sT0}, s{sJ}, 23
    s_lshl_b32 s{sT0}, s{sT0}, 2
    s_add_u32 s{sT0}, s{sT0}, s{sW}
    v_lshlrev_b32 v{vTMP}, 7, v{vLane}
    s_lshl_b32 s{sT1}, s{sT0}, 13
    s_add_u32 s{sT2}, s{sT1}, {PC}
    s_add_u32 s{sT3}, s{sT1}, {PE}
    s_cmp_ge_u32 s{sT0}, 32
    s_cbranch_scc1 L_fin
    buffer_load_dword v{vPT}, v{vTMP}, {WS}, s{sT2} offen sc1
    s_cmp_ge_u32 s{sT0}, 28
    s_cbranch_scc1 L_fin
    buffer_load_dword v{vPT}, v{vTMP}, {WS}, s{sT3} offen sc1""")
a("L_fin:")
if STAMPS:
    a(f"""
    s_waitcnt lgkmcnt(0)
    s_mov_b64 exec, 1
    s_lshl_b32 s{sT0}, s2, 2
    s_add_u32 s{sT0}, s{sT0}, s{sW}
    s_mul_i32 s{sT0}, s{sT0}, 128
    s_add_u32 s{sT0}, s{sT0}, {STAMP}
    v_mov_b32 v6, 0""")
    for i in range(16):
        if i < NST:
            a(f"v_mov_b32 v4, s{sST+2*i}\nv_mov_b32 v5, s{sST+2*i+1}")
        else:
            a("v_mov_b32 v4, 0\nv_mov_b32 v5, 0")
        a(f"buffer_store_dwordx2 v[4:5], v6, {WS}, s{sT0} offen offset:{i*8}")
a("L_end:\ns_endpgm")
body = a.text()
if STAMPS:
    zi = "".join(f"s_mov_b32 s{sST+i}, 0\n" for i in range(16, 2 * NST))
    body = body.replace("@@ZI@@", zi)
body, n = fix(body)
print(wrap(body, 256, 256, LDS_SIZE, NVGPR, 102, pad=(PAD if PAD >= 0 else None)))
print(f"; inserted {n} nops", file=sys.stderr)
```

```python
import sys
from asmgen import *
from hazard import fix

STAMPS = "--stamps" in sys.argv
def opt(name, default):
    for x in sys.argv:
        if x.startswith(f"--{name}="):
            return type(default)(x.split("=", 1)[1])
    return default
NT = opt("nt", "nt")
SLQ = opt("slq", 1); SLB = opt("slb", 0); SLH = opt("slh", 1); SLE = opt("sle", 0)
DLC = opt("dlc", 10); STGC = opt("stgc", 5); STGE = opt("stge", 3); FORCEG = opt("forceg", 0)
KDELAY = opt("kdelay", 1)
EARLYG = opt("earlyg", 0)
ROWPOS = opt("rowpos", "early")
DLE = opt("dle", 0)
EPIPE = opt("epipe", 1)
CPIPE = opt("cpipe", 1)
FW2 = opt("fw2", 0)
EFLAG = opt("eflag", 1)
DLE2 = opt("dle2", 1)
ROWPRE = opt("rowpre", 0)
VORD = opt("vord", 0)
PAD = opt("pad", 3328)
WARM = opt("warm", 1)
FALIGN = opt("falign", 1)
OPT1 = opt("opt1", 1)
EPEARLY = opt("epearly", 1)
OUTSC = opt("outsc", "")
BEARLY = opt("bearly", 1)
DUALQ = opt("dualq", 1)
PTH = opt("pth", 0)
SPINMAX = 0x200000

PH = 0x1000; PF = 0x6000; QP_G = 0x40000; QTOG = 0x20000; PB = 0x80000; PC = 0x100000; PE = 0x140000; STAMP = 0x8000000
KL = 0x0; WL = 0x8000; XN = 0x10000; OL = 0x11000; ML = 0x13400; QP = 0x13480; OB = 0x13900; AL = 0x13980
QL = 0x13B00; MF = 0x13F40; HL = 0x13F80; LDS_SIZE = 86016
sG, sJ, sW, sSPIN, sRO = 3, 4, 5, 6, 7
SX, SK, SV, SROW, SWS = 8, 12, 16, 20, 24
pWO, pW2, pW1, pOUT = 28, 30, 32, 34
sSTA, sSTB, sLM, sXO, sQS, sX2 = 36, 37, 38, 39, 40, 41
sKV, sKV1, sTAG, sTAGB = 44, 45, 46, 47
sT0, sT1, sT2, sT3 = 48, 49, 50, 51
sM1, sM2, sM3 = 52, 54, 56
sLOG2E, sSCALE = 58, 60
sQG, sBP, sSEL0, sSEL1, sF, sTBX, sMODE, sBA = 62, 63, 64, 65, 66, 67, 68, 69
sQ1, sQ2, sQ3 = 42, 43, 2 + 0
sST = 70; NST = 15
sQ3 = 100
vLane, vN, vS = 1, 2, 3
vKD = 4
vVA, vQA = 8, 9
vT = 10
vOW, vMW, vORD, vQW, vQR, vMR, vBP = 10, 11, 12, 16, 17, 18, 19
vKR = 20
vW1, vW1b, vBA, vMFW, vXCA = 24, 25, 26, 27, 28
vTMP = 29
vKF = 32; vVR = 64; vVF = 96; vQ = 128; vQ2 = 144; vO = 160; vS0 = 192; vU = 200
vXA, vXR, vTQ = 240, 241, 242
vW1c = 247; vXC, vEP, vH, vPT = 248, 249, 250, 251; vONE = 252
NVGPR = 256

DOC = """; ---------------------------------------------------------------------------------------------
; ---------------------------------------------------------------------------------------------
"""
a = Asm()
def stamp(i):
    if STAMPS: a(f"s_memrealtime s[{sST+2*i}:{sST+2*i+1}]")
def setexec(mask):
    if mask == -1: a("s_mov_b64 exec, -1"); return
    if mask <= 64: a(f"s_mov_b64 exec, {mask}"); return
    a(f"s_mov_b32 exec_lo, {hex(mask & 0xffffffff)}\ns_mov_b32 exec_hi, {hex(mask >> 32)}")
def spin(loop):
    a(f"s_add_u32 s{sSPIN}, s{sSPIN}, 1\ns_cmp_lt_u32 s{sSPIN}, {SPINMAX}\ns_cbranch_scc1 {loop}\ns_branch L_fin")
def unpack8(src, dst):
    for i in range(4):
        a(f"v_lshlrev_b32 v{dst+2*i}, 16, v{src+i}\nv_and_b32 v{dst+2*i+1}, 0xffff0000, v{src+i}")
def round_bf16(r):
    a(f"v_cvt_pk_bf16_f32 v{r}, v{r}, v{r}\nv_lshlrev_b32 v{r}, 16, v{r}")
def allreduce(regs, op, tmps, steps=(8, 4, 2, 1)):
    for st in steps:
        for r in regs: a(f"{op}_dpp v{r}, v{r}, v{r} row_ror:{st} row_mask:0xf bank_mask:0xf")
    for sw in ("v_permlane16_swap_b32", "v_permlane32_swap_b32"):
        for r, t in zip(regs, tmps): a(f"v_mov_b32 v{t}, v{r}")
        for r, t in zip(regs, tmps): a(f"{sw} v{r}, v{t}")
        for r, t in zip(regs, tmps): a(f"{op} v{r}, v{r}, v{t}")
def perms(raw, frag, b):
    for e in range(8):
        sel = sSEL1 if e & 1 else sSEL0
        for h in range(2):
            r0 = raw + (b * 4 + 2 * h) * 4 + (e >> 1); r1 = raw + (b * 4 + 2 * h + 1) * 4 + (e >> 1)
            a(f"v_perm_b32 v{frag + e*4 + 2*b + h}, v{r1}, v{r0}, s{sel}")
def mfma(d, A, B, c):
    cs = "0" if c is None else f"v[{c}:{c+3}]"
    a(f"v_mfma_f32_16x16x32_bf16 v[{d}:{d+3}], v[{A}:{A+3}], v[{B}:{B+3}], {cs}")
_ls = [0]
def local_store(text):
    _ls[0] += 1; k = _ls[0]
    a(f"s_cmp_lg_u32 s{sMODE}, 0\ns_cbranch_scc1 L_lsg{k}\n{text}\ns_branch L_lsd{k}\nL_lsg{k}:\n{text} sc1\nL_lsd{k}:")
def tagcheck(base, n, acc):
    for i in range(n):
        a(f"v_xor_b32 v{base+4*i+2}, s{sTAG}, v{base+4*i+2}\nv_xor_b32 v{base+4*i+3}, s{sTAGB}, v{base+4*i+3}")
    a(f"v_or_b32 v{acc}, v{base+2}, v{base+3}")
    for i in range(1, n): a(f"v_or3_b32 v{acc}, v{acc}, v{base+4*i+2}, v{base+4*i+3}")
    a(f"v_cmp_ne_u32 vcc, 0, v{acc}")
WS = f"s[{SWS}:{SWS+3}]"

vX = vU; vXF = vU + 4; vA1, vA2, vA3 = vU + 12, vU + 13, vU + 14; vX2 = vU + 16; vPK = vQ2
vWQ = vTMP
vQPW, vQPR, vQPS = vU + 20, vU + 21, vU + 22
vGq = vU + 36

def blk_prologue():
    stamp(0)
    a(f"""
    s_lshr_b32 s{sJ}, s2, 3
    s_load_dwordx2 s[{SROW}:{SROW+1}], s[0:1], 24
    s_load_dwordx2 s[{SX}:{SX+1}], s[0:1], 0
    s_load_dwordx2 s[{SWS}:{SWS+1}], s[0:1], 80
    s_cmp_ge_u32 s{sJ}, 32
    s_cbranch_scc1 L_end
    v_lshrrev_b32 v{vT}, 6, v0
    v_and_b32 v{vLane}, 63, v0
    v_readfirstlane_b32 s{sW}, v{vT}
    v_bfe_u32 v{vS}, v0, 4, 2
    v_and_b32 v{vT+1}, 7, v0
    v_lshlrev_b32 v{vT+2}, 1, v{vS}
    v_xor_b32 v{vT+1}, v{vT+1}, v{vT+2}
    v_lshrrev_b32 v{vT}, 3, v{vLane}
    v_lshlrev_b32 v{vT}, 13, v{vT}
    v_lshl_or_b32 v{vWQ}, v{vT+1}, 4, v{vT}
    s_and_b32 s{sG}, s2, 7
    s_lshl_b32 s{sT1}, s{sG}, 10
    s_and_b32 s{sT2}, s{sJ}, 7
    s_lshl_b32 s{sT2}, s{sT2}, 7
    s_add_u32 s{sT1}, s{sT1}, s{sT2}
    s_lshr_b32 s{sT2}, s{sJ}, 3
    s_lshl_b32 s{sT2}, s{sT2}, 2
    s_add_u32 s{sT2}, s{sT2}, s{sW}
    s_lshl_b32 s{sX2}, s{sT2}, 6
    s_lshl_b32 s{sT2}, s{sT2}, 18
    s_add_u32 s{sT1}, s{sT1}, s{sT2}
    s_lshl_b32 s{sT2}, s{sW}, 12
    s_bitset1_b32 s{sT2}, 15
    s_mov_b32 m0, s{sT2}
    s_lshl_b32 s{SROW+3}, 1, 17
    s_lshl_b32 s{SROW+2}, 1, 22
    s_movk_i32 s{SX+2}, 0x400
    s_mov_b32 s{SX+3}, s{SROW+3}
    s_lshl_b32 s{SWS+2}, 1, 28
    s_mov_b32 s{SWS+3}, s{SROW+3}
    s_mov_b32 s{sT3}, {8 * 8192 - 1024}
    v_lshlrev_b32 v{vT}, 4, v{vLane}
    v_and_b32 v{vN}, 15, v0
    v_lshlrev_b32 v{vT+3}, 2, v{vN}
    s_waitcnt lgkmcnt(0)""")
    a(f"buffer_load_dwordx4 v[{vX}:{vX+3}], v{vT}, s[{SX}:{SX+3}], 0 offen")
    a(f"buffer_load_dword v{vX2}, v{vT+3}, s[{SX}:{SX+3}], s{sX2} offen")
    for i in range(4):
        a(f"buffer_load_dwordx4 v{vWQ}, s[{SROW}:{SROW+3}], s{sT1} offen offset:{i * 1024} {NT} lds")
        if i < 3: a(f"s_add_u32 s{sT1}, s{sT1}, s{sT3}")
    stamp(1)
    a(f"""
    s_load_dwordx2 s[{SK}:{SK+1}], s[0:1], 8
    s_load_dwordx2 s[{SV}:{SV+1}], s[0:1], 16
    buffer_load_dword v{vEP}, off, {WS}, 0 sc1
    s_load_dwordx2 s[{pWO}:{pWO+1}], s[0:1], 32
    s_load_dwordx2 s[{pW1}:{pW1+1}], s[0:1], 48
    s_load_dwordx2 s[{pW2}:{pW2+1}], s[0:1], 56
    s_load_dwordx2 s[{pOUT}:{pOUT+1}], s[0:1], 64""")

def blk_issue_K():
    a(f"""
    s_lshl_b32 s{sKV}, s{sG}, 23
    s_lshl_b32 s{sT0}, s{sJ}, 12
    s_add_u32 s{sKV}, s{sKV}, s{sT0}
    s_lshl_b32 s{sT0}, s{sW}, 18
    s_add_u32 s{sKV}, s{sKV}, s{sT0}
    s_add_u32 s{sKV}, s{sKV}, 7340032
    s_add_u32 s{sKV1}, s{sKV}, 131072
    v_xor_b32 v{vTMP}, v{vN}, v{vS}
    v_lshlrev_b32 v{vTMP}, 4, v{vTMP}
    v_lshl_or_b32 v{vKD}, v{vS}, 8, v{vTMP}
    v_xor_b32 v{vKD+1}, 64, v{vKD}
    v_xor_b32 v{vKD+2}, 128, v{vKD}
    v_xor_b32 v{vKD+3}, 192, v{vKD}
    s_lshl_b32 s{sT0}, s{sW}, 13
    s_mov_b32 m0, s{sT0}
    s_mov_b32 s{SK+2}, 67108864
    s_mov_b32 s{SK+3}, 0x20000
    s_waitcnt lgkmcnt(0)""")
    for i in range(4):
        a(f"buffer_load_dwordx4 v{vKD+i}, s[{SK}:{SK+3}], s{sKV} offen offset:{i*1024} {NT} lds")
    a(f"s_add_u32 s{sT0}, s{sT0}, 4096\ns_mov_b32 m0, s{sT0}")
    for i in range(4):
        a(f"buffer_load_dwordx4 v{vKD+i}, s[{SK}:{SK+3}], s{sKV1} offen offset:{i*1024} {NT} lds")

def blk_pre_q():
    t = vTMP
    a(f"""
    s_mov_b32 s{SV+2}, 67108864
    s_mov_b32 s{SV+3}, 0x20000
    v_lshlrev_b32 v{t}, 4, v{vN}
    v_lshl_or_b32 v{vVA}, v{vS}, 10, v{t}
    s_mov_b32 s{sSPIN}, 0
    s_mov_b32 s{sSEL0}, 0x05040100
    s_mov_b32 s{sSEL1}, 0x07060302
    s_mov_b32 s{sLOG2E}, 0x3fb8aa3b
    s_mov_b32 s{sLOG2E+1}, 0x3fb8aa3b
    s_mov_b32 s{sSCALE}, 0x3db504f3
    s_mov_b32 s{sSCALE+1}, 0x3db504f3
    v_cmp_eq_u32 s[{sM1}:{sM1+1}], 1, v{vS}
    v_cmp_eq_u32 s[{sM2}:{sM2+1}], 2, v{vS}
    v_cmp_eq_u32 s[{sM3}:{sM3+1}], 3, v{vS}
    s_lshl_b32 s{sT0}, s{sW}, 6
    s_add_u32 s{sT0}, s{sT0}, {XN}
    v_bfe_u32 v{t}, v{vN}, 1, 2
    v_lshlrev_b32 v{vXA}, 4, v{t}
    v_lshrrev_b32 v{t}, 3, v{vN}
    v_lshl_or_b32 v{vXA}, v{t}, 3, v{vXA}
    v_and_b32 v{t}, 1, v{vN}
    v_lshl_or_b32 v{vXA}, v{t}, 2, v{vXA}
    v_add_u32 v{vXA}, s{sT0}, v{vXA}
    v_lshl_add_u32 v{vXR}, v{vS}, 4, s{sT0}
    s_lshl_b32 s{sT0}, s{sW}, 12
    s_add_u32 s{sT0}, s{sT0}, {WL}
    v_lshrrev_b32 v{t}, 2, v{vN}
    v_lshl_or_b32 v{t+1}, v{vS}, 2, v{t}
    v_bfe_u32 v{t+2}, v{t+1}, 1, 2
    v_lshlrev_b32 v{t+1}, 7, v{t+1}
    v_lshl_or_b32 v{t+1}, v{t+2}, 5, v{t+1}
    v_and_b32 v{t+2}, 3, v{vN}
    v_lshl_or_b32 v{t+1}, v{t+2}, 3, v{t+1}
    v_add_u32 v{vTQ}, s{sT0}, v{t+1}
    v_xor_b32 v{vTQ+1}, 32, v{vTQ}
    v_xor_b32 v{vTQ+2}, 64, v{vTQ}
    v_xor_b32 v{vTQ+3}, 96, v{vTQ}
    s_lshl_b32 s{sT0}, s{sW}, 2
    s_add_u32 s{sT0}, s{sT0}, {QP}
    v_lshl_add_u32 v{vQPW}, v{vLane}, 4, s{sT0}
    s_lshl_b32 s{sT0}, s{sW}, 8
    s_add_u32 s{sT0}, s{sT0}, {QP}
    v_lshl_add_u32 v{vQPR}, v{vN}, 4, s{sT0}
    s_lshl_b32 s{sQG}, s{sG}, 14
    s_add_u32 s{sQG}, s{sQG}, {QP_G}
    s_lshr_b32 s{sT0}, s{sJ}, 3
    s_lshl_b32 s{sT0}, s{sT0}, 12
    s_and_b32 s{sT1}, s{sJ}, 7
    s_lshl_b32 s{sT1}, s{sT1}, 9
    s_add_u32 s{sT0}, s{sT0}, s{sT1}
    s_lshl_b32 s{sT1}, s{sW}, 7
    s_add_u32 s{sT0}, s{sT0}, s{sT1}
    s_add_u32 s{sQS}, s{sT0}, s{sQG}
    v_lshrrev_b32 v{vQPS}, 1, v{vN}
    v_lshlrev_b32 v{vQPS}, 4, v{vQPS}""")

def blk_pre_att():
    t = vTMP
    a(f"""
    s_lshl_b32 s{sT0}, s{sW}, 13
    v_xor_b32 v{t}, v{vN}, v{vS}
    v_lshlrev_b32 v{t}, 4, v{t}
    v_lshl_or_b32 v{t}, v{vN}, 8, v{t}
    v_add_u32 v{vKR}, s{sT0}, v{t}
    v_xor_b32 v{vKR+1}, 64, v{vKR}
    v_xor_b32 v{vKR+2}, 128, v{vKR}
    v_xor_b32 v{vKR+3}, 192, v{vKR}
    v_mov_b32 v{vONE}, 0x3f803f80
    v_mov_b32 v{vONE+1}, 0x3f803f80
    v_mov_b32 v{vONE+2}, 0x3f803f80
    v_mov_b32 v{vONE+3}, 0x3f803f80
    s_mul_i32 s{sT0}, s{sW}, 272
    s_add_u32 s{sT0}, s{sT0}, {QL}
    v_lshl_add_u32 v{vQW}, v{vLane}, 2, s{sT0}
    v_lshrrev_b32 v{vQR}, 2, v{vN}
    v_mul_u32_u24 v{vQR}, 272, v{vQR}
    v_lshl_add_u32 v{vQR}, v{vS}, 4, v{vQR}
    v_add_u32 v{vQR}, {QL}, v{vQR}
    s_lshl_b32 s{sT0}, s{sW}, 10
    s_add_u32 s{sQG}, s{sQG}, s{sT0}
    {"" if DUALQ else "s_xor_b32 s%d, s%d, %d" % (sQG, sQG, QTOG)}
    s_add_u32 s{sQ1}, s{sQG}, 4096
    s_add_u32 s{sQ2}, s{sQG}, 8192
    s_add_u32 s{sQ3}, s{sQG}, 12288
    v_lshlrev_b32 v{vQA}, 4, v{vLane}
    s_mul_i32 s{sT0}, s{sW}, 2304
    s_add_u32 s{sT0}, s{sT0}, {OL}
    v_mul_u32_u24 v{vOW}, 576, v{vS}
    v_mad_u32_u24 v{vOW}, v{vN}, 36, v{vOW}
    v_add_u32 v{vOW}, s{sT0}, v{vOW}
    s_lshl_b32 s{sT0}, s{sW}, 3
    s_add_u32 s{sT0}, s{sT0}, {ML}
    v_lshlrev_b32 v{vMW}, 5, v{vS}
    v_add_u32 v{vMW}, s{sT0}, v{vMW}
    s_mul_i32 s{sT0}, s{sW}, 576
    s_add_u32 s{sT0}, s{sT0}, {OL}
    v_lshrrev_b32 v{vORD}, 2, v{vLane}
    v_mul_u32_u24 v{vORD}, 36, v{vORD}
    v_and_b32 v{vORD+1}, 3, v{vLane}
    v_lshl_add_u32 v{vORD}, v{vORD+1}, 3, v{vORD}
    v_add_u32 v{vORD}, s{sT0}, v{vORD}
    v_add_u32 v{vORD+1}, 2304, v{vORD}
    v_add_u32 v{vORD+2}, 4608, v{vORD}
    v_add_u32 v{vORD+3}, 6912, v{vORD}
    s_lshl_b32 s{sT0}, s{sW}, 5
    s_add_u32 s{sT0}, s{sT0}, {ML}
    v_mov_b32 v{vMR}, s{sT0}
    s_lshl_b32 s{sT0}, s{sW}, 2
    s_add_u32 s{sT0}, s{sT0}, {MF}
    v_mov_b32 v{vMFW}, s{sT0}
    s_lshl_b32 s{sT0}, s{sG}, 4
    s_lshl_b32 s{sT1}, s{sW}, 2
    s_add_u32 s{sT0}, s{sT0}, s{sT1}
    s_lshl_b32 s{sT0}, s{sT0}, 5
    s_add_u32 s{sT0}, s{sT0}, s{sJ}
    s_lshl_b32 s{sT0}, s{sT0}, 7
    s_add_u32 s{sBP}, s{sT0}, {PB}
    v_lshrrev_b32 v{vBP}, 1, v{vN}
    v_lshlrev_b32 v{vBP}, 4, v{vBP}
    v_lshl_or_b32 v{vBP}, v{vS}, 12, v{vBP}
    v_lshlrev_b32 v{t}, 1, v{vS}
    v_xor_b32 v{t}, v{t}, v{vN}
    v_lshlrev_b32 v{t}, 4, v{t}
    v_lshl_or_b32 v{vW1}, v{vS}, 10, v{t}
    v_xor_b32 v{vW1b}, 128, v{vW1}
    s_mov_b32 s{sSTA}, {4096 - 1024}
    s_mov_b32 s{sSTB}, {4096 + 3072}
    s_lshl_b32 s{sLM}, s{sW}, 13
    s_lshr_b32 s{sXO}, s{sJ}, 1
    s_lshl_b32 s{sXO}, s{sXO}, 7
    s_and_b32 s{sT0}, s{sJ}, 1
    s_lshl_b32 s{sT0}, s{sT0}, 4
    s_add_u32 s{sXO}, s{sXO}, s{sT0}
    v_bfe_u32 v{vXCA}, v{vLane}, 3, 2
    v_lshlrev_b32 v{vXCA}, 5, v{vXCA}
    v_and_b32 v{t}, 7, v{vLane}
    v_lshl_or_b32 v{vXCA}, v{t}, 1, v{vXCA}
    s_cmp_ge_u32 s{sJ}, 16
    s_cbranch_scc1 L_pre_f
    s_lshl_b32 s{sF}, s{sG}, 4
    s_add_u32 s{sF}, s{sF}, s{sJ}
    s_lshl_b32 s{sBA}, s{sF}, 12
    s_add_u32 s{sBA}, s{sBA}, {PB}
    s_lshl_b32 s{sT0}, s{sW}, 5
    s_add_u32 s{sBA}, s{sBA}, s{sT0}
    v_lshrrev_b32 v{vBA}, 1, v{vLane}
    v_lshlrev_b32 v{vBA}, 7, v{vBA}
    v_and_b32 v{t}, 1, v{vLane}
    v_lshl_or_b32 v{vBA}, v{t}, 4, v{vBA}
    v_mov_b32 v{vW1c}, 0
    s_mov_b32 s{sT2}, 4194304
    s_waitcnt lgkmcnt(0)
    s_mov_b32 s{sT0}, s{pWO}
    s_mov_b32 s{sT1}, s{pWO+1}
    s_branch L_pre_d
L_pre_f:
    s_mul_i32 s{sF}, s{sG}, 7
    s_add_u32 s{sF}, s{sF}, s{sJ}
    s_sub_u32 s{sF}, s{sF}, 16
    s_lshl_b32 s{sBA}, s{sG}, 11
    s_add_u32 s{sBA}, s{sBA}, {PH}
    v_lshlrev_b32 v{vBA}, 5, v{vLane}
    v_lshrrev_b32 v{t}, 2, v{vLane}
    v_mul_u32_u24 v{vW1c}, 3584, v{t}
    v_and_b32 v{t}, 3, v{vLane}
    v_lshlrev_b32 v{t+1}, 1, v{vS}
    v_and_b32 v{t+1}, 2, v{t+1}
    v_xor_b32 v{t}, v{t}, v{t+1}
    v_lshl_add_u32 v{vW1c}, v{t}, 4, v{vW1c}
    s_cmp_ge_u32 s{sJ}, {0 if FW2 else 23}
    s_cselect_b32 s{sT2}, 0, 1835008
    s_waitcnt lgkmcnt(0)
    s_mov_b32 s{sT0}, s{pW2}
    s_mov_b32 s{sT1}, s{pW2+1}
L_pre_d:
    s_mov_b32 s{SROW}, s{sT0}
    s_mov_b32 s{SROW+1}, s{sT1}
    s_mov_b32 s{SROW+2}, s{sT2}
    s_lshl_b32 s{sRO}, s{sF}, 15
    s_lshl_b32 s{sT0}, s{sW}, 8
    s_add_u32 s{sRO}, s{sRO}, s{sT0}""")


def tagcalc():
    a(f"""
    v_readfirstlane_b32 s{sTAG}, v{vEP}
    s_getreg_b32 s{sTBX}, hwreg(HW_REG_XCC_ID)
    s_nop 1
    s_add_u32 s{sTAG}, s{sTAG}, 0x9e3779b8
    s_or_b32 s{sTAG}, s{sTAG}, 1
    s_xor_b32 s{sTAGB}, s{sTAG}, 0x5bd1e994
    s_and_b32 s{sTBX}, s{sTBX}, 7
    s_xor_b32 s{sTBX}, s{sTBX}, s{sTAGB}""")

def issue_V(b):
    for jj in range(4):
        r = vVR + (b * 4 + jj) * 4
        a(f"buffer_load_dwordx4 v[{r}:{r+3}], v{vVA}, s[{SV}:{SV+3}], s{sKV1 if b else sKV} offen offset:{jj*256} {NT}")

def blk_ln(extra=0):
    a(f"s_waitcnt vmcnt({14 + extra})")
    unpack8(vX, vXF)
    a(f"""
    v_pk_add_f32 v[{vPK}:{vPK+1}], v[{vXF}:{vXF+1}], v[{vXF+2}:{vXF+3}]
    v_pk_add_f32 v[{vPK+2}:{vPK+3}], v[{vXF+4}:{vXF+5}], v[{vXF+6}:{vXF+7}]
    v_pk_add_f32 v[{vPK}:{vPK+1}], v[{vPK}:{vPK+1}], v[{vPK+2}:{vPK+3}]
    v_add_f32 v{vA1}, v{vPK}, v{vPK+1}""")
    allreduce([vA1], "v_add_f32", [vA2])
    a(f"v_mul_f32 v{vA1}, 0xbb000000, v{vA1}\nv_mov_b32 v{vA2}, v{vA1}")
    for i in range(4):
        a(f"v_pk_add_f32 v[{vPK+2*i}:{vPK+2*i+1}], v[{vXF+2*i}:{vXF+2*i+1}], v[{vA1}:{vA2}]")
    a(f"v_pk_mul_f32 v[{vXF}:{vXF+1}], v[{vPK}:{vPK+1}], v[{vPK}:{vPK+1}]")
    for i in range(1, 4):
        a(f"v_pk_fma_f32 v[{vXF}:{vXF+1}], v[{vPK+2*i}:{vPK+2*i+1}], v[{vPK+2*i}:{vPK+2*i+1}], v[{vXF}:{vXF+1}]")
    a(f"v_add_f32 v{vA2}, v{vXF}, v{vXF+1}\nv_mul_f32 v{vA1}, -1.0, v{vA1}")
    allreduce([vA2], "v_add_f32", [vA3])
    a(f"v_mul_f32 v{vA2}, 0x3b000000, v{vA2}")
    round_bf16(vA1); round_bf16(vA2)
    a(f"v_add_f32 v{vA2}, 0x3727c5ac, v{vA2}")
    round_bf16(vA2)
    a(f"v_sqrt_f32 v{vA2}, v{vA2}")
    round_bf16(vA2)
    a(f"""
    v_rcp_f32 v{vA3}, v{vA2}
    s_waitcnt vmcnt({13 + extra})
    v_lshlrev_b32 v{vXF}, 16, v{vX2}
    v_and_b32 v{vXF+1}, 0xffff0000, v{vX2}
    v_sub_f32 v{vXF}, v{vXF}, v{vA1}
    v_sub_f32 v{vXF+1}, v{vXF+1}, v{vA1}
    v_cvt_pk_bf16_f32 v{vX2}, v{vXF}, v{vXF+1}
    v_lshlrev_b32 v{vXF}, 16, v{vX2}
    v_and_b32 v{vXF+1}, 0xffff0000, v{vX2}
    v_mul_f32 v{vXF+2}, v{vXF}, v{vA3}
    v_mul_f32 v{vXF+3}, v{vXF+1}, v{vA3}
    v_fma_f32 v{vXF}, -v{vXF+2}, v{vA2}, v{vXF}
    v_fma_f32 v{vXF+1}, -v{vXF+3}, v{vA2}, v{vXF+1}
    v_fma_f32 v{vXF}, v{vXF}, v{vA3}, v{vXF+2}
    v_fma_f32 v{vXF+1}, v{vXF+1}, v{vA3}, v{vXF+3}
    v_cvt_pk_bf16_f32 v{vX2}, v{vXF}, v{vXF+1}""")
    setexec(0xffff)
    a(f"ds_write_b32 v{vXA}, v{vX2}")
    setexec(-1)
    a(f"""
    s_waitcnt lgkmcnt(0)
    ds_read_b128 v[{vQ}:{vQ+3}], v{vXR}""")

def blk_qphase(nv=4):
    a(f"s_waitcnt vmcnt({8 + nv})")
    stamp(2)
    for c in range(4):
        r = vKF + c * 4
        a(f"ds_read_b64_tr_b16 v[{r}:{r+1}], v{vTQ+c}\nds_read_b64_tr_b16 v[{r+2}:{r+3}], v{vTQ+c} offset:2048")
    tagcalc()
    a(f"v_mov_b32 v{vGq+2}, s{sTAG}\nv_mov_b32 v{vGq+3}, s{sTBX}")
    a("s_waitcnt lgkmcnt(0)")
    for c in range(4): mfma(vO + 4 * c, vQ, vKF + 4 * c, None)
    t = vU
    a(f"""
    v_cndmask_b32 v{t}, v{vO}, v{vO+4}, s[{sM1}:{sM1+1}]
    v_cndmask_b32 v{t}, v{t}, v{vO+8}, s[{sM2}:{sM2+1}]
    v_cndmask_b32 v{t}, v{t}, v{vO+12}, s[{sM3}:{sM3+1}]
    ds_write_b32 v{vQPW}, v{t}
    s_waitcnt lgkmcnt(0)
    s_barrier
    ds_read_b128 v[{t+4}:{t+7}], v{vQPR}
    s_waitcnt lgkmcnt(0)
    v_pk_add_f32 v[{t+4}:{t+5}], v[{t+4}:{t+5}], v[{t+6}:{t+7}]
    v_add_f32 v{vGq}, v{t+4}, v{t+5}
    v_mov_b32_dpp v{vGq+1}, v{vGq} quad_perm:[1,1,3,3] row_mask:0xf bank_mask:0xf""")
    setexec(0x5555)
    if DUALQ:
        a(f"buffer_store_dwordx4 v[{vGq}:{vGq+3}], v{vQPS}, {WS}, s{sQS} offen")
    a(f"s_xor_b32 s{sQS}, s{sQS}, {QTOG}")
    a(f"buffer_store_dwordx4 v[{vGq}:{vGq+3}], v{vQPS}, {WS}, s{sQS} offen sc1")
    setexec(-1)
    stamp(3)

vQG = vQ2
def issue_qpoll():
    for kq, so in enumerate((sQG, sQ1, sQ2, sQ3)):
        a(f"buffer_load_dwordx4 v[{vQG+4*kq}:{vQG+4*kq+3}], v{vQA}, {WS}, s{so} offen sc1")
def row_load(i):
    if i == 0: a(f"s_mov_b32 m0, s{sLM}")
    if i == 4: a(f"s_add_u32 s{sLM}, s{sLM}, 4096\ns_mov_b32 m0, s{sLM}")
    a(f"buffer_load_dwordx4 v{vW1b if i & 1 else vW1}, s[{SROW}:{SROW+3}], s{sRO} offen offset:{(i & 3)*1024} {NT} lds")
    if i < 7: a(f"s_add_u32 s{sRO}, s{sRO}, s{sSTB if (i & 3) == 3 else sSTA}")
_rows = [0]
SCHED = {"early": [2, 0, 2, 1, 1, 1, 1, 0], "spread": [1] * 8, "burst": [4, 0, 4, 0, 0, 0, 0, 0]}[ROWPOS]
def row_slot(i):
    n = 8 if i == 7 else SCHED[i]
    for _ in range(n):
        if _rows[0] < 8:
            row_load(_rows[0]); _rows[0] += 1
def xc_pt():
    a(f"buffer_load_ushort v{vXC}, v{vXCA}, s[{SX}:{SX+3}], s{sXO} offen")
    a(f"buffer_load_dword v{vPT}, v{vBA}, {WS}, s{sBA} offen sc1")

blk_prologue()
if KDELAY == 2:
    blk_pre_q(); blk_pre_att(); blk_issue_K()
elif KDELAY == 1:
    blk_pre_q(); blk_issue_K()
else:
    blk_issue_K(); blk_pre_q()
NQS = 2 if DUALQ else 1
if VORD == 0:
    blk_ln(); issue_V(0); blk_qphase(4); issue_V(1)
    WK, WV0, WV1 = 8 + NQS, 4 + NQS, 2
elif VORD == 1:
    blk_ln(); issue_V(0); issue_V(1); blk_qphase(8)
    WK, WV0, WV1 = 8 + NQS, 4 + NQS, 2 + NQS
elif VORD == 2:
    issue_V(0); blk_ln(4); issue_V(1); blk_qphase(8)
    WK, WV0, WV1 = 8 + NQS, 4 + NQS, 2 + NQS
if KDELAY != 2: blk_pre_att()
if WARM == 1:
    a("s_branch L_warm1\nL_warm_ret:")
elif WARM == 2:
    a(f"s_cmp_ge_u32 s{sJ}, 16\ns_cbranch_scc1 L_warm1\ns_branch L_warm2\nL_warm_ret:")
a(f"s_waitcnt vmcnt({WK})")
stamp(4)
for b in range(2):
    for i in range(4):
        r = vKF + (b * 4 + i) * 4
        a(f"ds_read_b128 v[{r}:{r+3}], v{vKR+i} offset:{b*4096}")
a(f"s_waitcnt vmcnt({WV0})")
perms(vVR, vVF, 0)
if EARLYG:
    issue_qpoll()
    a("s_waitcnt lgkmcnt(0)")
    for i in range(8): row_load(i)
    _rows[0] = 8
    xc_pt()
    a("s_waitcnt vmcnt(14)")
    perms(vVR, vVF, 1)
    stamp(5)
    a("s_waitcnt vmcnt(10)\ns_branch L_qchk0")
elif ROWPRE:
    a("s_waitcnt vmcnt(2)")
    issue_qpoll()
    a("s_waitcnt vmcnt(4) lgkmcnt(0)")
    for i in range(ROWPRE): row_load(i)
    _rows[0] = ROWPRE
    perms(vVR, vVF, 1)
    stamp(5)
    a(f"s_waitcnt vmcnt({ROWPRE})\ns_branch L_qchk0")
else:
    a(f"s_waitcnt vmcnt({WV1})")
    issue_qpoll()
    if not OPT1:
        a(f"s_waitcnt vmcnt({4 + (NQS if VORD else 0)})")
        perms(vVR, vVF, 1)
    stamp(5)
t = vU
a(f"""
L_qcheck:
    s_waitcnt vmcnt(0)
L_qchk0:
    v_add_f32 v{t}, v{vQG}, v{vQG+4}
    v_add_f32 v{t+1}, v{vQG+1}, v{vQG+5}
    v_add_f32 v{t+2}, v{vQG+8}, v{vQG+12}
    v_add_f32 v{t+3}, v{vQG+9}, v{vQG+13}
    v_add_f32 v{t}, v{t}, v{t+2}
    v_add_f32 v{t+1}, v{t+1}, v{t+3}
    v_xor_b32 v{vQG+2}, s{sTAG}, v{vQG+2}
    v_cvt_pk_bf16_f32 v{t}, v{t}, v{t+1}
    v_xor_b32 v{vQG+6}, s{sTAG}, v{vQG+6}
    ds_write_b32 v{vQW}, v{t}
    v_xor_b32 v{vQG+10}, s{sTAG}, v{vQG+10}
    v_xor_b32 v{vQG+14}, s{sTAG}, v{vQG+14}
    v_or3_b32 v{vQG+2}, v{vQG+2}, v{vQG+6}, v{vQG+10}
    v_or_b32 v{vQG+2}, v{vQG+2}, v{vQG+14}
    v_cmp_ne_u32 vcc, 0, v{vQG+2}
    s_cbranch_vccz L_qok
    {"s_sleep %d" % SLQ if SLQ else ""}""")
if DUALQ:
    for r in (sQG, sQ1, sQ2, sQ3): a(f"s_xor_b32 s{r}, s{r}, {QTOG}")
issue_qpoll()
spin("L_qcheck")
a("L_qok:\ns_waitcnt lgkmcnt(0)\ns_barrier")
for i in range(4): a(f"ds_read_b128 v[{vQ+4*i}:{vQ+4*i+3}], v{vQR} offset:{i*64}")
stamp(6)
row_slot(0)
a(f"""
    v_xor_b32 v{vQG+3}, s{sTBX}, v{vQG+3}
    v_xor_b32 v{vQG+7}, s{sTBX}, v{vQG+7}
    v_xor_b32 v{vQG+11}, s{sTBX}, v{vQG+11}
    v_xor_b32 v{vQG+15}, s{sTBX}, v{vQG+15}
    v_or3_b32 v{vQG+3}, v{vQG+3}, v{vQG+7}, v{vQG+11}
    v_or_b32 v{vQG+3}, v{vQG+3}, v{vQG+15}
    v_cmp_ne_u32 vcc, 0, v{vQG+3}
    s_cmp_lg_u64 vcc, 0
    s_cselect_b32 s{sMODE}, 1, 0
    v_mov_b32 v{vTMP}, s{sMODE}""")
row_slot(1)
a("s_waitcnt lgkmcnt(0)")
for i in range(4):
    for b in range(2): mfma(vS0 + 4 * b, vKF + (b * 4 + i) * 4, vQ + 4 * i, None if i == 0 else vS0 + 4 * b)
vP = vU; vR4 = vU + 8; vM = vU + 12; vMT = vU + 14
if OPT1 and not EARLYG and not ROWPRE:
    perms(vVR, vVF, 1)
a(f"ds_write_b32 v{vMFW}, v{vTMP}")
row_slot(2)
for i in range(4): a(f"v_cvt_pk_bf16_f32 v{vR4+i}, v{vS0+2*i}, v{vS0+2*i+1}")
unpack8(vR4, vP)
row_slot(3)
for i in range(4): a(f"v_pk_mul_f32 v[{vP+2*i}:{vP+2*i+1}], v[{vP+2*i}:{vP+2*i+1}], s[{sSCALE}:{sSCALE+1}]")
for i in range(4): a(f"v_cvt_pk_bf16_f32 v{vR4+i}, v{vP+2*i}, v{vP+2*i+1}")
unpack8(vR4, vP)
row_slot(4)
a(f"""
    v_max3_f32 v{vM}, v{vP}, v{vP+1}, v{vP+2}
    v_max3_f32 v{vMT}, v{vP+3}, v{vP+4}, v{vP+5}
    v_max3_f32 v{vM}, v{vM}, v{vP+6}, v{vP+7}
    v_max_f32 v{vM}, v{vM}, v{vMT}
    v_mov_b32 v{vMT}, v{vM}
    v_permlane16_swap_b32 v{vM}, v{vMT}
    v_max_f32 v{vM}, v{vM}, v{vMT}
    v_mov_b32 v{vMT}, v{vM}
    v_permlane32_swap_b32 v{vM}, v{vMT}
    v_max_f32 v{vM}, v{vM}, v{vMT}
    v_mul_f32 v{vM}, s{sLOG2E}, v{vM}""")
for i in range(4): a(f"v_pk_fma_f32 v[{vP+2*i}:{vP+2*i+1}], v[{vP+2*i}:{vP+2*i+1}], s[{sLOG2E}:{sLOG2E+1}], v[{vM}:{vM+1}] op_sel_hi:[1,1,0] neg_lo:[0,0,1] neg_hi:[0,0,1]")
row_slot(5)
for i in range(8): a(f"v_exp_f32 v{vP+i}, v{vP+i}")
for i in range(4): a(f"v_cvt_pk_bf16_f32 v{vR4+i}, v{vP+2*i}, v{vP+2*i+1}")
vL = vS0
mfma(vL, vR4, vONE, None)
for e in range(8): mfma(vO + 4 * e, vR4, vVF + 4 * e, None)
row_slot(6); row_slot(7)
a(f"v_mov_b32 v{vM+1}, v{vL}")
setexec(0x1000010000100001)
a(f"ds_write_b64 v{vMW}, v[{vM}:{vM+1}]")
setexec(-1)
for e in range(0, 8, 2): a(f"ds_write2_b32 v{vOW}, v{vO+4*e}, v{vO+4*e+4} offset0:{e} offset1:{e+1}")
vC = vU + 16; vG = vU + 36
a(f"""
    v_mov_b32 v{vTMP+1}, {MF}
    v_mov_b32 v{vG+3}, s{sTAG}
    s_waitcnt lgkmcnt(0)
    s_barrier
    ds_read_b128 v[{vC}:{vC+3}], v{vMR}
    ds_read_b128 v[{vC+4}:{vC+7}], v{vMR} offset:16""")
for src in range(4): a(f"ds_read2_b32 v[{vC+8+2*src}:{vC+9+2*src}], v{vORD+src} offset0:0 offset1:1")
a(f"ds_read_b128 v[{vQG}:{vQG+3}], v{vTMP+1}")
if not EARLYG: xc_pt()
a(f"""
    s_waitcnt lgkmcnt(5)
    v_max3_f32 v{vC+16}, v{vC}, v{vC+2}, v{vC+4}
    v_max_f32 v{vC+16}, v{vC+16}, v{vC+6}
    v_sub_f32 v{vC}, v{vC}, v{vC+16}
    v_sub_f32 v{vC+2}, v{vC+2}, v{vC+16}
    v_sub_f32 v{vC+4}, v{vC+4}, v{vC+16}
    v_sub_f32 v{vC+6}, v{vC+6}, v{vC+16}
    v_exp_f32 v{vC}, v{vC}
    v_exp_f32 v{vC+2}, v{vC+2}
    v_exp_f32 v{vC+4}, v{vC+4}
    v_exp_f32 v{vC+6}, v{vC+6}
    v_mul_f32 v{vC+17}, v{vC}, v{vC+1}
    v_fmac_f32 v{vC+17}, v{vC+2}, v{vC+3}
    v_fmac_f32 v{vC+17}, v{vC+4}, v{vC+5}
    v_fmac_f32 v{vC+17}, v{vC+6}, v{vC+7}
    s_waitcnt lgkmcnt(0)
    v_rcp_f32 v{vC+18}, v{vC+17}
    v_log_f32 v{vC+19}, v{vC+17}
    v_mul_f32 v{vC+8}, v{vC+8}, v{vC}
    v_mul_f32 v{vC+9}, v{vC+9}, v{vC}
    v_fmac_f32 v{vC+8}, v{vC+10}, v{vC+2}
    v_fmac_f32 v{vC+9}, v{vC+11}, v{vC+2}
    v_fmac_f32 v{vC+8}, v{vC+12}, v{vC+4}
    v_fmac_f32 v{vC+9}, v{vC+13}, v{vC+4}
    v_fmac_f32 v{vC+8}, v{vC+14}, v{vC+6}
    v_fmac_f32 v{vC+9}, v{vC+15}, v{vC+6}
    v_or3_b32 v{vQG}, v{vQG}, v{vQG+1}, v{vQG+2}
    v_mul_f32 v{vC+8}, v{vC+8}, v{vC+18}
    v_mul_f32 v{vC+9}, v{vC+9}, v{vC+18}
    v_or_b32 v{vQG}, v{vQG}, v{vQG+3}
    v_add_f32 v{vG+2}, v{vC+16}, v{vC+19}
    v_cvt_pk_bf16_f32 v{vG}, v{vC+8}, v{vC+9}
    v_readfirstlane_b32 s{sMODE}, v{vQG}""")
if FORCEG: a(f"s_mov_b32 s{sMODE}, 1")
a(f"v_mov_b32_dpp v{vG+1}, v{vG} quad_perm:[1,1,3,3] row_mask:0xf bank_mask:0xf")
setexec(0x5555555555555555)
local_store(f"buffer_store_dwordx4 v[{vG}:{vG+3}], v{vBP}, {WS}, s{sBP} offen")
setexec(-1)
stamp(7)
if STAMPS: a("@@ZI@@")
a(f"s_cmp_ge_u32 s{sJ}, 16\ns_cbranch_scc1 L_ftail")
if WARM == 2:
    a("s_branch L_wtail\n.p2align 12\nL_warm2:\ns_branch L_warm_ret\nL_wtail:")
NYOUNG = 3
vGA, vCA, vCW, vCR, vTW, vt0, vt1, vt2, vPI, vVAL = 10, 11, 12, 13, 14, 15, 16, 17, 18, 19
def tile_addrs():
    a(f"""
    v_lshrrev_b32 v{vt0}, 2, v{vN}
    v_lshl_or_b32 v{vt0}, v{vS}, 2, v{vt0}
    v_and_b32 v{vt1}, 7, v{vt0}
    v_lshlrev_b32 v{vt1}, 5, v{vt1}
    v_lshl_or_b32 v{vt1}, v{vt0}, 8, v{vt1}
    v_and_b32 v{vt0}, 3, v{vN}
    v_lshl_or_b32 v{vt1}, v{vt0}, 3, v{vt1}
    s_lshl_b32 s{sT0}, s{sW}, 13
    v_add_u32 v{vTW}, s{sT0}, v{vt1}""")
    for e in range(1, 8): a(f"v_xor_b32 v{vVR+e}, {e*32}, v{vTW}")
def tile_reads():
    for e in range(8):
        ad = vTW if e == 0 else vVR + e
        a(f"ds_read_b64_tr_b16 v[{vVF+4*e}:{vVF+4*e+1}], v{ad}\nds_read_b64_tr_b16 v[{vVF+4*e+2}:{vVF+4*e+3}], v{ad} offset:4096")
vG2 = vU; vB = vU + 4; sE0, sE1 = 58, 59; sBASE = 60; vGR = vU + 36
tile_addrs()
a(f"""
    s_mov_b32 s{sE0}, 0x3f80
    s_mov_b32 s{sE1}, 0x3f800000
    s_lshr_b32 s{sBASE}, s{sJ}, 1
    s_lshl_b32 s{sBASE}, s{sBASE}, 6
    s_and_b32 s{sT1}, s{sJ}, 1
    s_lshl_b32 s{sT1}, s{sT1}, 3
    s_add_u32 s{sBASE}, s{sBASE}, s{sT1}
    v_and_b32 v{vPI}, 1, v{vLane}
    v_and_b32 v{vVAL}, 1, v{vS}
    v_lshlrev_b32 v{vVAL}, 1, v{vVAL}
    v_lshrrev_b32 v{vt0}, 1, v{vS}
    v_or_b32 v{vVAL}, v{vVAL}, v{vt0}
    v_lshlrev_b32 v{vB+6}, 1, v{vVAL}
    v_lshl_or_b32 v{vB+6}, v{vPI}, 4, v{vB+6}
    s_and_b32 s{sT1}, s{sW}, 1
    s_lshl_b32 s{sT1}, s{sT1}, 5
    s_lshr_b32 s{sT2}, s{sW}, 1
    s_lshl_b32 s{sT2}, s{sT2}, 3
    s_add_u32 s{sT1}, s{sT1}, s{sT2}
    s_add_u32 s{sT1}, s{sT1}, {OB}
    v_add_u32 v{vB+6}, s{sT1}, v{vB+6}
    v_lshlrev_b32 v{vB+7}, 4, v{vS}
    v_add_u32 v{vB+7}, {OB}, v{vB+7}
    v_lshlrev_b32 v{vGA}, 4, v{vN}
    v_lshl_or_b32 v{vGA}, v{vS}, 8, v{vGA}
    v_lshrrev_b32 v{vCA}, 3, v{vLane}
    v_lshlrev_b32 v{vCA}, 11, v{vCA}
    v_and_b32 v{vt0}, 7, v{vLane}
    v_lshl_or_b32 v{vCA}, v{vt0}, 4, v{vCA}
    v_lshl_add_u32 v{vCW}, v{vVAL}, 3, v{vt0}
    s_lshl_b32 s{sT1}, s{sW}, 2
    s_add_u32 s{sT1}, s{sT1}, {QP}
    v_lshl_add_u32 v{vCW}, v{vCW}, 4, s{sT1}
    v_and_b32 v{vt0}, 31, v{vLane}
    v_lshlrev_b32 v{vCR}, 4, v{vt0}
    v_add_u32 v{vCR}, {QP}, v{vCR}
    v_mov_b32 v{vGR+2}, s{sTAG}
    v_mov_b32 v{vGR+3}, s{sTAGB}
    s_lshl_b32 s{sQS}, s{sF}, 11
    s_lshl_b32 s{sT1}, s{sW}, 9
    s_add_u32 s{sQS}, s{sQS}, s{sT1}
    s_add_u32 s{sQS}, s{sQS}, {PC}
    s_lshl_b32 s{sT1}, s{sW}, 16
    s_lshl_b32 s{sT2}, s{sJ}, 7
    s_add_u32 s{sT1}, s{sT1}, s{sT2}
    s_add_u32 s{sQG}, s{sT1}, {PC}
    s_add_u32 s{sQ1}, s{sQG}, 16384
    s_add_u32 s{sQ2}, s{sQG}, 32768
    s_add_u32 s{sQ3}, s{sQG}, 49152""")
if BEARLY:
    a(f"buffer_load_dwordx4 v[{vG2}:{vG2+3}], v{vBA}, {WS}, s{sBA} offen sc1")
a(f"s_waitcnt vmcnt({NYOUNG + (1 if BEARLY else 0)})")
tile_reads()
stamp(8)
if BEARLY: a("s_branch L_bwait")
a(f"""
L_bpoll:
    buffer_load_dwordx4 v[{vG2}:{vG2+3}], v{vBA}, {WS}, s{sBA} offen sc1
L_bwait:
    s_waitcnt vmcnt(0)
    v_cmp_ne_u32 vcc, s{sTAG}, v{vG2+3}
    s_cbranch_vccz L_bok
    {"s_sleep %d" % SLB if SLB else ""}""")
spin("L_bpoll")
a("L_bok:")
stamp(9)
a(f"""
    v_max_f32_dpp v{vB}, v{vG2+2}, v{vG2+2} row_ror:8 row_mask:0xf bank_mask:0xf
    v_lshlrev_b32 v{vB+2}, 16, v{vG2}
    v_and_b32 v{vB+3}, 0xffff0000, v{vG2}
    v_max_f32_dpp v{vB}, v{vB}, v{vB} row_ror:4 row_mask:0xf bank_mask:0xf
    v_lshlrev_b32 v{vB+4}, 16, v{vG2+1}
    v_and_b32 v{vB+5}, 0xffff0000, v{vG2+1}
    v_max_f32_dpp v{vB}, v{vB}, v{vB} row_ror:2 row_mask:0xf bank_mask:0xf""")
allreduce([vB], "v_max_f32", [vB+1], steps=())
a(f"""
    v_sub_f32 v{vB}, v{vG2+2}, v{vB}
    v_exp_f32 v{vB}, v{vB}
    v_mul_f32 v{vB+2}, v{vB+2}, v{vB}
    v_mul_f32 v{vB+3}, v{vB+3}, v{vB}
    v_mul_f32 v{vB+4}, v{vB+4}, v{vB}
    v_mul_f32 v{vB+5}, v{vB+5}, v{vB}
    v_mov_b32 v{vB+1}, v{vB}
    v_permlane32_swap_b32 v{vB+2}, v{vB+3}
    v_permlane32_swap_b32 v{vB+4}, v{vB+5}
    v_permlane32_swap_b32 v{vB}, v{vB+1}
    v_add_f32 v{vB+2}, v{vB+2}, v{vB+3}
    v_add_f32 v{vB+4}, v{vB+4}, v{vB+5}
    v_add_f32 v{vB}, v{vB}, v{vB+1}
    v_mov_b32 v{vB+1}, v{vB}
    v_permlane16_swap_b32 v{vB+2}, v{vB+4}
    v_permlane16_swap_b32 v{vB}, v{vB+1}
    v_add_f32 v{vB+2}, v{vB+2}, v{vB+4}
    v_add_f32 v{vB}, v{vB}, v{vB+1}""")
for st in (8, 4, 2):
    a(f"v_add_f32_dpp v{vB+2}, v{vB+2}, v{vB+2} row_ror:{st} row_mask:0xf bank_mask:0xf")
    a(f"v_add_f32_dpp v{vB}, v{vB}, v{vB} row_ror:{st} row_mask:0xf bank_mask:0xf")
a(f"""
    v_rcp_f32 v{vB}, v{vB}
    v_mul_f32 v{vB+2}, v{vB+2}, v{vB}
    v_cvt_pk_bf16_f32 v{vB+2}, v{vB+2}, v{vB+2}""")
setexec(0x0003000300030003)
a(f"ds_write_b16 v{vB+6}, v{vB+2}")
setexec(-1)
a(f"s_waitcnt lgkmcnt(0)\ns_barrier\nds_read_b128 v[{vR4}:{vR4+3}], v{vB+7}\ns_waitcnt lgkmcnt(0)")
for e in range(8): mfma(vO + 4 * e, vR4, vVF + 4 * e, None)
a(f"""
    v_cndmask_b32 v{vU}, v{vO}, v{vO+16}, s[{sM1}:{sM1+1}]
    v_cndmask_b32 v{vU+1}, v{vO+4}, v{vO+20}, s[{sM1}:{sM1+1}]
    v_cndmask_b32 v{vU+2}, v{vO+8}, v{vO+24}, s[{sM1}:{sM1+1}]
    v_cndmask_b32 v{vU+3}, v{vO+12}, v{vO+28}, s[{sM1}:{sM1+1}]
    v_cvt_pk_bf16_f32 v{vGR}, v{vU}, v{vU+1}
    v_cvt_pk_bf16_f32 v{vGR+1}, v{vU+2}, v{vU+3}""")
setexec(0xffffffff)
a(f"buffer_store_dwordx4 v[{vGR}:{vGR+3}], v{vGA}, {WS}, s{sQS} offen sc1")
setexec(-1)
stamp(10)
vD = vU; vAcc = vD + 16; CA, CB = vKF, vKF + 16
def c_issue(R):
    for k, so in enumerate((sQG, sQ1, sQ2, sQ3)):
        a(f"buffer_load_dwordx4 v[{R+4*k}:{R+4*k+3}], v{vCA}, {WS}, s{so} offen sc1")
def c_process(R):
    for i in range(4):
        for c, (dw, se) in enumerate(((0, sE0), (0, sE1), (1, sE0), (1, sE1))):
            a(f"v_dot2_f32_bf16 v{vAcc+c}, v{R+4*i+dw}, s{se}, {'0' if i == 0 else 'v%d' % (vAcc+c)}")
    tagcheck(R, 4, vD + 20)
    a("s_cbranch_vccz L_cok")
if DLC: a(f"s_sleep {DLC}")
if CPIPE:
    c_issue(CA)
    if STGC: a(f"s_sleep {STGC}")
    c_issue(CB)
    a("L_cpoll:\ns_waitcnt vmcnt(4)")
    c_process(CA); c_issue(CA)
    a("s_waitcnt vmcnt(4)")
    c_process(CB); c_issue(CB)
    spin("L_cpoll")
else:
    a("L_cpoll:")
    c_issue(CA)
    a("s_waitcnt vmcnt(0)")
    c_process(CA)
    spin("L_cpoll")
a("L_cok:")
stamp(11)
a(f"""
    v_permlane32_swap_b32 v{vAcc}, v{vAcc+1}
    v_permlane32_swap_b32 v{vAcc+2}, v{vAcc+3}
    v_add_f32 v{vAcc}, v{vAcc}, v{vAcc+1}
    v_add_f32 v{vAcc+2}, v{vAcc+2}, v{vAcc+3}
    v_permlane16_swap_b32 v{vAcc}, v{vAcc+2}
    v_add_f32 v{vAcc}, v{vAcc}, v{vAcc+2}
    v_add_f32_dpp v{vAcc}, v{vAcc}, v{vAcc} row_ror:8 row_mask:0xf bank_mask:0xf""")
setexec(0x00ff00ff00ff00ff)
a(f"ds_write_b32 v{vCW}, v{vAcc}")
setexec(-1)
a(f"""
    v_lshlrev_b32 v{vXC}, 16, v{vXC}
    s_lshl_b32 s{sT0}, s{sG}, 11
    s_lshl_b32 s{sT1}, s{sBASE}, 2
    s_add_u32 s{sT0}, s{sT0}, s{sT1}
    s_add_u32 s{sT0}, s{sT0}, {PH}
    v_lshrrev_b32 v{vD+6}, 3, v{vLane}
    v_lshlrev_b32 v{vD+6}, 6, v{vD+6}
    v_bfe_u32 v{vD+5}, v{vLane}, 1, 2
    v_lshl_or_b32 v{vD+6}, v{vD+5}, 3, v{vD+6}
    v_mov_b32 v{vD+5}, s{sTAG}
    v_and_b32 v{vD+7}, 31, v{vLane}
    v_lshlrev_b32 v{vD+7}, 2, v{vD+7}
    v_add_u32 v{vD+7}, {HL}, v{vD+7}
    s_waitcnt lgkmcnt(0)
    s_barrier
    s_cmp_lg_u32 s{sW}, 0
    s_cbranch_scc1 L_wexit
    ds_read_b128 v[{vD}:{vD+3}], v{vCR}
    s_waitcnt lgkmcnt(0)
    v_add_f32 v{vD}, v{vD}, v{vD+1}
    v_add_f32 v{vD+2}, v{vD+2}, v{vD+3}
    v_add_f32 v{vD}, v{vD}, v{vD+2}""")
round_bf16(vD)
a(f"v_add_f32 v{vH}, v{vXC}, v{vD}")
round_bf16(vH)
a(f"""
    v_mov_b32_dpp v{vD+1}, v{vH} quad_perm:[1,1,3,3] row_mask:0xf bank_mask:0xf
    ds_write_b32 v{vD+7}, v{vH}
    v_perm_b32 v{vD+4}, v{vD+1}, v{vH}, s{sSEL1}""")
setexec(0x55555555)
local_store(f"buffer_store_dwordx2 v[{vD+4}:{vD+5}], v{vD+6}, {WS}, s{sT0} offen")
setexec(-1)
stamp(12)
vEA = vCA
a(f"""
    v_lshrrev_b32 v{vEA}, 1, v{vLane}
    v_lshlrev_b32 v{vEA}, 12, v{vEA}
    v_lshl_or_b32 v{vEA}, v{vPI}, 4, v{vEA}
    s_lshr_b32 s{sT2}, s{sJ}, 1
    s_lshl_b32 s{sT2}, s{sT2}, 5
    s_and_b32 s{sT3}, s{sG}, 1
    s_lshl_b32 s{sT0}, s{sT3}, 4
    s_add_u32 s{sT2}, s{sT2}, s{sT0}
    s_and_b32 s{sT0}, s{sJ}, 1
    s_lshl_b32 s{sT0}, s{sT0}, 3
    s_add_u32 s{sT2}, s{sT2}, s{sT0}
    s_and_b32 s{sT0}, s{sG}, 6
    s_add_u32 s{sT2}, s{sT2}, s{sT0}
    s_lshl_b32 s{sT2}, s{sT2}, 4
    s_add_u32 s{sQG}, s{sT2}, {PE}
    s_add_u32 s{sQ1}, s{sQG}, 131072
    v_lshrrev_b32 v{vt0}, 5, v{vLane}
    s_lshl_b32 s{sT3}, s{sT3}, 1
    v_add_u32 v{vt0}, s{sT3}, v{vt0}
    v_add_u32 v{vt2}, s{sT0}, v{vPI}
    v_lshl_add_u32 v{vt1}, v{vt0}, 3, v{vt2}
    v_lshlrev_b32 v{vt1}, 2, v{vt1}
    v_add_u32 v{vt1}, {HL}, v{vt1}
    v_lshl_add_u32 v{vt0}, v{vt0}, 4, v{vt2}
    v_lshlrev_b32 v{vt0}, 1, v{vt0}
    s_lshl_b32 s{sT2}, s{sBASE}, 1
    s_mov_b32 s{SV}, s{pOUT}
    s_mov_b32 s{SV+1}, s{pOUT+1}
    s_mov_b32 s{SV+2}, 1024
    s_waitcnt lgkmcnt(0)
    ds_read_b32 v{vH}, v{vt1}""")
EA, EB = vVF, vVF + 8
for R in (EA, EB):
    a(f"v_mov_b32 v{R+4}, 0\nv_mov_b32 v{R+5}, 0\nv_mov_b32 v{R+6}, s{sTAG}\nv_mov_b32 v{R+7}, s{sTAGB}")
def e_issue(R):
    a(f"buffer_load_dwordx4 v[{R}:{R+3}], v{vEA}, {WS}, s{sQG} offen sc1")
    setexec(0xffffffffffff)
    a(f"buffer_load_dwordx4 v[{R+4}:{R+7}], v{vEA}, {WS}, s{sQ1} offen sc1")
    setexec(-1)
def e_process(R):
    a(f"""
    v_xor_b32 v{vD+4}, s{sTAG}, v{R+2}
    v_xor_b32 v{vD+5}, s{sTAGB}, v{R+3}
    v_xor_b32 v{vD+6}, s{sTAG}, v{R+6}
    v_xor_b32 v{vD+7}, s{sTAGB}, v{R+7}
    v_add_f32 v{vD}, v{R}, v{R+4}
    v_or3_b32 v{vD+4}, v{vD+4}, v{vD+5}, v{vD+6}
    v_add_f32 v{vD+1}, v{R+1}, v{R+5}
    v_or_b32 v{vD+4}, v{vD+4}, v{vD+7}
    v_cmp_ne_u32 vcc, 0, v{vD+4}
    s_cbranch_vccz L_eok""")
if DLE: a(f"s_sleep {DLE}")
if EFLAG:
    a(f"""
    s_lshl_b32 s{sT0}, s{sG}, 7
    s_add_u32 s{sT0}, s{sT0}, {PF}
    v_lshlrev_b32 v{vt2}, 2, v{vLane}
    s_mov_b32 exec_lo, 0xfffffff
    s_mov_b32 exec_hi, 0
L_fpoll:
    buffer_load_dword v{vD+8}, v{vt2}, {WS}, s{sT0} offen sc1
    s_waitcnt vmcnt(0)
    v_cmp_ne_u32 vcc, s{sTAG}, v{vD+8}
    s_cbranch_vccz L_fok
    s_sleep 1""")
    spin("L_fpoll")
    a("L_fok:\ns_mov_b64 exec, -1")
    if DLE2: a(f"s_sleep {DLE2}")
if EPIPE:
    e_issue(EA)
    if STGE: a(f"s_sleep {STGE}")
    e_issue(EB)
    a("L_epoll:\ns_waitcnt vmcnt(2)")
    e_process(EA)
    if SLE: a(f"s_sleep {SLE}")
    e_issue(EA)
    a("s_waitcnt vmcnt(2)")
    e_process(EB)
    if SLE: a(f"s_sleep {SLE}")
    e_issue(EB)
    spin("L_epoll")
else:
    a("L_epoll:")
    e_issue(EA)
    a("s_waitcnt vmcnt(0)")
    e_process(EA)
    if SLE: a(f"s_sleep {SLE}")
    spin("L_epoll")
a("L_eok:")
stamp(13)
a(f"""
    v_permlane32_swap_b32 v{vD}, v{vD+1}
    v_add_f32 v{vD}, v{vD}, v{vD+1}
    v_mov_b32 v{vD+2}, v{vD}
    v_permlane16_swap_b32 v{vD}, v{vD+2}
    v_add_f32 v{vD}, v{vD}, v{vD+2}""")
for st in (8, 4, 2): a(f"v_add_f32_dpp v{vD}, v{vD}, v{vD} row_ror:{st} row_mask:0xf bank_mask:0xf")
round_bf16(vD)
a(f"""
    s_waitcnt lgkmcnt(0)
    v_add_f32 v{vD}, v{vH}, v{vD}
    v_cvt_pk_bf16_f32 v{vD}, v{vD}, v{vD}""")
setexec(0x0000000300000003)
a(f"""
    buffer_store_short v{vD}, v{vt0}, s[{SV}:{SV+3}], s{sT2} offen {OUTSC}""")
if not EPEARLY:
    a(f"""
    s_cmp_lg_u32 s2, 0
    s_cbranch_scc1 L_w0done
    s_mov_b64 exec, 1
    v_mov_b32 v{vD+3}, s{sTAG}
    buffer_store_dword v{vD+3}, off, {WS}, 0 sc1
L_w0done:""")
a("s_mov_b64 exec, -1")
stamp(14)
a("s_branch L_fin")
if FALIGN: a(".p2align 12")
if WARM: a("L_warm1:\ns_branch L_warm_ret")
a("L_ftail:")
vTR = 242; vQPW2 = 244; vXA2 = 240; vCSUM = 246
vXR0, vHS = 11, 12
a(f"s_cmp_ge_u32 s{sJ}, 23\ns_cbranch_scc1 L_idle")
a(f"""
    s_mov_b32 s{SK}, s{pW1}
    s_mov_b32 s{SK+1}, s{pW1+1}
    s_mov_b32 s{SK+2}, 1835008
    s_lshl_b32 s{sT0}, s{sF}, 6
    s_mul_i32 s{sT1}, s{sW}, {128*3584}
    s_add_u32 s{sT0}, s{sT0}, s{sT1}
    s_lshl_b32 s{sT1}, s{sW}, 13
    s_add_u32 s{sT1}, s{sT1}, {WL}
    s_mov_b32 m0, s{sT1}""")
for i in range(8):
    if i == 4: a(f"s_add_u32 s{sT1}, s{sT1}, 4096\ns_mov_b32 m0, s{sT1}")
    a(f"buffer_load_dwordx4 v{vW1c}, s[{SK}:{SK+3}], s{sT0} offen offset:{(i % 4) * 1024} {NT} lds")
    if i < 7: a(f"s_add_u32 s{sT0}, s{sT0}, {16 * 3584 - (1024 if i % 4 != 3 else -3072)}")
if FW2:
    a(f"""
    s_mov_b32 s{SROW+2}, 1835008
    s_lshl_b32 s{sRO}, s{sF}, 15
    s_lshl_b32 s{sT0}, s{sW}, 8
    s_add_u32 s{sRO}, s{sRO}, s{sT0}
    s_lshl_b32 s{sLM}, s{sW}, 13""")
    for i in range(8): row_load(i)
tile_addrs()
if not FW2:
    a(f"s_waitcnt vmcnt({NYOUNG + 8})")
    tile_reads()
vHG = vU; vGR = vU + 36; vAX = vQ; vCS = vO; vAC = vS0
a(f"""
    s_lshl_b32 s{sT0}, s{sW}, 13
    s_add_u32 s{sT0}, s{sT0}, {WL}
    v_lshrrev_b32 v{vt0}, 2, v{vN}
    v_lshl_or_b32 v{vt0}, v{vS}, 2, v{vt0}
    v_lshlrev_b32 v{vt0}, 6, v{vt0}
    v_and_b32 v{vt1}, 1, v{vS}
    v_lshl_or_b32 v{vt0}, v{vt1}, 5, v{vt0}
    v_and_b32 v{vt1}, 3, v{vN}
    v_lshl_or_b32 v{vt0}, v{vt1}, 3, v{vt0}
    v_add_u32 v{vTR}, s{sT0}, v{vt0}
    v_xor_b32 v{vTR+1}, 32, v{vTR}
    v_lshl_or_b32 v{vt0}, v{vS}, 4, v{vN}
    v_lshlrev_b32 v{vt0}, 4, v{vt0}
    s_lshl_b32 s{sT0}, s{sW}, 2
    s_add_u32 s{sT0}, s{sT0}, {QP}
    v_add_u32 v{vQPW2}, s{sT0}, v{vt0}
    v_lshrrev_b32 v{vt0}, 2, v{vLane}
    v_lshlrev_b32 v{vt0}, 6, v{vt0}
    v_and_b32 v{vt1}, 1, v{vLane}
    v_lshl_or_b32 v{vt0}, v{vt1}, 5, v{vt0}
    v_bfe_u32 v{vt1}, v{vLane}, 1, 1
    v_lshl_or_b32 v{vt0}, v{vt1}, 3, v{vt0}
    v_add_u32 v{vXA2}, {XN}, v{vt0}
    s_lshl_b32 s{sT0}, s{sW}, 8
    s_add_u32 s{sT0}, s{sT0}, {XN}
    v_lshl_add_u32 v{vXR0}, v{vS}, 4, s{sT0}
    v_lshlrev_b32 v{vHS}, 4, v{vLane}
    v_add_u32 v{vHS}, {XN}, v{vHS}
    v_and_b32 v{vU+15}, 3, v{vN}
    v_lshl_or_b32 v{vU+15}, v{vS}, 2, v{vU+15}
    v_bfe_u32 v{vU+17}, v{vN}, 2, 1
    v_lshl_or_b32 v{vU+15}, v{vU+17}, 4, v{vU+15}
    v_lshlrev_b32 v{vU+16}, 4, v{vU+15}
    v_add_u32 v{vU+16}, {QP}, v{vU+16}
    s_lshl_b32 s{sQS}, s{sF}, 12
    s_add_u32 s{sQS}, s{sQS}, {PE}
    v_lshlrev_b32 v{vGA}, 4, v{vN}
    v_lshl_or_b32 v{vGA}, v{vS}, 8, v{vGA}
    s_lshl_b32 s{sT1}, s{sW}, 10
    s_add_u32 s{sQS}, s{sQS}, s{sT1}
    v_mov_b32 v{vGR+2}, s{sTAG}
    v_mov_b32 v{vGR+3}, s{sTAGB}
    s_waitcnt vmcnt({8 if FW2 else 0})""")
for cb in range(2):
    for k in range(4):
        r = vKF + (cb * 4 + k) * 4
        a(f"ds_read_b64_tr_b16 v[{r}:{r+1}], v{vTR+cb} offset:{k*2048}\nds_read_b64_tr_b16 v[{r+2}:{r+3}], v{vTR+cb} offset:{k*2048+1024}")
a("s_waitcnt lgkmcnt(0)")
for k in range(4):
    for cb in range(2): mfma(vCS + 4 * cb, vONE, vKF + (cb * 4 + k) * 4, None if k == 0 else vCS + 4 * cb)
a(f"v_cndmask_b32 v{vCSUM}, v{vCS}, v{vCS+4}, s[{sM1}:{sM1+1}]")
if FW2:
    a("s_waitcnt vmcnt(0)")
    tile_reads()
stamp(8)
a(f"""
    s_cmp_lg_u32 s{sW}, 0
    s_cbranch_scc1 L_hwait
L_hpoll:
    buffer_load_dwordx4 v[{vHG}:{vHG+3}], v{vBA}, {WS}, s{sBA} offen sc1
    buffer_load_dwordx4 v[{vHG+4}:{vHG+7}], v{vBA}, {WS}, s{sBA} offen offset:16 sc1
    s_waitcnt vmcnt(0)
    v_xor_b32 v{vHG+8}, s{sTAG}, v{vHG+1}
    v_xor_b32 v{vHG+9}, s{sTAG}, v{vHG+3}
    v_xor_b32 v{vHG+10}, s{sTAG}, v{vHG+5}
    v_xor_b32 v{vHG+11}, s{sTAG}, v{vHG+7}
    ds_write2_b32 v{vXA2}, v{vHG}, v{vHG+2} offset0:0 offset1:1
    v_or3_b32 v{vHG+8}, v{vHG+8}, v{vHG+9}, v{vHG+10}
    ds_write2_b32 v{vXA2}, v{vHG+4}, v{vHG+6} offset0:4 offset1:5
    v_or_b32 v{vHG+8}, v{vHG+8}, v{vHG+11}
    v_cmp_ne_u32 vcc, 0, v{vHG+8}
    s_cbranch_vccz L_hok
    {"s_sleep %d" % SLH if SLH else ""}""")
spin("L_hpoll")
vS1, vS2 = vU + 12, vU + 13
a("L_hok:\ns_waitcnt lgkmcnt(0)\nL_hwait:\ns_barrier")
stamp(9)
a(f"ds_read_b128 v[{vHG}:{vHG+3}], v{vHS}")
for k in range(4): a(f"ds_read_b128 v[{vAX+4*k}:{vAX+4*k+3}], v{vXR0} offset:{k*64}")
a(f"v_mov_b32 v{vS1}, 0\nv_mov_b32 v{vS2}, 0\ns_waitcnt lgkmcnt(4)")
for i in range(4):
    a(f"v_dot2_f32_bf16 v{vS1}, v{vHG+i}, v{vONE}, v{vS1}\nv_dot2_f32_bf16 v{vS2}, v{vHG+i}, v{vHG+i}, v{vS2}")
a("s_waitcnt lgkmcnt(0)")
for k in range(4):
    for cb in range(2): mfma(vAC + 4 * cb, vAX + 4 * k, vKF + (cb * 4 + k) * 4, None if k == 0 else vAC + 4 * cb)
allreduce([vS1, vS2], "v_add_f32", [vU + 14, vU + 19])
a(f"""
    v_mul_f32 v{vS1}, 0x3b000000, v{vS1}
    v_mul_f32 v{vS2}, 0x3b000000, v{vS2}
    v_fma_f32 v{vS2}, -v{vS1}, v{vS1}, v{vS2}
    v_max_f32 v{vS2}, 0, v{vS2}""")
round_bf16(vS1); round_bf16(vS2)
a(f"""
    v_add_f32 v{vS2}, 0x3727c5ac, v{vS2}
    v_cndmask_b32 v{vU+14}, v{vAC}, v{vAC+4}, s[{sM1}:{sM1+1}]
    v_fma_f32 v{vU+14}, -v{vS1}, v{vCSUM}, v{vU+14}""")
setexec(0xffffffff)
a(f"ds_write_b32 v{vQPW2}, v{vU+14}")
setexec(-1)
round_bf16(vS2)
a(f"v_sqrt_f32 v{vS2}, v{vS2}")
round_bf16(vS2)
a(f"""
    v_rcp_f32 v{vS2}, v{vS2}
    s_waitcnt lgkmcnt(0)
    s_barrier
    ds_read_b128 v[{vU+20}:{vU+23}], v{vU+16}
    s_waitcnt lgkmcnt(0)
    v_add_f32 v{vU+20}, v{vU+20}, v{vU+21}
    v_add_f32 v{vU+22}, v{vU+22}, v{vU+23}
    v_add_f32 v{vU+20}, v{vU+20}, v{vU+22}
    v_mul_f32 v{vU+20}, v{vU+20}, v{vS2}""")
round_bf16(vU + 20)
a(f"""
    v_mul_f32 v{vU+21}, 0xbfb8aa3b, v{vU+20}
    v_exp_f32 v{vU+21}, v{vU+21}
    v_add_f32 v{vU+21}, 1.0, v{vU+21}
    v_rcp_f32 v{vU+21}, v{vU+21}
    v_mul_f32 v{vU+20}, v{vU+20}, v{vU+21}
    v_mov_b32_dpp v{vU+21}, v{vU+20} quad_perm:[1,1,3,3] row_mask:0xf bank_mask:0xf
    v_cvt_pk_bf16_f32 v{vU+20}, v{vU+20}, v{vU+21}
    v_mov_b32_dpp v{vR4}, v{vU+20} row_newbcast:0 row_mask:0xf bank_mask:0xf
    v_mov_b32_dpp v{vR4+1}, v{vU+20} row_newbcast:2 row_mask:0xf bank_mask:0xf
    v_mov_b32_dpp v{vR4+2}, v{vU+20} row_newbcast:4 row_mask:0xf bank_mask:0xf
    v_mov_b32_dpp v{vR4+3}, v{vU+20} row_newbcast:6 row_mask:0xf bank_mask:0xf""")
for e in range(8): mfma(vO + 4 * e, vR4, vVF + 4 * e, None)
a(f"""
    v_cndmask_b32 v{vGR}, v{vO}, v{vO+8}, s[{sM1}:{sM1+1}]
    v_cndmask_b32 v{vGR+1}, v{vO+4}, v{vO+12}, s[{sM1}:{sM1+1}]
    v_cndmask_b32 v{vGR}, v{vGR}, v{vO+16}, s[{sM2}:{sM2+1}]
    v_cndmask_b32 v{vGR+1}, v{vGR+1}, v{vO+20}, s[{sM2}:{sM2+1}]
    v_cndmask_b32 v{vGR}, v{vGR}, v{vO+24}, s[{sM3}:{sM3+1}]
    v_cndmask_b32 v{vGR+1}, v{vGR+1}, v{vO+28}, s[{sM3}:{sM3+1}]
    buffer_store_dwordx4 v[{vGR}:{vGR+3}], v{vGA}, {WS}, s{sQS} offen sc1""")
if EFLAG:
    a(f"""
    s_sub_u32 s{sT0}, s{sJ}, 16
    s_lshl_b32 s{sT0}, s{sT0}, 2
    s_add_u32 s{sT0}, s{sT0}, s{sW}
    s_lshl_b32 s{sT0}, s{sT0}, 2
    s_lshl_b32 s{sT1}, s{sG}, 7
    s_add_u32 s{sT0}, s{sT0}, s{sT1}
    s_add_u32 s{sT0}, s{sT0}, {PF}
    v_mov_b32 v{vt0}, 0
    s_mov_b64 exec, 1""")
    local_store(f"buffer_store_dword v{vGR+2}, v{vt0}, {WS}, s{sT0} offen")
    a("s_mov_b64 exec, -1")
stamp(10)
a("s_branch L_fin")
a("s_branch L_fin\nL_wexit:")
if EPEARLY:
    a(f"""
    s_cmp_lg_u32 s2, 0
    s_cbranch_scc1 L_fin
    s_cmp_lg_u32 s{sW}, 1
    s_cbranch_scc1 L_fin
    s_mov_b64 exec, 1
    v_mov_b32 v{vD+3}, s{sTAG}
    buffer_store_dword v{vD+3}, off, {WS}, 0 sc1
    s_mov_b64 exec, -1""")
a("s_branch L_fin")
a("L_idle:")
if PTH:
    a(f"""
    s_sub_u32 s{sT0}, s{sJ}, 23
    s_lshl_b32 s{sT0}, s{sT0}, 2
    s_add_u32 s{sT0}, s{sT0}, s{sW}
    v_lshlrev_b32 v{vTMP}, 7, v{vLane}
    s_lshl_b32 s{sT1}, s{sT0}, 13
    s_add_u32 s{sT2}, s{sT1}, {PC}
    s_add_u32 s{sT3}, s{sT1}, {PE}
    s_cmp_ge_u32 s{sT0}, 32
    s_cbranch_scc1 L_fin
    buffer_load_dword v{vPT}, v{vTMP}, {WS}, s{sT2} offen sc1
    s_cmp_ge_u32 s{sT0}, 28
    s_cbranch_scc1 L_fin
    buffer_load_dword v{vPT}, v{vTMP}, {WS}, s{sT3} offen sc1""")
a("L_fin:")
if STAMPS:
    a(f"""
    s_waitcnt lgkmcnt(0)
    s_mov_b64 exec, 1
    s_lshl_b32 s{sT0}, s2, 2
    s_add_u32 s{sT0}, s{sT0}, s{sW}
    s_mul_i32 s{sT0}, s{sT0}, 128
    s_add_u32 s{sT0}, s{sT0}, {STAMP}
    v_mov_b32 v6, 0""")
    for i in range(16):
        if i < NST:
            a(f"v_mov_b32 v4, s{sST+2*i}\nv_mov_b32 v5, s{sST+2*i+1}")
        else:
            a("v_mov_b32 v4, 0\nv_mov_b32 v5, 0")
        a(f"buffer_store_dwordx2 v[4:5], v6, {WS}, s{sT0} offen offset:{i*8}")
a("L_end:\ns_endpgm")
body = a.text()
if STAMPS:
    zi = "".join(f"s_mov_b32 s{sST+i}, 0\n" for i in range(16, 2 * NST))
    body = body.replace("@@ZI@@", zi)
body, n = fix(body)
print(wrap(body, 256, 256, LDS_SIZE, NVGPR, 102, pad=(PAD if PAD >= 0 else None), doc=DOC))
print(f"; inserted {n} nops", file=sys.stderr)
```

```python
import sys
from asmgen import *
from hazard import fix

STAMPS = "--stamps" in sys.argv
def opt(name, default):
    for x in sys.argv:
        if x.startswith(f"--{name}="):
            return type(default)(x.split("=", 1)[1])
    return default
NT = opt("nt", "nt")
SLQ = opt("slq", 1); SLB = opt("slb", 0); SLH = opt("slh", 1); SLE = opt("sle", 0)
DLC = opt("dlc", 10); STGC = opt("stgc", 5); STGE = opt("stge", 3); FORCEG = opt("forceg", 0)
KDELAY = opt("kdelay", 1)
EARLYG = opt("earlyg", 0)
ROWPOS = opt("rowpos", "early")
DLE = opt("dle", 0)
EPIPE = opt("epipe", 1)
CPIPE = opt("cpipe", 1)
FW2 = opt("fw2", 0)
EFLAG = opt("eflag", 1)
DLE2 = opt("dle2", 1)
ROWPRE = opt("rowpre", 0)
VORD = opt("vord", 0)
TPRE = opt("tpre", 4)
KEARLY = opt("kearly", 0)
PAD = opt("pad", 3328)
WARM = opt("warm", 1)
FALIGN = opt("falign", 1)
OPT1 = opt("opt1", 1)
EPEARLY = opt("epearly", 1)
OUTSC = opt("outsc", "")
BEARLY = opt("bearly", 1)
PTOUT = opt("ptout", 2)
DUALQ = opt("dualq", 1)
PTH = opt("pth", 0)
SPINMAX = 0x200000

PH = 0x1000; PF = 0x6000; QP_G = 0x40000; QTOG = 0x20000; PB = 0x80000; PC = 0x100000; PE = 0x140000; STAMP = 0x8000000
KL = 0x0; WL = 0x8000; XN = 0x10000; OL = 0x11000; ML = 0x13400; QP = 0x13480; OB = 0x13900; AL = 0x13980
QL = 0x13B00; MF = 0x13F40; HL = 0x13F80; LDS_SIZE = 86016
sG, sJ, sW, sSPIN, sRO = 3, 4, 5, 6, 7
SX, SK, SV, SROW, SWS = 8, 12, 16, 20, 24
pWO, pW2, pW1, pOUT = 28, 30, 32, 34
sSTA, sSTB, sLM, sXO, sQS, sX2 = 36, 37, 38, 39, 40, 41
sKV, sKV1, sTAG, sTAGB = 44, 45, 46, 47
sT0, sT1, sT2, sT3 = 48, 49, 50, 51
sM1, sM2, sM3 = 52, 54, 56
sLOG2E, sSCALE = 58, 60
sQG, sBP, sSEL0, sSEL1, sF, sTBX, sMODE, sBA = 62, 63, 64, 65, 66, 67, 68, 69
sQ1, sQ2, sQ3 = 42, 43, 2 + 0
sST = 70; NST = 15
sQ3 = 100
vLane, vN, vS = 1, 2, 3
vKD = 4
vVA, vQA = 8, 9
vT = 10
vOW, vMW, vORD, vQW, vQR, vMR, vBP = 10, 11, 12, 16, 17, 18, 19
vKR = 20
vW1, vW1b, vBA, vMFW, vXCA = 24, 25, 26, 27, 28
vTMP = 29
vKF = 32; vVR = 64; vVF = 96; vQ = 128; vQ2 = 144; vO = 160; vS0 = 192; vU = 200
vXA, vXR, vTQ = 240, 241, 242
vW1c = 247; vXC, vEP, vH, vPT = 248, 249, 250, 251; vONE = 252
NVGPR = 256

DOC = """; ---------------------------------------------------------------------------------------------
; ---------------------------------------------------------------------------------------------
"""
a = Asm()
def stamp(i):
    if STAMPS: a(f"s_memrealtime s[{sST+2*i}:{sST+2*i+1}]")
def setexec(mask):
    if mask == -1: a("s_mov_b64 exec, -1"); return
    if mask <= 64: a(f"s_mov_b64 exec, {mask}"); return
    a(f"s_mov_b32 exec_lo, {hex(mask & 0xffffffff)}\ns_mov_b32 exec_hi, {hex(mask >> 32)}")
def spin(loop):
    a(f"s_add_u32 s{sSPIN}, s{sSPIN}, 1\ns_cmp_lt_u32 s{sSPIN}, {SPINMAX}\ns_cbranch_scc1 {loop}\ns_branch L_fin")
def unpack8(src, dst):
    for i in range(4):
        a(f"v_lshlrev_b32 v{dst+2*i}, 16, v{src+i}\nv_and_b32 v{dst+2*i+1}, 0xffff0000, v{src+i}")
def round_bf16(r):
    a(f"v_cvt_pk_bf16_f32 v{r}, v{r}, v{r}\nv_lshlrev_b32 v{r}, 16, v{r}")
def allreduce(regs, op, tmps, steps=(8, 4, 2, 1)):
    for st in steps:
        for r in regs: a(f"{op}_dpp v{r}, v{r}, v{r} row_ror:{st} row_mask:0xf bank_mask:0xf")
    for sw in ("v_permlane16_swap_b32", "v_permlane32_swap_b32"):
        for r, t in zip(regs, tmps): a(f"v_mov_b32 v{t}, v{r}")
        for r, t in zip(regs, tmps): a(f"{sw} v{r}, v{t}")
        for r, t in zip(regs, tmps): a(f"{op} v{r}, v{r}, v{t}")
def perms(raw, frag, b):
    for e in range(8):
        sel = sSEL1 if e & 1 else sSEL0
        for h in range(2):
            r0 = raw + (b * 4 + 2 * h) * 4 + (e >> 1); r1 = raw + (b * 4 + 2 * h + 1) * 4 + (e >> 1)
            a(f"v_perm_b32 v{frag + e*4 + 2*b + h}, v{r1}, v{r0}, s{sel}")
def mfma(d, A, B, c):
    cs = "0" if c is None else f"v[{c}:{c+3}]"
    a(f"v_mfma_f32_16x16x32_bf16 v[{d}:{d+3}], v[{A}:{A+3}], v[{B}:{B+3}], {cs}")
_ls = [0]
def local_store(text):
    _ls[0] += 1; k = _ls[0]
    a(f"s_cmp_lg_u32 s{sMODE}, 0\ns_cbranch_scc1 L_lsg{k}\n{text}\ns_branch L_lsd{k}\nL_lsg{k}:\n{text} sc1\nL_lsd{k}:")
def tagcheck(base, n, acc):
    for i in range(n):
        a(f"v_xor_b32 v{base+4*i+2}, s{sTAG}, v{base+4*i+2}\nv_xor_b32 v{base+4*i+3}, s{sTAGB}, v{base+4*i+3}")
    a(f"v_or_b32 v{acc}, v{base+2}, v{base+3}")
    for i in range(1, n): a(f"v_or3_b32 v{acc}, v{acc}, v{base+4*i+2}, v{base+4*i+3}")
    a(f"v_cmp_ne_u32 vcc, 0, v{acc}")
WS = f"s[{SWS}:{SWS+3}]"

vX = vU; vXF = vU + 4; vA1, vA2, vA3 = vU + 12, vU + 13, vU + 14; vX2 = vU + 16; vPK = vQ2
vWQ = vTMP
vQPW, vQPR, vQPS = vU + 20, vU + 21, vU + 22
vGq = vU + 36

def blk_prologue():
    stamp(0)
    a(f"""
    s_lshr_b32 s{sJ}, s2, 3
    s_load_dwordx2 s[{SROW}:{SROW+1}], s[0:1], 24
    s_load_dwordx2 s[{SX}:{SX+1}], s[0:1], 0
    s_load_dwordx2 s[{SWS}:{SWS+1}], s[0:1], 80
    s_cmp_ge_u32 s{sJ}, 32
    s_cbranch_scc1 L_end
    v_lshrrev_b32 v{vT}, 6, v0
    v_and_b32 v{vLane}, 63, v0
    v_readfirstlane_b32 s{sW}, v{vT}
    v_bfe_u32 v{vS}, v0, 4, 2
    v_and_b32 v{vT+1}, 7, v0
    v_lshlrev_b32 v{vT+2}, 1, v{vS}
    v_xor_b32 v{vT+1}, v{vT+1}, v{vT+2}
    v_lshrrev_b32 v{vT}, 3, v{vLane}
    v_lshlrev_b32 v{vT}, 13, v{vT}
    v_lshl_or_b32 v{vWQ}, v{vT+1}, 4, v{vT}
    s_and_b32 s{sG}, s2, 7
    s_lshl_b32 s{sT1}, s{sG}, 10
    s_and_b32 s{sT2}, s{sJ}, 7
    s_lshl_b32 s{sT2}, s{sT2}, 7
    s_add_u32 s{sT1}, s{sT1}, s{sT2}
    s_lshr_b32 s{sT2}, s{sJ}, 3
    s_lshl_b32 s{sT2}, s{sT2}, 2
    s_add_u32 s{sT2}, s{sT2}, s{sW}
    s_lshl_b32 s{sX2}, s{sT2}, 6
    s_lshl_b32 s{sT2}, s{sT2}, 18
    s_add_u32 s{sT1}, s{sT1}, s{sT2}
    s_lshl_b32 s{sT2}, s{sW}, 12
    s_bitset1_b32 s{sT2}, 15
    s_mov_b32 m0, s{sT2}
    s_lshl_b32 s{SROW+3}, 1, 17
    s_lshl_b32 s{SROW+2}, 1, 22
    s_movk_i32 s{SX+2}, 0x400
    s_mov_b32 s{SX+3}, s{SROW+3}
    s_lshl_b32 s{SWS+2}, 1, 28
    s_mov_b32 s{SWS+3}, s{SROW+3}
    s_mov_b32 s{sT3}, {8 * 8192 - 1024}
    v_lshlrev_b32 v{vT}, 4, v{vLane}
    v_and_b32 v{vN}, 15, v0
    v_lshlrev_b32 v{vT+3}, 2, v{vN}
    s_waitcnt lgkmcnt(0)""")
    a(f"buffer_load_dwordx4 v[{vX}:{vX+3}], v{vT}, s[{SX}:{SX+3}], 0 offen")
    a(f"buffer_load_dword v{vX2}, v{vT+3}, s[{SX}:{SX+3}], s{sX2} offen")
    for i in range(4):
        a(f"buffer_load_dwordx4 v{vWQ}, s[{SROW}:{SROW+3}], s{sT1} offen offset:{i * 1024} {NT} lds")
        if i < 3: a(f"s_add_u32 s{sT1}, s{sT1}, s{sT3}")
    stamp(1)
    a(f"""
    s_load_dwordx2 s[{SK}:{SK+1}], s[0:1], 8
    s_load_dwordx2 s[{SV}:{SV+1}], s[0:1], 16
    buffer_load_dword v{vEP}, off, {WS}, 0 sc1
    s_load_dwordx2 s[{pWO}:{pWO+1}], s[0:1], 32
    s_load_dwordx2 s[{pW1}:{pW1+1}], s[0:1], 48
    s_load_dwordx2 s[{pW2}:{pW2+1}], s[0:1], 56
    s_load_dwordx2 s[{pOUT}:{pOUT+1}], s[0:1], 64""")

def blk_issue_K():
    a(f"""
    s_lshl_b32 s{sKV}, s{sG}, 23
    s_lshl_b32 s{sT0}, s{sJ}, 12
    s_add_u32 s{sKV}, s{sKV}, s{sT0}
    s_lshl_b32 s{sT0}, s{sW}, 18
    s_add_u32 s{sKV}, s{sKV}, s{sT0}
    s_add_u32 s{sKV}, s{sKV}, 7340032
    s_add_u32 s{sKV1}, s{sKV}, 131072
    v_xor_b32 v{vTMP}, v{vN}, v{vS}
    v_lshlrev_b32 v{vTMP}, 4, v{vTMP}
    v_lshl_or_b32 v{vKD}, v{vS}, 8, v{vTMP}
    v_xor_b32 v{vKD+1}, 64, v{vKD}
    v_xor_b32 v{vKD+2}, 128, v{vKD}
    v_xor_b32 v{vKD+3}, 192, v{vKD}
    s_lshl_b32 s{sT0}, s{sW}, 13
    s_mov_b32 m0, s{sT0}
    s_mov_b32 s{SK+2}, 67108864
    s_mov_b32 s{SK+3}, 0x20000
    s_waitcnt lgkmcnt(0)""")
    for i in range(4):
        a(f"buffer_load_dwordx4 v{vKD+i}, s[{SK}:{SK+3}], s{sKV} offen offset:{i*1024} {NT} lds")
    a(f"s_add_u32 s{sT0}, s{sT0}, 4096\ns_mov_b32 m0, s{sT0}")
    for i in range(4):
        a(f"buffer_load_dwordx4 v{vKD+i}, s[{SK}:{SK+3}], s{sKV1} offen offset:{i*1024} {NT} lds")

def blk_pre_q():
    t = vTMP
    a(f"""
    s_mov_b32 s{SV+2}, 67108864
    s_mov_b32 s{SV+3}, 0x20000
    v_lshlrev_b32 v{t}, 4, v{vN}
    v_lshl_or_b32 v{vVA}, v{vS}, 10, v{t}
    s_mov_b32 s{sSPIN}, 0
    s_mov_b32 s{sSEL0}, 0x05040100
    s_mov_b32 s{sSEL1}, 0x07060302
    s_mov_b32 s{sLOG2E}, 0x3fb8aa3b
    s_mov_b32 s{sLOG2E+1}, 0x3fb8aa3b
    s_mov_b32 s{sSCALE}, 0x3db504f3
    s_mov_b32 s{sSCALE+1}, 0x3db504f3
    v_cmp_eq_u32 s[{sM1}:{sM1+1}], 1, v{vS}
    v_cmp_eq_u32 s[{sM2}:{sM2+1}], 2, v{vS}
    v_cmp_eq_u32 s[{sM3}:{sM3+1}], 3, v{vS}
    s_lshl_b32 s{sT0}, s{sW}, 6
    s_add_u32 s{sT0}, s{sT0}, {XN}
    v_bfe_u32 v{t}, v{vN}, 1, 2
    v_lshlrev_b32 v{vXA}, 4, v{t}
    v_lshrrev_b32 v{t}, 3, v{vN}
    v_lshl_or_b32 v{vXA}, v{t}, 3, v{vXA}
    v_and_b32 v{t}, 1, v{vN}
    v_lshl_or_b32 v{vXA}, v{t}, 2, v{vXA}
    v_add_u32 v{vXA}, s{sT0}, v{vXA}
    v_lshl_add_u32 v{vXR}, v{vS}, 4, s{sT0}
    s_lshl_b32 s{sT0}, s{sW}, 12
    s_add_u32 s{sT0}, s{sT0}, {WL}
    v_lshrrev_b32 v{t}, 2, v{vN}
    v_lshl_or_b32 v{t+1}, v{vS}, 2, v{t}
    v_bfe_u32 v{t+2}, v{t+1}, 1, 2
    v_lshlrev_b32 v{t+1}, 7, v{t+1}
    v_lshl_or_b32 v{t+1}, v{t+2}, 5, v{t+1}
    v_and_b32 v{t+2}, 3, v{vN}
    v_lshl_or_b32 v{t+1}, v{t+2}, 3, v{t+1}
    v_add_u32 v{vTQ}, s{sT0}, v{t+1}
    v_xor_b32 v{vTQ+1}, 32, v{vTQ}
    v_xor_b32 v{vTQ+2}, 64, v{vTQ}
    v_xor_b32 v{vTQ+3}, 96, v{vTQ}
    s_lshl_b32 s{sT0}, s{sW}, 2
    s_add_u32 s{sT0}, s{sT0}, {QP}
    v_lshl_add_u32 v{vQPW}, v{vLane}, 4, s{sT0}
    s_lshl_b32 s{sT0}, s{sW}, 8
    s_add_u32 s{sT0}, s{sT0}, {QP}
    v_lshl_add_u32 v{vQPR}, v{vN}, 4, s{sT0}
    s_lshl_b32 s{sQG}, s{sG}, 14
    s_add_u32 s{sQG}, s{sQG}, {QP_G}
    s_lshr_b32 s{sT0}, s{sJ}, 3
    s_lshl_b32 s{sT0}, s{sT0}, 12
    s_and_b32 s{sT1}, s{sJ}, 7
    s_lshl_b32 s{sT1}, s{sT1}, 9
    s_add_u32 s{sT0}, s{sT0}, s{sT1}
    s_lshl_b32 s{sT1}, s{sW}, 7
    s_add_u32 s{sT0}, s{sT0}, s{sT1}
    s_add_u32 s{sQS}, s{sT0}, s{sQG}
    v_lshrrev_b32 v{vQPS}, 1, v{vN}
    v_lshlrev_b32 v{vQPS}, 4, v{vQPS}""")

def blk_pre_att():
    t = vTMP
    a(f"""
    s_lshl_b32 s{sT0}, s{sW}, 13
    v_xor_b32 v{t}, v{vN}, v{vS}
    v_lshlrev_b32 v{t}, 4, v{t}
    v_lshl_or_b32 v{t}, v{vN}, 8, v{t}
    v_add_u32 v{vKR}, s{sT0}, v{t}
    v_xor_b32 v{vKR+1}, 64, v{vKR}
    v_xor_b32 v{vKR+2}, 128, v{vKR}
    v_xor_b32 v{vKR+3}, 192, v{vKR}
    v_mov_b32 v{vONE}, 0x3f803f80
    v_mov_b32 v{vONE+1}, 0x3f803f80
    v_mov_b32 v{vONE+2}, 0x3f803f80
    v_mov_b32 v{vONE+3}, 0x3f803f80
    s_mul_i32 s{sT0}, s{sW}, 272
    s_add_u32 s{sT0}, s{sT0}, {QL}
    v_lshl_add_u32 v{vQW}, v{vLane}, 2, s{sT0}
    v_lshrrev_b32 v{vQR}, 2, v{vN}
    v_mul_u32_u24 v{vQR}, 272, v{vQR}
    v_lshl_add_u32 v{vQR}, v{vS}, 4, v{vQR}
    v_add_u32 v{vQR}, {QL}, v{vQR}
    s_lshl_b32 s{sT0}, s{sW}, 10
    s_add_u32 s{sQG}, s{sQG}, s{sT0}
    {"" if DUALQ else "s_xor_b32 s%d, s%d, %d" % (sQG, sQG, QTOG)}
    s_add_u32 s{sQ1}, s{sQG}, 4096
    s_add_u32 s{sQ2}, s{sQG}, 8192
    s_add_u32 s{sQ3}, s{sQG}, 12288
    v_lshlrev_b32 v{vQA}, 4, v{vLane}
    s_mul_i32 s{sT0}, s{sW}, 2304
    s_add_u32 s{sT0}, s{sT0}, {OL}
    v_mul_u32_u24 v{vOW}, 576, v{vS}
    v_mad_u32_u24 v{vOW}, v{vN}, 36, v{vOW}
    v_add_u32 v{vOW}, s{sT0}, v{vOW}
    s_lshl_b32 s{sT0}, s{sW}, 3
    s_add_u32 s{sT0}, s{sT0}, {ML}
    v_lshlrev_b32 v{vMW}, 5, v{vS}
    v_add_u32 v{vMW}, s{sT0}, v{vMW}
    s_mul_i32 s{sT0}, s{sW}, 576
    s_add_u32 s{sT0}, s{sT0}, {OL}
    v_lshrrev_b32 v{vORD}, 2, v{vLane}
    v_mul_u32_u24 v{vORD}, 36, v{vORD}
    v_and_b32 v{vORD+1}, 3, v{vLane}
    v_lshl_add_u32 v{vORD}, v{vORD+1}, 3, v{vORD}
    v_add_u32 v{vORD}, s{sT0}, v{vORD}
    v_add_u32 v{vORD+1}, 2304, v{vORD}
    v_add_u32 v{vORD+2}, 4608, v{vORD}
    v_add_u32 v{vORD+3}, 6912, v{vORD}
    s_lshl_b32 s{sT0}, s{sW}, 5
    s_add_u32 s{sT0}, s{sT0}, {ML}
    v_mov_b32 v{vMR}, s{sT0}
    s_lshl_b32 s{sT0}, s{sW}, 2
    s_add_u32 s{sT0}, s{sT0}, {MF}
    v_mov_b32 v{vMFW}, s{sT0}
    s_lshl_b32 s{sT0}, s{sG}, 4
    s_lshl_b32 s{sT1}, s{sW}, 2
    s_add_u32 s{sT0}, s{sT0}, s{sT1}
    s_lshl_b32 s{sT0}, s{sT0}, 5
    s_add_u32 s{sT0}, s{sT0}, s{sJ}
    s_lshl_b32 s{sT0}, s{sT0}, 7
    s_add_u32 s{sBP}, s{sT0}, {PB}
    v_lshrrev_b32 v{vBP}, 1, v{vN}
    v_lshlrev_b32 v{vBP}, 4, v{vBP}
    v_lshl_or_b32 v{vBP}, v{vS}, 12, v{vBP}
    v_lshlrev_b32 v{t}, 1, v{vS}
    v_xor_b32 v{t}, v{t}, v{vN}
    v_lshlrev_b32 v{t}, 4, v{t}
    v_lshl_or_b32 v{vW1}, v{vS}, 10, v{t}
    v_xor_b32 v{vW1b}, 128, v{vW1}
    s_mov_b32 s{sSTA}, {4096 - 1024}
    s_mov_b32 s{sSTB}, {4096 + 3072}
    s_lshl_b32 s{sLM}, s{sW}, 13
    s_lshr_b32 s{sXO}, s{sJ}, 1
    s_lshl_b32 s{sXO}, s{sXO}, 7
    s_and_b32 s{sT0}, s{sJ}, 1
    s_lshl_b32 s{sT0}, s{sT0}, 4
    s_add_u32 s{sXO}, s{sXO}, s{sT0}
    v_bfe_u32 v{vXCA}, v{vLane}, 3, 2
    v_lshlrev_b32 v{vXCA}, 5, v{vXCA}
    v_and_b32 v{t}, 7, v{vLane}
    v_lshl_or_b32 v{vXCA}, v{t}, 1, v{vXCA}
    s_cmp_ge_u32 s{sJ}, 16
    s_cbranch_scc1 L_pre_f
    s_lshl_b32 s{sF}, s{sG}, 4
    s_add_u32 s{sF}, s{sF}, s{sJ}
    s_lshl_b32 s{sBA}, s{sF}, 12
    s_add_u32 s{sBA}, s{sBA}, {PB}
    s_lshl_b32 s{sT0}, s{sW}, 5
    s_add_u32 s{sBA}, s{sBA}, s{sT0}
    v_lshrrev_b32 v{vBA}, 1, v{vLane}
    v_lshlrev_b32 v{vBA}, 7, v{vBA}
    v_and_b32 v{t}, 1, v{vLane}
    v_lshl_or_b32 v{vBA}, v{t}, 4, v{vBA}
    v_mov_b32 v{vW1c}, 0
    s_mov_b32 s{sT2}, 4194304
    s_waitcnt lgkmcnt(0)
    s_mov_b32 s{sT0}, s{pWO}
    s_mov_b32 s{sT1}, s{pWO+1}
    s_branch L_pre_d
L_pre_f:
    s_mul_i32 s{sF}, s{sG}, 7
    s_add_u32 s{sF}, s{sF}, s{sJ}
    s_sub_u32 s{sF}, s{sF}, 16
    s_lshl_b32 s{sBA}, s{sG}, 11
    s_add_u32 s{sBA}, s{sBA}, {PH}
    v_lshlrev_b32 v{vBA}, 5, v{vLane}
    v_lshrrev_b32 v{t}, 2, v{vLane}
    v_mul_u32_u24 v{vW1c}, 3584, v{t}
    v_and_b32 v{t}, 3, v{vLane}
    v_lshlrev_b32 v{t+1}, 1, v{vS}
    v_and_b32 v{t+1}, 2, v{t+1}
    v_xor_b32 v{t}, v{t}, v{t+1}
    v_lshl_add_u32 v{vW1c}, v{t}, 4, v{vW1c}
    s_cmp_ge_u32 s{sJ}, {0 if FW2 else 23}
    s_cselect_b32 s{sT2}, 0, 1835008
    s_waitcnt lgkmcnt(0)
    s_mov_b32 s{sT0}, s{pW2}
    s_mov_b32 s{sT1}, s{pW2+1}
L_pre_d:
    s_mov_b32 s{SROW}, s{sT0}
    s_mov_b32 s{SROW+1}, s{sT1}
    s_mov_b32 s{SROW+2}, s{sT2}
    s_lshl_b32 s{sRO}, s{sF}, 15
    s_lshl_b32 s{sT0}, s{sW}, 8
    s_add_u32 s{sRO}, s{sRO}, s{sT0}""")


def tagcalc():
    a(f"""
    v_readfirstlane_b32 s{sTAG}, v{vEP}
    s_getreg_b32 s{sTBX}, hwreg(HW_REG_XCC_ID)
    s_nop 1
    s_add_u32 s{sTAG}, s{sTAG}, 0x9e3779b8
    s_or_b32 s{sTAG}, s{sTAG}, 1
    s_xor_b32 s{sTAGB}, s{sTAG}, 0x5bd1e994
    s_and_b32 s{sTBX}, s{sTBX}, 7
    s_xor_b32 s{sTBX}, s{sTBX}, s{sTAGB}""")

def issue_V(b):
    for jj in range(4):
        r = vVR + (b * 4 + jj) * 4
        a(f"buffer_load_dwordx4 v[{r}:{r+3}], v{vVA}, s[{SV}:{SV+3}], s{sKV1 if b else sKV} offen offset:{jj*256} {NT}")

def blk_ln(extra=0):
    a(f"s_waitcnt vmcnt({14 + extra})")
    unpack8(vX, vXF)
    a(f"""
    v_pk_add_f32 v[{vPK}:{vPK+1}], v[{vXF}:{vXF+1}], v[{vXF+2}:{vXF+3}]
    v_pk_add_f32 v[{vPK+2}:{vPK+3}], v[{vXF+4}:{vXF+5}], v[{vXF+6}:{vXF+7}]
    v_pk_add_f32 v[{vPK}:{vPK+1}], v[{vPK}:{vPK+1}], v[{vPK+2}:{vPK+3}]
    v_add_f32 v{vA1}, v{vPK}, v{vPK+1}""")
    allreduce([vA1], "v_add_f32", [vA2])
    a(f"v_mul_f32 v{vA1}, 0xbb000000, v{vA1}\nv_mov_b32 v{vA2}, v{vA1}")
    for i in range(4):
        a(f"v_pk_add_f32 v[{vPK+2*i}:{vPK+2*i+1}], v[{vXF+2*i}:{vXF+2*i+1}], v[{vA1}:{vA2}]")
    a(f"v_pk_mul_f32 v[{vXF}:{vXF+1}], v[{vPK}:{vPK+1}], v[{vPK}:{vPK+1}]")
    for i in range(1, 4):
        a(f"v_pk_fma_f32 v[{vXF}:{vXF+1}], v[{vPK+2*i}:{vPK+2*i+1}], v[{vPK+2*i}:{vPK+2*i+1}], v[{vXF}:{vXF+1}]")
    a(f"v_add_f32 v{vA2}, v{vXF}, v{vXF+1}\nv_mul_f32 v{vA1}, -1.0, v{vA1}")
    allreduce([vA2], "v_add_f32", [vA3])
    a(f"v_mul_f32 v{vA2}, 0x3b000000, v{vA2}")
    round_bf16(vA1); round_bf16(vA2)
    a(f"v_add_f32 v{vA2}, 0x3727c5ac, v{vA2}")
    round_bf16(vA2)
    a(f"v_sqrt_f32 v{vA2}, v{vA2}")
    round_bf16(vA2)
    a(f"""
    v_rcp_f32 v{vA3}, v{vA2}
    s_waitcnt vmcnt({13 + extra})
    v_lshlrev_b32 v{vXF}, 16, v{vX2}
    v_and_b32 v{vXF+1}, 0xffff0000, v{vX2}
    v_sub_f32 v{vXF}, v{vXF}, v{vA1}
    v_sub_f32 v{vXF+1}, v{vXF+1}, v{vA1}
    v_cvt_pk_bf16_f32 v{vX2}, v{vXF}, v{vXF+1}
    v_lshlrev_b32 v{vXF}, 16, v{vX2}
    v_and_b32 v{vXF+1}, 0xffff0000, v{vX2}
    v_mul_f32 v{vXF+2}, v{vXF}, v{vA3}
    v_mul_f32 v{vXF+3}, v{vXF+1}, v{vA3}
    v_fma_f32 v{vXF}, -v{vXF+2}, v{vA2}, v{vXF}
    v_fma_f32 v{vXF+1}, -v{vXF+3}, v{vA2}, v{vXF+1}
    v_fma_f32 v{vXF}, v{vXF}, v{vA3}, v{vXF+2}
    v_fma_f32 v{vXF+1}, v{vXF+1}, v{vA3}, v{vXF+3}
    v_cvt_pk_bf16_f32 v{vX2}, v{vXF}, v{vXF+1}""")
    setexec(0xffff)
    a(f"ds_write_b32 v{vXA}, v{vX2}")
    setexec(-1)
    a(f"""
    s_waitcnt lgkmcnt(0)
    ds_read_b128 v[{vQ}:{vQ+3}], v{vXR}""")

def blk_qphase(nv=4):
    a(f"s_waitcnt vmcnt({8 + nv})")
    stamp(2)
    for c in range(4):
        r = vKF + c * 4
        a(f"ds_read_b64_tr_b16 v[{r}:{r+1}], v{vTQ+c}\nds_read_b64_tr_b16 v[{r+2}:{r+3}], v{vTQ+c} offset:2048")
    tagcalc()
    a(f"v_mov_b32 v{vGq+2}, s{sTAG}\nv_mov_b32 v{vGq+3}, s{sTBX}")
    a("s_waitcnt lgkmcnt(0)")
    for c in range(4): mfma(vO + 4 * c, vQ, vKF + 4 * c, None)
    t = vU
    a(f"""
    v_cndmask_b32 v{t}, v{vO}, v{vO+4}, s[{sM1}:{sM1+1}]
    v_cndmask_b32 v{t}, v{t}, v{vO+8}, s[{sM2}:{sM2+1}]
    v_cndmask_b32 v{t}, v{t}, v{vO+12}, s[{sM3}:{sM3+1}]
    ds_write_b32 v{vQPW}, v{t}
    s_waitcnt lgkmcnt(0)
    s_barrier
    ds_read_b128 v[{t+4}:{t+7}], v{vQPR}
    s_waitcnt lgkmcnt(0)
    v_pk_add_f32 v[{t+4}:{t+5}], v[{t+4}:{t+5}], v[{t+6}:{t+7}]
    v_add_f32 v{vGq}, v{t+4}, v{t+5}
    v_mov_b32_dpp v{vGq+1}, v{vGq} quad_perm:[1,1,3,3] row_mask:0xf bank_mask:0xf""")
    setexec(0x5555)
    if DUALQ:
        a(f"buffer_store_dwordx4 v[{vGq}:{vGq+3}], v{vQPS}, {WS}, s{sQS} offen")
    a(f"s_xor_b32 s{sQS}, s{sQS}, {QTOG}")
    a(f"buffer_store_dwordx4 v[{vGq}:{vGq+3}], v{vQPS}, {WS}, s{sQS} offen sc1")
    setexec(-1)
    stamp(3)

vQG = vQ2
def issue_qpoll():
    for kq, so in enumerate((sQG, sQ1, sQ2, sQ3)):
        a(f"buffer_load_dwordx4 v[{vQG+4*kq}:{vQG+4*kq+3}], v{vQA}, {WS}, s{so} offen sc1")
def row_load(i):
    if i == 0: a(f"s_mov_b32 m0, s{sLM}")
    if i == 4: a(f"s_add_u32 s{sLM}, s{sLM}, 4096\ns_mov_b32 m0, s{sLM}")
    a(f"buffer_load_dwordx4 v{vW1b if i & 1 else vW1}, s[{SROW}:{SROW+3}], s{sRO} offen offset:{(i & 3)*1024} {NT} lds")
    if i < 7: a(f"s_add_u32 s{sRO}, s{sRO}, s{sSTB if (i & 3) == 3 else sSTA}")
_rows = [0]
SCHED = {"early": [2, 0, 2, 1, 1, 1, 1, 0], "spread": [1] * 8, "burst": [4, 0, 4, 0, 0, 0, 0, 0]}[ROWPOS]
def row_slot(i):
    if VORD == 3: return
    n = 8 if i == 7 else SCHED[i]
    for _ in range(n):
        if _rows[0] < 8:
            row_load(_rows[0]); _rows[0] += 1
def xc_pt():
    a(f"buffer_load_ushort v{vXC}, v{vXCA}, s[{SX}:{SX+3}], s{sXO} offen")
    a(f"buffer_load_dword v{vPT}, v{vBA}, {WS}, s{sBA} offen sc1")

blk_prologue()
if KDELAY == 2:
    blk_pre_q(); blk_pre_att(); blk_issue_K()
elif KDELAY == 1:
    blk_pre_q(); blk_issue_K()
else:
    blk_issue_K(); blk_pre_q()
NQS = 2 if DUALQ else 1
if VORD == 0:
    blk_ln(); issue_V(0); blk_qphase(4); issue_V(1)
    WK, WV0, WV1 = 8 + NQS, 4 + NQS, 2
elif VORD == 1:
    blk_ln(); issue_V(0); issue_V(1); blk_qphase(8)
    WK, WV0, WV1 = 8 + NQS, 4 + NQS, 2 + NQS
elif VORD == 2:
    issue_V(0); blk_ln(4); issue_V(1); blk_qphase(8)
    WK, WV0, WV1 = 8 + NQS, 4 + NQS, 2 + NQS
elif VORD == 3:
    blk_ln(); issue_V(0); blk_qphase(4)
    WK = 4 + NQS - KEARLY
if KDELAY != 2: blk_pre_att()
if PTOUT and VORD == 0:
    a(f"""
    s_cmp_ge_u32 s{sJ}, 16
    s_cselect_b32 s{SK}, s{pW1}, s{pOUT}
    s_cselect_b32 s{SK+1}, s{pW1+1}, s{pOUT+1}
    s_movk_i32 s{sT0}, 0x400
    s_cselect_b32 s{SK+2}, 1835008, s{sT0}
    s_mul_i32 s{sT0}, s{sW}, {128*3584}
    s_cselect_b32 s{sT0}, s{sT0}, 0
    buffer_load_dword v{vPT}, off, s[{SK}:{SK+3}], s{sT0}""")
    NPT = 1
    if PTOUT >= 2:
        a(f"buffer_load_dword v{vPT}, off, s[{SROW}:{SROW+3}], s{sRO}")
        NPT = 2
    WK += NPT; WV0 += NPT; WV1 += NPT
if WARM == 1:
    a("s_branch L_warm1\nL_warm_ret:")
elif WARM == 2:
    a(f"s_cmp_ge_u32 s{sJ}, 16\ns_cbranch_scc1 L_warm1\ns_branch L_warm2\nL_warm_ret:")
if VORD == 3:
    a(f"s_waitcnt vmcnt({4 + NQS + KEARLY})")
    stamp(4)
    issue_qpoll()
    issue_V(1)
    a(f"s_waitcnt vmcnt({4 + NQS + 8})")
    for b in range(2):
        for i in range(4):
            r = vKF + (b * 4 + i) * 4
            a(f"ds_read_b128 v[{r}:{r+3}], v{vKR+i} offset:{b*4096}")
    a(f"s_waitcnt vmcnt({NQS + 8})")
    perms(vVR, vVF, 0)
    stamp(5)
    a("s_waitcnt vmcnt(4)\ns_branch L_qchk0")
else:
    a(f"s_waitcnt vmcnt({WK})")
    stamp(4)
    for b in range(2):
        for i in range(4):
            r = vKF + (b * 4 + i) * 4
            a(f"ds_read_b128 v[{r}:{r+3}], v{vKR+i} offset:{b*4096}")
    a(f"s_waitcnt vmcnt({WV0})")
    perms(vVR, vVF, 0)
    if EARLYG:
        issue_qpoll()
        a("s_waitcnt lgkmcnt(0)")
        for i in range(8): row_load(i)
        _rows[0] = 8
        xc_pt()
        a("s_waitcnt vmcnt(14)")
        perms(vVR, vVF, 1)
        stamp(5)
        a("s_waitcnt vmcnt(10)\ns_branch L_qchk0")
    elif ROWPRE:
        a("s_waitcnt vmcnt(2)")
        issue_qpoll()
        a("s_waitcnt vmcnt(4) lgkmcnt(0)")
        for i in range(ROWPRE): row_load(i)
        _rows[0] = ROWPRE
        perms(vVR, vVF, 1)
        stamp(5)
        a(f"s_waitcnt vmcnt({ROWPRE})\ns_branch L_qchk0")
    else:
        a(f"s_waitcnt vmcnt({WV1})")
        issue_qpoll()
        if not OPT1:
            a(f"s_waitcnt vmcnt({4 + (NQS if VORD else 0)})")
            perms(vVR, vVF, 1)
        stamp(5)
t = vU
a(f"""
L_qcheck:
    s_waitcnt vmcnt(0)
L_qchk0:
    v_add_f32 v{t}, v{vQG}, v{vQG+4}
    v_add_f32 v{t+1}, v{vQG+1}, v{vQG+5}
    v_add_f32 v{t+2}, v{vQG+8}, v{vQG+12}
    v_add_f32 v{t+3}, v{vQG+9}, v{vQG+13}
    v_add_f32 v{t}, v{t}, v{t+2}
    v_add_f32 v{t+1}, v{t+1}, v{t+3}
    v_xor_b32 v{vQG+2}, s{sTAG}, v{vQG+2}
    v_cvt_pk_bf16_f32 v{t}, v{t}, v{t+1}
    v_xor_b32 v{vQG+6}, s{sTAG}, v{vQG+6}
    ds_write_b32 v{vQW}, v{t}
    v_xor_b32 v{vQG+10}, s{sTAG}, v{vQG+10}
    v_xor_b32 v{vQG+14}, s{sTAG}, v{vQG+14}
    v_or3_b32 v{vQG+2}, v{vQG+2}, v{vQG+6}, v{vQG+10}
    v_or_b32 v{vQG+2}, v{vQG+2}, v{vQG+14}
    v_cmp_ne_u32 vcc, 0, v{vQG+2}
    s_cbranch_vccz L_qok
    {"s_sleep %d" % SLQ if SLQ else ""}""")
if DUALQ:
    for r in (sQG, sQ1, sQ2, sQ3): a(f"s_xor_b32 s{r}, s{r}, {QTOG}")
issue_qpoll()
spin("L_qcheck")
a("L_qok:\ns_waitcnt lgkmcnt(0)\ns_barrier")
for i in range(4): a(f"ds_read_b128 v[{vQ+4*i}:{vQ+4*i+3}], v{vQR} offset:{i*64}")
stamp(6)
row_slot(0)
a(f"""
    v_xor_b32 v{vQG+3}, s{sTBX}, v{vQG+3}
    v_xor_b32 v{vQG+7}, s{sTBX}, v{vQG+7}
    v_xor_b32 v{vQG+11}, s{sTBX}, v{vQG+11}
    v_xor_b32 v{vQG+15}, s{sTBX}, v{vQG+15}
    v_or3_b32 v{vQG+3}, v{vQG+3}, v{vQG+7}, v{vQG+11}
    v_or_b32 v{vQG+3}, v{vQG+3}, v{vQG+15}
    v_cmp_ne_u32 vcc, 0, v{vQG+3}
    s_cmp_lg_u64 vcc, 0
    s_cselect_b32 s{sMODE}, 1, 0
    v_mov_b32 v{vTMP}, s{sMODE}""")
row_slot(1)
a("s_waitcnt lgkmcnt(0)")
for i in range(4):
    for b in range(2): mfma(vS0 + 4 * b, vKF + (b * 4 + i) * 4, vQ + 4 * i, None if i == 0 else vS0 + 4 * b)
vP = vU; vR4 = vU + 8; vM = vU + 12; vMT = vU + 14
if OPT1 and not EARLYG and not ROWPRE and VORD != 3:
    perms(vVR, vVF, 1)
a(f"ds_write_b32 v{vMFW}, v{vTMP}")
row_slot(2)
for i in range(4): a(f"v_cvt_pk_bf16_f32 v{vR4+i}, v{vS0+2*i}, v{vS0+2*i+1}")
unpack8(vR4, vP)
row_slot(3)
for i in range(4): a(f"v_pk_mul_f32 v[{vP+2*i}:{vP+2*i+1}], v[{vP+2*i}:{vP+2*i+1}], s[{sSCALE}:{sSCALE+1}]")
for i in range(4): a(f"v_cvt_pk_bf16_f32 v{vR4+i}, v{vP+2*i}, v{vP+2*i+1}")
unpack8(vR4, vP)
row_slot(4)
a(f"""
    v_max3_f32 v{vM}, v{vP}, v{vP+1}, v{vP+2}
    v_max3_f32 v{vMT}, v{vP+3}, v{vP+4}, v{vP+5}
    v_max3_f32 v{vM}, v{vM}, v{vP+6}, v{vP+7}
    v_max_f32 v{vM}, v{vM}, v{vMT}
    v_mov_b32 v{vMT}, v{vM}
    v_permlane16_swap_b32 v{vM}, v{vMT}
    v_max_f32 v{vM}, v{vM}, v{vMT}
    v_mov_b32 v{vMT}, v{vM}
    v_permlane32_swap_b32 v{vM}, v{vMT}
    v_max_f32 v{vM}, v{vM}, v{vMT}
    v_mul_f32 v{vM}, s{sLOG2E}, v{vM}""")
for i in range(4): a(f"v_pk_fma_f32 v[{vP+2*i}:{vP+2*i+1}], v[{vP+2*i}:{vP+2*i+1}], s[{sLOG2E}:{sLOG2E+1}], v[{vM}:{vM+1}] op_sel_hi:[1,1,0] neg_lo:[0,0,1] neg_hi:[0,0,1]")
row_slot(5)
for i in range(8): a(f"v_exp_f32 v{vP+i}, v{vP+i}")
for i in range(4): a(f"v_cvt_pk_bf16_f32 v{vR4+i}, v{vP+2*i}, v{vP+2*i+1}")
vL = vS0
if VORD == 3:
    a("s_waitcnt vmcnt(0)")
    stamp(2)
    for i in range(TPRE): row_load(i)
    perms(vVR, vVF, 1)
mfma(vL, vR4, vONE, None)
for e in range(8): mfma(vO + 4 * e, vR4, vVF + 4 * e, None)
row_slot(6); row_slot(7)
if VORD == 3:
    for i in range(TPRE, 8): row_load(i)
a(f"v_mov_b32 v{vM+1}, v{vL}")
setexec(0x1000010000100001)
a(f"ds_write_b64 v{vMW}, v[{vM}:{vM+1}]")
setexec(-1)
for e in range(0, 8, 2): a(f"ds_write2_b32 v{vOW}, v{vO+4*e}, v{vO+4*e+4} offset0:{e} offset1:{e+1}")
vC = vU + 16; vG = vU + 36
a(f"""
    v_mov_b32 v{vTMP+1}, {MF}
    v_mov_b32 v{vG+3}, s{sTAG}
    s_waitcnt lgkmcnt(0)
    s_barrier
    ds_read_b128 v[{vC}:{vC+3}], v{vMR}
    ds_read_b128 v[{vC+4}:{vC+7}], v{vMR} offset:16""")
for src in range(4): a(f"ds_read2_b32 v[{vC+8+2*src}:{vC+9+2*src}], v{vORD+src} offset0:0 offset1:1")
a(f"ds_read_b128 v[{vQG}:{vQG+3}], v{vTMP+1}")
if not EARLYG: xc_pt()
a(f"""
    s_waitcnt lgkmcnt(5)
    v_max3_f32 v{vC+16}, v{vC}, v{vC+2}, v{vC+4}
    v_max_f32 v{vC+16}, v{vC+16}, v{vC+6}
    v_sub_f32 v{vC}, v{vC}, v{vC+16}
    v_sub_f32 v{vC+2}, v{vC+2}, v{vC+16}
    v_sub_f32 v{vC+4}, v{vC+4}, v{vC+16}
    v_sub_f32 v{vC+6}, v{vC+6}, v{vC+16}
    v_exp_f32 v{vC}, v{vC}
    v_exp_f32 v{vC+2}, v{vC+2}
    v_exp_f32 v{vC+4}, v{vC+4}
    v_exp_f32 v{vC+6}, v{vC+6}
    v_mul_f32 v{vC+17}, v{vC}, v{vC+1}
    v_fmac_f32 v{vC+17}, v{vC+2}, v{vC+3}
    v_fmac_f32 v{vC+17}, v{vC+4}, v{vC+5}
    v_fmac_f32 v{vC+17}, v{vC+6}, v{vC+7}
    s_waitcnt lgkmcnt(0)
    v_rcp_f32 v{vC+18}, v{vC+17}
    v_log_f32 v{vC+19}, v{vC+17}
    v_mul_f32 v{vC+8}, v{vC+8}, v{vC}
    v_mul_f32 v{vC+9}, v{vC+9}, v{vC}
    v_fmac_f32 v{vC+8}, v{vC+10}, v{vC+2}
    v_fmac_f32 v{vC+9}, v{vC+11}, v{vC+2}
    v_fmac_f32 v{vC+8}, v{vC+12}, v{vC+4}
    v_fmac_f32 v{vC+9}, v{vC+13}, v{vC+4}
    v_fmac_f32 v{vC+8}, v{vC+14}, v{vC+6}
    v_fmac_f32 v{vC+9}, v{vC+15}, v{vC+6}
    v_or3_b32 v{vQG}, v{vQG}, v{vQG+1}, v{vQG+2}
    v_mul_f32 v{vC+8}, v{vC+8}, v{vC+18}
    v_mul_f32 v{vC+9}, v{vC+9}, v{vC+18}
    v_or_b32 v{vQG}, v{vQG}, v{vQG+3}
    v_add_f32 v{vG+2}, v{vC+16}, v{vC+19}
    v_cvt_pk_bf16_f32 v{vG}, v{vC+8}, v{vC+9}
    v_readfirstlane_b32 s{sMODE}, v{vQG}""")
if FORCEG: a(f"s_mov_b32 s{sMODE}, 1")
a(f"v_mov_b32_dpp v{vG+1}, v{vG} quad_perm:[1,1,3,3] row_mask:0xf bank_mask:0xf")
setexec(0x5555555555555555)
local_store(f"buffer_store_dwordx4 v[{vG}:{vG+3}], v{vBP}, {WS}, s{sBP} offen")
setexec(-1)
stamp(7)
if STAMPS: a("@@ZI@@")
a(f"s_cmp_ge_u32 s{sJ}, 16\ns_cbranch_scc1 L_ftail")
if WARM == 2:
    a("s_branch L_wtail\n.p2align 12\nL_warm2:\ns_branch L_warm_ret\nL_wtail:")
NYOUNG = 3
vGA, vCA, vCW, vCR, vTW, vt0, vt1, vt2, vPI, vVAL = 10, 11, 12, 13, 14, 15, 16, 17, 18, 19
def tile_addrs():
    a(f"""
    v_lshrrev_b32 v{vt0}, 2, v{vN}
    v_lshl_or_b32 v{vt0}, v{vS}, 2, v{vt0}
    v_and_b32 v{vt1}, 7, v{vt0}
    v_lshlrev_b32 v{vt1}, 5, v{vt1}
    v_lshl_or_b32 v{vt1}, v{vt0}, 8, v{vt1}
    v_and_b32 v{vt0}, 3, v{vN}
    v_lshl_or_b32 v{vt1}, v{vt0}, 3, v{vt1}
    s_lshl_b32 s{sT0}, s{sW}, 13
    v_add_u32 v{vTW}, s{sT0}, v{vt1}""")
    for e in range(1, 8): a(f"v_xor_b32 v{vVR+e}, {e*32}, v{vTW}")
def tile_reads():
    for e in range(8):
        ad = vTW if e == 0 else vVR + e
        a(f"ds_read_b64_tr_b16 v[{vVF+4*e}:{vVF+4*e+1}], v{ad}\nds_read_b64_tr_b16 v[{vVF+4*e+2}:{vVF+4*e+3}], v{ad} offset:4096")
vG2 = vU; vB = vU + 4; sE0, sE1 = 58, 59; sBASE = 60; vGR = vU + 36
tile_addrs()
a(f"""
    s_mov_b32 s{sE0}, 0x3f80
    s_mov_b32 s{sE1}, 0x3f800000
    s_lshr_b32 s{sBASE}, s{sJ}, 1
    s_lshl_b32 s{sBASE}, s{sBASE}, 6
    s_and_b32 s{sT1}, s{sJ}, 1
    s_lshl_b32 s{sT1}, s{sT1}, 3
    s_add_u32 s{sBASE}, s{sBASE}, s{sT1}
    v_and_b32 v{vPI}, 1, v{vLane}
    v_and_b32 v{vVAL}, 1, v{vS}
    v_lshlrev_b32 v{vVAL}, 1, v{vVAL}
    v_lshrrev_b32 v{vt0}, 1, v{vS}
    v_or_b32 v{vVAL}, v{vVAL}, v{vt0}
    v_lshlrev_b32 v{vB+6}, 1, v{vVAL}
    v_lshl_or_b32 v{vB+6}, v{vPI}, 4, v{vB+6}
    s_and_b32 s{sT1}, s{sW}, 1
    s_lshl_b32 s{sT1}, s{sT1}, 5
    s_lshr_b32 s{sT2}, s{sW}, 1
    s_lshl_b32 s{sT2}, s{sT2}, 3
    s_add_u32 s{sT1}, s{sT1}, s{sT2}
    s_add_u32 s{sT1}, s{sT1}, {OB}
    v_add_u32 v{vB+6}, s{sT1}, v{vB+6}
    v_lshlrev_b32 v{vB+7}, 4, v{vS}
    v_add_u32 v{vB+7}, {OB}, v{vB+7}
    v_lshlrev_b32 v{vGA}, 4, v{vN}
    v_lshl_or_b32 v{vGA}, v{vS}, 8, v{vGA}
    v_lshrrev_b32 v{vCA}, 3, v{vLane}
    v_lshlrev_b32 v{vCA}, 11, v{vCA}
    v_and_b32 v{vt0}, 7, v{vLane}
    v_lshl_or_b32 v{vCA}, v{vt0}, 4, v{vCA}
    v_lshl_add_u32 v{vCW}, v{vVAL}, 3, v{vt0}
    s_lshl_b32 s{sT1}, s{sW}, 2
    s_add_u32 s{sT1}, s{sT1}, {QP}
    v_lshl_add_u32 v{vCW}, v{vCW}, 4, s{sT1}
    v_and_b32 v{vt0}, 31, v{vLane}
    v_lshlrev_b32 v{vCR}, 4, v{vt0}
    v_add_u32 v{vCR}, {QP}, v{vCR}
    v_mov_b32 v{vGR+2}, s{sTAG}
    v_mov_b32 v{vGR+3}, s{sTAGB}
    s_lshl_b32 s{sQS}, s{sF}, 11
    s_lshl_b32 s{sT1}, s{sW}, 9
    s_add_u32 s{sQS}, s{sQS}, s{sT1}
    s_add_u32 s{sQS}, s{sQS}, {PC}
    s_lshl_b32 s{sT1}, s{sW}, 16
    s_lshl_b32 s{sT2}, s{sJ}, 7
    s_add_u32 s{sT1}, s{sT1}, s{sT2}
    s_add_u32 s{sQG}, s{sT1}, {PC}
    s_add_u32 s{sQ1}, s{sQG}, 16384
    s_add_u32 s{sQ2}, s{sQG}, 32768
    s_add_u32 s{sQ3}, s{sQG}, 49152""")
if BEARLY:
    a(f"buffer_load_dwordx4 v[{vG2}:{vG2+3}], v{vBA}, {WS}, s{sBA} offen sc1")
a(f"s_waitcnt vmcnt({NYOUNG + (1 if BEARLY else 0)})")
tile_reads()
stamp(8)
if BEARLY: a("s_branch L_bwait")
a(f"""
L_bpoll:
    buffer_load_dwordx4 v[{vG2}:{vG2+3}], v{vBA}, {WS}, s{sBA} offen sc1
L_bwait:
    s_waitcnt vmcnt(0)
    v_cmp_ne_u32 vcc, s{sTAG}, v{vG2+3}
    s_cbranch_vccz L_bok
    {"s_sleep %d" % SLB if SLB else ""}""")
spin("L_bpoll")
a("L_bok:")
stamp(9)
a(f"""
    v_max_f32_dpp v{vB}, v{vG2+2}, v{vG2+2} row_ror:8 row_mask:0xf bank_mask:0xf
    v_lshlrev_b32 v{vB+2}, 16, v{vG2}
    v_and_b32 v{vB+3}, 0xffff0000, v{vG2}
    v_max_f32_dpp v{vB}, v{vB}, v{vB} row_ror:4 row_mask:0xf bank_mask:0xf
    v_lshlrev_b32 v{vB+4}, 16, v{vG2+1}
    v_and_b32 v{vB+5}, 0xffff0000, v{vG2+1}
    v_max_f32_dpp v{vB}, v{vB}, v{vB} row_ror:2 row_mask:0xf bank_mask:0xf""")
allreduce([vB], "v_max_f32", [vB+1], steps=())
a(f"""
    v_sub_f32 v{vB}, v{vG2+2}, v{vB}
    v_exp_f32 v{vB}, v{vB}
    v_mul_f32 v{vB+2}, v{vB+2}, v{vB}
    v_mul_f32 v{vB+3}, v{vB+3}, v{vB}
    v_mul_f32 v{vB+4}, v{vB+4}, v{vB}
    v_mul_f32 v{vB+5}, v{vB+5}, v{vB}
    v_mov_b32 v{vB+1}, v{vB}
    v_permlane32_swap_b32 v{vB+2}, v{vB+3}
    v_permlane32_swap_b32 v{vB+4}, v{vB+5}
    v_permlane32_swap_b32 v{vB}, v{vB+1}
    v_add_f32 v{vB+2}, v{vB+2}, v{vB+3}
    v_add_f32 v{vB+4}, v{vB+4}, v{vB+5}
    v_add_f32 v{vB}, v{vB}, v{vB+1}
    v_mov_b32 v{vB+1}, v{vB}
    v_permlane16_swap_b32 v{vB+2}, v{vB+4}
    v_permlane16_swap_b32 v{vB}, v{vB+1}
    v_add_f32 v{vB+2}, v{vB+2}, v{vB+4}
    v_add_f32 v{vB}, v{vB}, v{vB+1}""")
for st in (8, 4, 2):
    a(f"v_add_f32_dpp v{vB+2}, v{vB+2}, v{vB+2} row_ror:{st} row_mask:0xf bank_mask:0xf")
    a(f"v_add_f32_dpp v{vB}, v{vB}, v{vB} row_ror:{st} row_mask:0xf bank_mask:0xf")
a(f"""
    v_rcp_f32 v{vB}, v{vB}
    v_mul_f32 v{vB+2}, v{vB+2}, v{vB}
    v_cvt_pk_bf16_f32 v{vB+2}, v{vB+2}, v{vB+2}""")
setexec(0x0003000300030003)
a(f"ds_write_b16 v{vB+6}, v{vB+2}")
setexec(-1)
a(f"s_waitcnt lgkmcnt(0)\ns_barrier\nds_read_b128 v[{vR4}:{vR4+3}], v{vB+7}\ns_waitcnt lgkmcnt(0)")
for e in range(8): mfma(vO + 4 * e, vR4, vVF + 4 * e, None)
a(f"""
    v_cndmask_b32 v{vU}, v{vO}, v{vO+16}, s[{sM1}:{sM1+1}]
    v_cndmask_b32 v{vU+1}, v{vO+4}, v{vO+20}, s[{sM1}:{sM1+1}]
    v_cndmask_b32 v{vU+2}, v{vO+8}, v{vO+24}, s[{sM1}:{sM1+1}]
    v_cndmask_b32 v{vU+3}, v{vO+12}, v{vO+28}, s[{sM1}:{sM1+1}]
    v_cvt_pk_bf16_f32 v{vGR}, v{vU}, v{vU+1}
    v_cvt_pk_bf16_f32 v{vGR+1}, v{vU+2}, v{vU+3}""")
setexec(0xffffffff)
a(f"buffer_store_dwordx4 v[{vGR}:{vGR+3}], v{vGA}, {WS}, s{sQS} offen sc1")
setexec(-1)
stamp(10)
vD = vU; vAcc = vD + 16; CA, CB = vKF, vKF + 16
def c_issue(R):
    for k, so in enumerate((sQG, sQ1, sQ2, sQ3)):
        a(f"buffer_load_dwordx4 v[{R+4*k}:{R+4*k+3}], v{vCA}, {WS}, s{so} offen sc1")
def c_process(R):
    for i in range(4):
        for c, (dw, se) in enumerate(((0, sE0), (0, sE1), (1, sE0), (1, sE1))):
            a(f"v_dot2_f32_bf16 v{vAcc+c}, v{R+4*i+dw}, s{se}, {'0' if i == 0 else 'v%d' % (vAcc+c)}")
    tagcheck(R, 4, vD + 20)
    a("s_cbranch_vccz L_cok")
if DLC: a(f"s_sleep {DLC}")
if CPIPE:
    c_issue(CA)
    if STGC: a(f"s_sleep {STGC}")
    c_issue(CB)
    a("L_cpoll:\ns_waitcnt vmcnt(4)")
    c_process(CA); c_issue(CA)
    a("s_waitcnt vmcnt(4)")
    c_process(CB); c_issue(CB)
    spin("L_cpoll")
else:
    a("L_cpoll:")
    c_issue(CA)
    a("s_waitcnt vmcnt(0)")
    c_process(CA)
    spin("L_cpoll")
a("L_cok:")
stamp(11)
a(f"""
    v_permlane32_swap_b32 v{vAcc}, v{vAcc+1}
    v_permlane32_swap_b32 v{vAcc+2}, v{vAcc+3}
    v_add_f32 v{vAcc}, v{vAcc}, v{vAcc+1}
    v_add_f32 v{vAcc+2}, v{vAcc+2}, v{vAcc+3}
    v_permlane16_swap_b32 v{vAcc}, v{vAcc+2}
    v_add_f32 v{vAcc}, v{vAcc}, v{vAcc+2}
    v_add_f32_dpp v{vAcc}, v{vAcc}, v{vAcc} row_ror:8 row_mask:0xf bank_mask:0xf""")
setexec(0x00ff00ff00ff00ff)
a(f"ds_write_b32 v{vCW}, v{vAcc}")
setexec(-1)
a(f"""
    v_lshlrev_b32 v{vXC}, 16, v{vXC}
    s_lshl_b32 s{sT0}, s{sG}, 11
    s_lshl_b32 s{sT1}, s{sBASE}, 2
    s_add_u32 s{sT0}, s{sT0}, s{sT1}
    s_add_u32 s{sT0}, s{sT0}, {PH}
    v_lshrrev_b32 v{vD+6}, 3, v{vLane}
    v_lshlrev_b32 v{vD+6}, 6, v{vD+6}
    v_bfe_u32 v{vD+5}, v{vLane}, 1, 2
    v_lshl_or_b32 v{vD+6}, v{vD+5}, 3, v{vD+6}
    v_mov_b32 v{vD+5}, s{sTAG}
    v_and_b32 v{vD+7}, 31, v{vLane}
    v_lshlrev_b32 v{vD+7}, 2, v{vD+7}
    v_add_u32 v{vD+7}, {HL}, v{vD+7}
    s_waitcnt lgkmcnt(0)
    s_barrier
    s_cmp_lg_u32 s{sW}, 0
    s_cbranch_scc1 L_wexit
    ds_read_b128 v[{vD}:{vD+3}], v{vCR}
    s_waitcnt lgkmcnt(0)
    v_add_f32 v{vD}, v{vD}, v{vD+1}
    v_add_f32 v{vD+2}, v{vD+2}, v{vD+3}
    v_add_f32 v{vD}, v{vD}, v{vD+2}""")
round_bf16(vD)
a(f"v_add_f32 v{vH}, v{vXC}, v{vD}")
round_bf16(vH)
a(f"""
    v_mov_b32_dpp v{vD+1}, v{vH} quad_perm:[1,1,3,3] row_mask:0xf bank_mask:0xf
    ds_write_b32 v{vD+7}, v{vH}
    v_perm_b32 v{vD+4}, v{vD+1}, v{vH}, s{sSEL1}""")
setexec(0x55555555)
local_store(f"buffer_store_dwordx2 v[{vD+4}:{vD+5}], v{vD+6}, {WS}, s{sT0} offen")
setexec(-1)
stamp(12)
vEA = vCA
a(f"""
    v_lshrrev_b32 v{vEA}, 1, v{vLane}
    v_lshlrev_b32 v{vEA}, 12, v{vEA}
    v_lshl_or_b32 v{vEA}, v{vPI}, 4, v{vEA}
    s_lshr_b32 s{sT2}, s{sJ}, 1
    s_lshl_b32 s{sT2}, s{sT2}, 5
    s_and_b32 s{sT3}, s{sG}, 1
    s_lshl_b32 s{sT0}, s{sT3}, 4
    s_add_u32 s{sT2}, s{sT2}, s{sT0}
    s_and_b32 s{sT0}, s{sJ}, 1
    s_lshl_b32 s{sT0}, s{sT0}, 3
    s_add_u32 s{sT2}, s{sT2}, s{sT0}
    s_and_b32 s{sT0}, s{sG}, 6
    s_add_u32 s{sT2}, s{sT2}, s{sT0}
    s_lshl_b32 s{sT2}, s{sT2}, 4
    s_add_u32 s{sQG}, s{sT2}, {PE}
    s_add_u32 s{sQ1}, s{sQG}, 131072
    v_lshrrev_b32 v{vt0}, 5, v{vLane}
    s_lshl_b32 s{sT3}, s{sT3}, 1
    v_add_u32 v{vt0}, s{sT3}, v{vt0}
    v_add_u32 v{vt2}, s{sT0}, v{vPI}
    v_lshl_add_u32 v{vt1}, v{vt0}, 3, v{vt2}
    v_lshlrev_b32 v{vt1}, 2, v{vt1}
    v_add_u32 v{vt1}, {HL}, v{vt1}
    v_lshl_add_u32 v{vt0}, v{vt0}, 4, v{vt2}
    v_lshlrev_b32 v{vt0}, 1, v{vt0}
    s_lshl_b32 s{sT2}, s{sBASE}, 1
    s_mov_b32 s{SV}, s{pOUT}
    s_mov_b32 s{SV+1}, s{pOUT+1}
    s_mov_b32 s{SV+2}, 1024
    s_waitcnt lgkmcnt(0)
    ds_read_b32 v{vH}, v{vt1}""")
EA, EB = vVF, vVF + 8
for R in (EA, EB):
    a(f"v_mov_b32 v{R+4}, 0\nv_mov_b32 v{R+5}, 0\nv_mov_b32 v{R+6}, s{sTAG}\nv_mov_b32 v{R+7}, s{sTAGB}")
def e_issue(R):
    a(f"buffer_load_dwordx4 v[{R}:{R+3}], v{vEA}, {WS}, s{sQG} offen sc1")
    setexec(0xffffffffffff)
    a(f"buffer_load_dwordx4 v[{R+4}:{R+7}], v{vEA}, {WS}, s{sQ1} offen sc1")
    setexec(-1)
def e_process(R):
    a(f"""
    v_xor_b32 v{vD+4}, s{sTAG}, v{R+2}
    v_xor_b32 v{vD+5}, s{sTAGB}, v{R+3}
    v_xor_b32 v{vD+6}, s{sTAG}, v{R+6}
    v_xor_b32 v{vD+7}, s{sTAGB}, v{R+7}
    v_add_f32 v{vD}, v{R}, v{R+4}
    v_or3_b32 v{vD+4}, v{vD+4}, v{vD+5}, v{vD+6}
    v_add_f32 v{vD+1}, v{R+1}, v{R+5}
    v_or_b32 v{vD+4}, v{vD+4}, v{vD+7}
    v_cmp_ne_u32 vcc, 0, v{vD+4}
    s_cbranch_vccz L_eok""")
if DLE: a(f"s_sleep {DLE}")
if EFLAG:
    a(f"""
    s_lshl_b32 s{sT0}, s{sG}, 7
    s_add_u32 s{sT0}, s{sT0}, {PF}
    v_lshlrev_b32 v{vt2}, 2, v{vLane}
    s_mov_b32 exec_lo, 0xfffffff
    s_mov_b32 exec_hi, 0
L_fpoll:
    buffer_load_dword v{vD+8}, v{vt2}, {WS}, s{sT0} offen sc1
    s_waitcnt vmcnt(0)
    v_cmp_ne_u32 vcc, s{sTAG}, v{vD+8}
    s_cbranch_vccz L_fok
    s_sleep 1""")
    spin("L_fpoll")
    a("L_fok:\ns_mov_b64 exec, -1")
    if DLE2: a(f"s_sleep {DLE2}")
if EPIPE:
    e_issue(EA)
    if STGE: a(f"s_sleep {STGE}")
    e_issue(EB)
    a("L_epoll:\ns_waitcnt vmcnt(2)")
    e_process(EA)
    if SLE: a(f"s_sleep {SLE}")
    e_issue(EA)
    a("s_waitcnt vmcnt(2)")
    e_process(EB)
    if SLE: a(f"s_sleep {SLE}")
    e_issue(EB)
    spin("L_epoll")
else:
    a("L_epoll:")
    e_issue(EA)
    a("s_waitcnt vmcnt(0)")
    e_process(EA)
    if SLE: a(f"s_sleep {SLE}")
    spin("L_epoll")
a("L_eok:")
stamp(13)
a(f"""
    v_permlane32_swap_b32 v{vD}, v{vD+1}
    v_add_f32 v{vD}, v{vD}, v{vD+1}
    v_mov_b32 v{vD+2}, v{vD}
    v_permlane16_swap_b32 v{vD}, v{vD+2}
    v_add_f32 v{vD}, v{vD}, v{vD+2}""")
for st in (8, 4, 2): a(f"v_add_f32_dpp v{vD}, v{vD}, v{vD} row_ror:{st} row_mask:0xf bank_mask:0xf")
round_bf16(vD)
a(f"""
    s_waitcnt lgkmcnt(0)
    v_add_f32 v{vD}, v{vH}, v{vD}
    v_cvt_pk_bf16_f32 v{vD}, v{vD}, v{vD}""")
setexec(0x0000000300000003)
a(f"""
    buffer_store_short v{vD}, v{vt0}, s[{SV}:{SV+3}], s{sT2} offen {OUTSC}""")
if not EPEARLY:
    a(f"""
    s_cmp_lg_u32 s2, 0
    s_cbranch_scc1 L_w0done
    s_mov_b64 exec, 1
    v_mov_b32 v{vD+3}, s{sTAG}
    buffer_store_dword v{vD+3}, off, {WS}, 0 sc1
L_w0done:""")
a("s_mov_b64 exec, -1")
stamp(14)
a("s_branch L_fin")
if FALIGN: a(".p2align 12")
if WARM: a("L_warm1:\ns_branch L_warm_ret")
a("L_ftail:")
vTR = 242; vQPW2 = 244; vXA2 = 240; vCSUM = 246
vXR0, vHS = 11, 12
a(f"s_cmp_ge_u32 s{sJ}, 23\ns_cbranch_scc1 L_idle")
a(f"""
    s_mov_b32 s{SK}, s{pW1}
    s_mov_b32 s{SK+1}, s{pW1+1}
    s_mov_b32 s{SK+2}, 1835008
    s_lshl_b32 s{sT0}, s{sF}, 6
    s_mul_i32 s{sT1}, s{sW}, {128*3584}
    s_add_u32 s{sT0}, s{sT0}, s{sT1}
    s_lshl_b32 s{sT1}, s{sW}, 13
    s_add_u32 s{sT1}, s{sT1}, {WL}
    s_mov_b32 m0, s{sT1}""")
for i in range(8):
    if i == 4: a(f"s_add_u32 s{sT1}, s{sT1}, 4096\ns_mov_b32 m0, s{sT1}")
    a(f"buffer_load_dwordx4 v{vW1c}, s[{SK}:{SK+3}], s{sT0} offen offset:{(i % 4) * 1024} {NT} lds")
    if i < 7: a(f"s_add_u32 s{sT0}, s{sT0}, {16 * 3584 - (1024 if i % 4 != 3 else -3072)}")
if FW2:
    a(f"""
    s_mov_b32 s{SROW+2}, 1835008
    s_lshl_b32 s{sRO}, s{sF}, 15
    s_lshl_b32 s{sT0}, s{sW}, 8
    s_add_u32 s{sRO}, s{sRO}, s{sT0}
    s_lshl_b32 s{sLM}, s{sW}, 13""")
    for i in range(8): row_load(i)
tile_addrs()
if not FW2:
    a(f"s_waitcnt vmcnt({NYOUNG + 8})")
    tile_reads()
vHG = vU; vGR = vU + 36; vAX = vQ; vCS = vO; vAC = vS0
a(f"""
    s_lshl_b32 s{sT0}, s{sW}, 13
    s_add_u32 s{sT0}, s{sT0}, {WL}
    v_lshrrev_b32 v{vt0}, 2, v{vN}
    v_lshl_or_b32 v{vt0}, v{vS}, 2, v{vt0}
    v_lshlrev_b32 v{vt0}, 6, v{vt0}
    v_and_b32 v{vt1}, 1, v{vS}
    v_lshl_or_b32 v{vt0}, v{vt1}, 5, v{vt0}
    v_and_b32 v{vt1}, 3, v{vN}
    v_lshl_or_b32 v{vt0}, v{vt1}, 3, v{vt0}
    v_add_u32 v{vTR}, s{sT0}, v{vt0}
    v_xor_b32 v{vTR+1}, 32, v{vTR}
    v_lshl_or_b32 v{vt0}, v{vS}, 4, v{vN}
    v_lshlrev_b32 v{vt0}, 4, v{vt0}
    s_lshl_b32 s{sT0}, s{sW}, 2
    s_add_u32 s{sT0}, s{sT0}, {QP}
    v_add_u32 v{vQPW2}, s{sT0}, v{vt0}
    v_lshrrev_b32 v{vt0}, 2, v{vLane}
    v_lshlrev_b32 v{vt0}, 6, v{vt0}
    v_and_b32 v{vt1}, 1, v{vLane}
    v_lshl_or_b32 v{vt0}, v{vt1}, 5, v{vt0}
    v_bfe_u32 v{vt1}, v{vLane}, 1, 1
    v_lshl_or_b32 v{vt0}, v{vt1}, 3, v{vt0}
    v_add_u32 v{vXA2}, {XN}, v{vt0}
    s_lshl_b32 s{sT0}, s{sW}, 8
    s_add_u32 s{sT0}, s{sT0}, {XN}
    v_lshl_add_u32 v{vXR0}, v{vS}, 4, s{sT0}
    v_lshlrev_b32 v{vHS}, 4, v{vLane}
    v_add_u32 v{vHS}, {XN}, v{vHS}
    v_and_b32 v{vU+15}, 3, v{vN}
    v_lshl_or_b32 v{vU+15}, v{vS}, 2, v{vU+15}
    v_bfe_u32 v{vU+17}, v{vN}, 2, 1
    v_lshl_or_b32 v{vU+15}, v{vU+17}, 4, v{vU+15}
    v_lshlrev_b32 v{vU+16}, 4, v{vU+15}
    v_add_u32 v{vU+16}, {QP}, v{vU+16}
    s_lshl_b32 s{sQS}, s{sF}, 12
    s_add_u32 s{sQS}, s{sQS}, {PE}
    v_lshlrev_b32 v{vGA}, 4, v{vN}
    v_lshl_or_b32 v{vGA}, v{vS}, 8, v{vGA}
    s_lshl_b32 s{sT1}, s{sW}, 10
    s_add_u32 s{sQS}, s{sQS}, s{sT1}
    v_mov_b32 v{vGR+2}, s{sTAG}
    v_mov_b32 v{vGR+3}, s{sTAGB}
    s_waitcnt vmcnt({8 if FW2 else 0})""")
for cb in range(2):
    for k in range(4):
        r = vKF + (cb * 4 + k) * 4
        a(f"ds_read_b64_tr_b16 v[{r}:{r+1}], v{vTR+cb} offset:{k*2048}\nds_read_b64_tr_b16 v[{r+2}:{r+3}], v{vTR+cb} offset:{k*2048+1024}")
a("s_waitcnt lgkmcnt(0)")
for k in range(4):
    for cb in range(2): mfma(vCS + 4 * cb, vONE, vKF + (cb * 4 + k) * 4, None if k == 0 else vCS + 4 * cb)
a(f"v_cndmask_b32 v{vCSUM}, v{vCS}, v{vCS+4}, s[{sM1}:{sM1+1}]")
if FW2:
    a("s_waitcnt vmcnt(0)")
    tile_reads()
stamp(8)
a(f"""
    s_cmp_lg_u32 s{sW}, 0
    s_cbranch_scc1 L_hwait
L_hpoll:
    buffer_load_dwordx4 v[{vHG}:{vHG+3}], v{vBA}, {WS}, s{sBA} offen sc1
    buffer_load_dwordx4 v[{vHG+4}:{vHG+7}], v{vBA}, {WS}, s{sBA} offen offset:16 sc1
    s_waitcnt vmcnt(0)
    v_xor_b32 v{vHG+8}, s{sTAG}, v{vHG+1}
    v_xor_b32 v{vHG+9}, s{sTAG}, v{vHG+3}
    v_xor_b32 v{vHG+10}, s{sTAG}, v{vHG+5}
    v_xor_b32 v{vHG+11}, s{sTAG}, v{vHG+7}
    ds_write2_b32 v{vXA2}, v{vHG}, v{vHG+2} offset0:0 offset1:1
    v_or3_b32 v{vHG+8}, v{vHG+8}, v{vHG+9}, v{vHG+10}
    ds_write2_b32 v{vXA2}, v{vHG+4}, v{vHG+6} offset0:4 offset1:5
    v_or_b32 v{vHG+8}, v{vHG+8}, v{vHG+11}
    v_cmp_ne_u32 vcc, 0, v{vHG+8}
    s_cbranch_vccz L_hok
    {"s_sleep %d" % SLH if SLH else ""}""")
spin("L_hpoll")
vS1, vS2 = vU + 12, vU + 13
a("L_hok:\ns_waitcnt lgkmcnt(0)\nL_hwait:\ns_barrier")
stamp(9)
a(f"ds_read_b128 v[{vHG}:{vHG+3}], v{vHS}")
for k in range(4): a(f"ds_read_b128 v[{vAX+4*k}:{vAX+4*k+3}], v{vXR0} offset:{k*64}")
a(f"v_mov_b32 v{vS1}, 0\nv_mov_b32 v{vS2}, 0\ns_waitcnt lgkmcnt(4)")
for i in range(4):
    a(f"v_dot2_f32_bf16 v{vS1}, v{vHG+i}, v{vONE}, v{vS1}\nv_dot2_f32_bf16 v{vS2}, v{vHG+i}, v{vHG+i}, v{vS2}")
a("s_waitcnt lgkmcnt(0)")
for k in range(4):
    for cb in range(2): mfma(vAC + 4 * cb, vAX + 4 * k, vKF + (cb * 4 + k) * 4, None if k == 0 else vAC + 4 * cb)
allreduce([vS1, vS2], "v_add_f32", [vU + 14, vU + 19])
a(f"""
    v_mul_f32 v{vS1}, 0x3b000000, v{vS1}
    v_mul_f32 v{vS2}, 0x3b000000, v{vS2}
    v_fma_f32 v{vS2}, -v{vS1}, v{vS1}, v{vS2}
    v_max_f32 v{vS2}, 0, v{vS2}""")
round_bf16(vS1); round_bf16(vS2)
a(f"""
    v_add_f32 v{vS2}, 0x3727c5ac, v{vS2}
    v_cndmask_b32 v{vU+14}, v{vAC}, v{vAC+4}, s[{sM1}:{sM1+1}]
    v_fma_f32 v{vU+14}, -v{vS1}, v{vCSUM}, v{vU+14}""")
setexec(0xffffffff)
a(f"ds_write_b32 v{vQPW2}, v{vU+14}")
setexec(-1)
round_bf16(vS2)
a(f"v_sqrt_f32 v{vS2}, v{vS2}")
round_bf16(vS2)
a(f"""
    v_rcp_f32 v{vS2}, v{vS2}
    s_waitcnt lgkmcnt(0)
    s_barrier
    ds_read_b128 v[{vU+20}:{vU+23}], v{vU+16}
    s_waitcnt lgkmcnt(0)
    v_add_f32 v{vU+20}, v{vU+20}, v{vU+21}
    v_add_f32 v{vU+22}, v{vU+22}, v{vU+23}
    v_add_f32 v{vU+20}, v{vU+20}, v{vU+22}
    v_mul_f32 v{vU+20}, v{vU+20}, v{vS2}""")
round_bf16(vU + 20)
a(f"""
    v_mul_f32 v{vU+21}, 0xbfb8aa3b, v{vU+20}
    v_exp_f32 v{vU+21}, v{vU+21}
    v_add_f32 v{vU+21}, 1.0, v{vU+21}
    v_rcp_f32 v{vU+21}, v{vU+21}
    v_mul_f32 v{vU+20}, v{vU+20}, v{vU+21}
    v_mov_b32_dpp v{vU+21}, v{vU+20} quad_perm:[1,1,3,3] row_mask:0xf bank_mask:0xf
    v_cvt_pk_bf16_f32 v{vU+20}, v{vU+20}, v{vU+21}
    v_mov_b32_dpp v{vR4}, v{vU+20} row_newbcast:0 row_mask:0xf bank_mask:0xf
    v_mov_b32_dpp v{vR4+1}, v{vU+20} row_newbcast:2 row_mask:0xf bank_mask:0xf
    v_mov_b32_dpp v{vR4+2}, v{vU+20} row_newbcast:4 row_mask:0xf bank_mask:0xf
    v_mov_b32_dpp v{vR4+3}, v{vU+20} row_newbcast:6 row_mask:0xf bank_mask:0xf""")
for e in range(8): mfma(vO + 4 * e, vR4, vVF + 4 * e, None)
a(f"""
    v_cndmask_b32 v{vGR}, v{vO}, v{vO+8}, s[{sM1}:{sM1+1}]
    v_cndmask_b32 v{vGR+1}, v{vO+4}, v{vO+12}, s[{sM1}:{sM1+1}]
    v_cndmask_b32 v{vGR}, v{vGR}, v{vO+16}, s[{sM2}:{sM2+1}]
    v_cndmask_b32 v{vGR+1}, v{vGR+1}, v{vO+20}, s[{sM2}:{sM2+1}]
    v_cndmask_b32 v{vGR}, v{vGR}, v{vO+24}, s[{sM3}:{sM3+1}]
    v_cndmask_b32 v{vGR+1}, v{vGR+1}, v{vO+28}, s[{sM3}:{sM3+1}]
    buffer_store_dwordx4 v[{vGR}:{vGR+3}], v{vGA}, {WS}, s{sQS} offen sc1""")
if EFLAG:
    a(f"""
    s_sub_u32 s{sT0}, s{sJ}, 16
    s_lshl_b32 s{sT0}, s{sT0}, 2
    s_add_u32 s{sT0}, s{sT0}, s{sW}
    s_lshl_b32 s{sT0}, s{sT0}, 2
    s_lshl_b32 s{sT1}, s{sG}, 7
    s_add_u32 s{sT0}, s{sT0}, s{sT1}
    s_add_u32 s{sT0}, s{sT0}, {PF}
    v_mov_b32 v{vt0}, 0
    s_mov_b64 exec, 1""")
    local_store(f"buffer_store_dword v{vGR+2}, v{vt0}, {WS}, s{sT0} offen")
    a("s_mov_b64 exec, -1")
stamp(10)
a("s_branch L_fin")
a("s_branch L_fin\nL_wexit:")
if EPEARLY:
    a(f"""
    s_cmp_lg_u32 s2, 0
    s_cbranch_scc1 L_fin
    s_cmp_lg_u32 s{sW}, 1
    s_cbranch_scc1 L_fin
    s_mov_b64 exec, 1
    v_mov_b32 v{vD+3}, s{sTAG}
    buffer_store_dword v{vD+3}, off, {WS}, 0 sc1
    s_mov_b64 exec, -1""")
a("s_branch L_fin")
a("L_idle:")
if PTH:
    a(f"""
    s_sub_u32 s{sT0}, s{sJ}, 23
    s_lshl_b32 s{sT0}, s{sT0}, 2
    s_add_u32 s{sT0}, s{sT0}, s{sW}
    v_lshlrev_b32 v{vTMP}, 7, v{vLane}
    s_lshl_b32 s{sT1}, s{sT0}, 13
    s_add_u32 s{sT2}, s{sT1}, {PC}
    s_add_u32 s{sT3}, s{sT1}, {PE}
    s_cmp_ge_u32 s{sT0}, 32
    s_cbranch_scc1 L_fin
    buffer_load_dword v{vPT}, v{vTMP}, {WS}, s{sT2} offen sc1
    s_cmp_ge_u32 s{sT0}, 28
    s_cbranch_scc1 L_fin
    buffer_load_dword v{vPT}, v{vTMP}, {WS}, s{sT3} offen sc1""")
a("L_fin:")
if STAMPS:
    a(f"""
    s_waitcnt lgkmcnt(0)
    s_mov_b64 exec, 1
    s_lshl_b32 s{sT0}, s2, 2
    s_add_u32 s{sT0}, s{sT0}, s{sW}
    s_mul_i32 s{sT0}, s{sT0}, 128
    s_add_u32 s{sT0}, s{sT0}, {STAMP}
    v_mov_b32 v6, 0""")
    for i in range(16):
        if i < NST:
            a(f"v_mov_b32 v4, s{sST+2*i}\nv_mov_b32 v5, s{sST+2*i+1}")
        else:
            a("v_mov_b32 v4, 0\nv_mov_b32 v5, 0")
        a(f"buffer_store_dwordx2 v[4:5], v6, {WS}, s{sT0} offen offset:{i*8}")
a("L_end:\ns_endpgm")
body = a.text()
if STAMPS:
    zi = "".join(f"s_mov_b32 s{sST+i}, 0\n" for i in range(16, 2 * NST))
    body = body.replace("@@ZI@@", zi)
body, n = fix(body)
print(wrap(body, 256, 256, LDS_SIZE, NVGPR, 102, pad=(PAD if PAD >= 0 else None), doc=DOC))
print(f"; inserted {n} nops", file=sys.stderr)
```

```python
import sys
from asmgen import *
from hazard import fix

STAMPS = "--stamps" in sys.argv
def opt(name, default):
    for x in sys.argv:
        if x.startswith(f"--{name}="):
            return type(default)(x.split("=", 1)[1])
    return default
NT = opt("nt", "nt")
SLQ = opt("slq", 1); SLB = opt("slb", 0); SLH = opt("slh", 1); SLE = opt("sle", 0)
DLC = opt("dlc", 10); STGC = opt("stgc", 5); STGE = opt("stge", 3); FORCEG = opt("forceg", 0)
KDELAY = opt("kdelay", 1)
EARLYG = opt("earlyg", 0)
ROWPOS = opt("rowpos", "early")
DLE = opt("dle", 0)
EPIPE = opt("epipe", 1)
CPIPE = opt("cpipe", 1)
FW2 = opt("fw2", 0)
EFLAG = opt("eflag", 1)
DLE2 = opt("dle2", 1)
ROWPRE = opt("rowpre", 0)
VORD = opt("vord", 0)
TPRE = opt("tpre", 4)
KEARLY = opt("kearly", 0)
PAD = opt("pad", 3328)
WARM = opt("warm", 1)
FALIGN = opt("falign", 1)
OPT1 = opt("opt1", 1)
EPEARLY = opt("epearly", 1)
OUTSC = opt("outsc", "")
BEARLY = opt("bearly", 1)
PTOUT = opt("ptout", 2)
FLAGPOS = opt("flagpos", 0)
DUALQ = opt("dualq", 1)
PTH = opt("pth", 0)
SPINMAX = 0x200000

PH = 0x1000; PF = 0x6000; QP_G = 0x40000; QTOG = 0x20000; PB = 0x80000; PC = 0x100000; PE = 0x140000; STAMP = 0x8000000
KL = 0x0; WL = 0x8000; XN = 0x10000; OL = 0x11000; ML = 0x13400; QP = 0x13480; OB = 0x13900; AL = 0x13980
QL = 0x13B00; MF = 0x13F40; HL = 0x13F80; LDS_SIZE = 86016
sG, sJ, sW, sSPIN, sRO = 3, 4, 5, 6, 7
SX, SK, SV, SROW, SWS = 8, 12, 16, 20, 24
pWO, pW2, pW1, pOUT = 28, 30, 32, 34
sSTA, sSTB, sLM, sXO, sQS, sX2 = 36, 37, 38, 39, 40, 41
sKV, sKV1, sTAG, sTAGB = 44, 45, 46, 47
sT0, sT1, sT2, sT3 = 48, 49, 50, 51
sM1, sM2, sM3 = 52, 54, 56
sLOG2E, sSCALE = 58, 60
sQG, sBP, sSEL0, sSEL1, sF, sTBX, sMODE, sBA = 62, 63, 64, 65, 66, 67, 68, 69
sQ1, sQ2, sQ3 = 42, 43, 2 + 0
sST = 70; NST = 15
sQ3 = 100
vLane, vN, vS = 1, 2, 3
vKD = 4
vVA, vQA = 8, 9
vT = 10
vOW, vMW, vORD, vQW, vQR, vMR, vBP = 10, 11, 12, 16, 17, 18, 19
vKR = 20
vW1, vW1b, vBA, vMFW, vXCA = 24, 25, 26, 27, 28
vTMP = 29
vKF = 32; vVR = 64; vVF = 96; vQ = 128; vQ2 = 144; vO = 160; vS0 = 192; vU = 200
vXA, vXR, vTQ = 240, 241, 242
vW1c = 247; vXC, vEP, vH, vPT = 248, 249, 250, 251; vONE = 252
NVGPR = 256

DOC = """; ---------------------------------------------------------------------------------------------
; ---------------------------------------------------------------------------------------------
"""
a = Asm()
def stamp(i):
    if STAMPS: a(f"s_memrealtime s[{sST+2*i}:{sST+2*i+1}]")
def setexec(mask):
    if mask == -1: a("s_mov_b64 exec, -1"); return
    if mask <= 64: a(f"s_mov_b64 exec, {mask}"); return
    a(f"s_mov_b32 exec_lo, {hex(mask & 0xffffffff)}\ns_mov_b32 exec_hi, {hex(mask >> 32)}")
def spin(loop):
    a(f"s_add_u32 s{sSPIN}, s{sSPIN}, 1\ns_cmp_lt_u32 s{sSPIN}, {SPINMAX}\ns_cbranch_scc1 {loop}\ns_branch L_fin")
def unpack8(src, dst):
    for i in range(4):
        a(f"v_lshlrev_b32 v{dst+2*i}, 16, v{src+i}\nv_and_b32 v{dst+2*i+1}, 0xffff0000, v{src+i}")
def round_bf16(r):
    a(f"v_cvt_pk_bf16_f32 v{r}, v{r}, v{r}\nv_lshlrev_b32 v{r}, 16, v{r}")
def allreduce(regs, op, tmps, steps=(8, 4, 2, 1)):
    for st in steps:
        for r in regs: a(f"{op}_dpp v{r}, v{r}, v{r} row_ror:{st} row_mask:0xf bank_mask:0xf")
    for sw in ("v_permlane16_swap_b32", "v_permlane32_swap_b32"):
        for r, t in zip(regs, tmps): a(f"v_mov_b32 v{t}, v{r}")
        for r, t in zip(regs, tmps): a(f"{sw} v{r}, v{t}")
        for r, t in zip(regs, tmps): a(f"{op} v{r}, v{r}, v{t}")
def perms(raw, frag, b):
    for e in range(8):
        sel = sSEL1 if e & 1 else sSEL0
        for h in range(2):
            r0 = raw + (b * 4 + 2 * h) * 4 + (e >> 1); r1 = raw + (b * 4 + 2 * h + 1) * 4 + (e >> 1)
            a(f"v_perm_b32 v{frag + e*4 + 2*b + h}, v{r1}, v{r0}, s{sel}")
def mfma(d, A, B, c):
    cs = "0" if c is None else f"v[{c}:{c+3}]"
    a(f"v_mfma_f32_16x16x32_bf16 v[{d}:{d+3}], v[{A}:{A+3}], v[{B}:{B+3}], {cs}")
_ls = [0]
def local_store(text):
    _ls[0] += 1; k = _ls[0]
    a(f"s_cmp_lg_u32 s{sMODE}, 0\ns_cbranch_scc1 L_lsg{k}\n{text}\ns_branch L_lsd{k}\nL_lsg{k}:\n{text} sc1\nL_lsd{k}:")
def tagcheck(base, n, acc):
    for i in range(n):
        a(f"v_xor_b32 v{base+4*i+2}, s{sTAG}, v{base+4*i+2}\nv_xor_b32 v{base+4*i+3}, s{sTAGB}, v{base+4*i+3}")
    a(f"v_or_b32 v{acc}, v{base+2}, v{base+3}")
    for i in range(1, n): a(f"v_or3_b32 v{acc}, v{acc}, v{base+4*i+2}, v{base+4*i+3}")
    a(f"v_cmp_ne_u32 vcc, 0, v{acc}")
WS = f"s[{SWS}:{SWS+3}]"

vX = vU; vXF = vU + 4; vA1, vA2, vA3 = vU + 12, vU + 13, vU + 14; vX2 = vU + 16; vPK = vQ2
vWQ = vTMP
vQPW, vQPR, vQPS = vU + 20, vU + 21, vU + 22
vGq = vU + 36

def blk_prologue():
    stamp(0)
    a(f"""
    s_lshr_b32 s{sJ}, s2, 3
    s_load_dwordx2 s[{SROW}:{SROW+1}], s[0:1], 24
    s_load_dwordx2 s[{SX}:{SX+1}], s[0:1], 0
    s_load_dwordx2 s[{SWS}:{SWS+1}], s[0:1], 80
    s_cmp_ge_u32 s{sJ}, 32
    s_cbranch_scc1 L_end
    v_lshrrev_b32 v{vT}, 6, v0
    v_and_b32 v{vLane}, 63, v0
    v_readfirstlane_b32 s{sW}, v{vT}
    v_bfe_u32 v{vS}, v0, 4, 2
    v_and_b32 v{vT+1}, 7, v0
    v_lshlrev_b32 v{vT+2}, 1, v{vS}
    v_xor_b32 v{vT+1}, v{vT+1}, v{vT+2}
    v_lshrrev_b32 v{vT}, 3, v{vLane}
    v_lshlrev_b32 v{vT}, 13, v{vT}
    v_lshl_or_b32 v{vWQ}, v{vT+1}, 4, v{vT}
    s_and_b32 s{sG}, s2, 7
    s_lshl_b32 s{sT1}, s{sG}, 10
    s_and_b32 s{sT2}, s{sJ}, 7
    s_lshl_b32 s{sT2}, s{sT2}, 7
    s_add_u32 s{sT1}, s{sT1}, s{sT2}
    s_lshr_b32 s{sT2}, s{sJ}, 3
    s_lshl_b32 s{sT2}, s{sT2}, 2
    s_add_u32 s{sT2}, s{sT2}, s{sW}
    s_lshl_b32 s{sX2}, s{sT2}, 6
    s_lshl_b32 s{sT2}, s{sT2}, 18
    s_add_u32 s{sT1}, s{sT1}, s{sT2}
    s_lshl_b32 s{sT2}, s{sW}, 12
    s_bitset1_b32 s{sT2}, 15
    s_mov_b32 m0, s{sT2}
    s_lshl_b32 s{SROW+3}, 1, 17
    s_lshl_b32 s{SROW+2}, 1, 22
    s_movk_i32 s{SX+2}, 0x400
    s_mov_b32 s{SX+3}, s{SROW+3}
    s_lshl_b32 s{SWS+2}, 1, 28
    s_mov_b32 s{SWS+3}, s{SROW+3}
    s_mov_b32 s{sT3}, {8 * 8192 - 1024}
    v_lshlrev_b32 v{vT}, 4, v{vLane}
    v_and_b32 v{vN}, 15, v0
    v_lshlrev_b32 v{vT+3}, 2, v{vN}
    s_waitcnt lgkmcnt(0)""")
    a(f"buffer_load_dwordx4 v[{vX}:{vX+3}], v{vT}, s[{SX}:{SX+3}], 0 offen")
    a(f"buffer_load_dword v{vX2}, v{vT+3}, s[{SX}:{SX+3}], s{sX2} offen")
    for i in range(4):
        a(f"buffer_load_dwordx4 v{vWQ}, s[{SROW}:{SROW+3}], s{sT1} offen offset:{i * 1024} {NT} lds")
        if i < 3: a(f"s_add_u32 s{sT1}, s{sT1}, s{sT3}")
    stamp(1)
    a(f"""
    s_load_dwordx2 s[{SK}:{SK+1}], s[0:1], 8
    s_load_dwordx2 s[{SV}:{SV+1}], s[0:1], 16
    buffer_load_dword v{vEP}, off, {WS}, 0 sc1
    s_load_dwordx2 s[{pWO}:{pWO+1}], s[0:1], 32
    s_load_dwordx2 s[{pW1}:{pW1+1}], s[0:1], 48
    s_load_dwordx2 s[{pW2}:{pW2+1}], s[0:1], 56
    s_load_dwordx2 s[{pOUT}:{pOUT+1}], s[0:1], 64""")

def blk_issue_K():
    a(f"""
    s_lshl_b32 s{sKV}, s{sG}, 23
    s_lshl_b32 s{sT0}, s{sJ}, 12
    s_add_u32 s{sKV}, s{sKV}, s{sT0}
    s_lshl_b32 s{sT0}, s{sW}, 18
    s_add_u32 s{sKV}, s{sKV}, s{sT0}
    s_add_u32 s{sKV}, s{sKV}, 7340032
    s_add_u32 s{sKV1}, s{sKV}, 131072
    v_xor_b32 v{vTMP}, v{vN}, v{vS}
    v_lshlrev_b32 v{vTMP}, 4, v{vTMP}
    v_lshl_or_b32 v{vKD}, v{vS}, 8, v{vTMP}
    v_xor_b32 v{vKD+1}, 64, v{vKD}
    v_xor_b32 v{vKD+2}, 128, v{vKD}
    v_xor_b32 v{vKD+3}, 192, v{vKD}
    s_lshl_b32 s{sT0}, s{sW}, 13
    s_mov_b32 m0, s{sT0}
    s_mov_b32 s{SK+2}, 67108864
    s_mov_b32 s{SK+3}, 0x20000
    s_waitcnt lgkmcnt(0)""")
    for i in range(4):
        a(f"buffer_load_dwordx4 v{vKD+i}, s[{SK}:{SK+3}], s{sKV} offen offset:{i*1024} {NT} lds")
    a(f"s_add_u32 s{sT0}, s{sT0}, 4096\ns_mov_b32 m0, s{sT0}")
    for i in range(4):
        a(f"buffer_load_dwordx4 v{vKD+i}, s[{SK}:{SK+3}], s{sKV1} offen offset:{i*1024} {NT} lds")

def blk_pre_q():
    t = vTMP
    a(f"""
    s_mov_b32 s{SV+2}, 67108864
    s_mov_b32 s{SV+3}, 0x20000
    v_lshlrev_b32 v{t}, 4, v{vN}
    v_lshl_or_b32 v{vVA}, v{vS}, 10, v{t}
    s_mov_b32 s{sSPIN}, 0
    s_mov_b32 s{sSEL0}, 0x05040100
    s_mov_b32 s{sSEL1}, 0x07060302
    s_mov_b32 s{sLOG2E}, 0x3fb8aa3b
    s_mov_b32 s{sLOG2E+1}, 0x3fb8aa3b
    s_mov_b32 s{sSCALE}, 0x3db504f3
    s_mov_b32 s{sSCALE+1}, 0x3db504f3
    v_cmp_eq_u32 s[{sM1}:{sM1+1}], 1, v{vS}
    v_cmp_eq_u32 s[{sM2}:{sM2+1}], 2, v{vS}
    v_cmp_eq_u32 s[{sM3}:{sM3+1}], 3, v{vS}
    s_lshl_b32 s{sT0}, s{sW}, 6
    s_add_u32 s{sT0}, s{sT0}, {XN}
    v_bfe_u32 v{t}, v{vN}, 1, 2
    v_lshlrev_b32 v{vXA}, 4, v{t}
    v_lshrrev_b32 v{t}, 3, v{vN}
    v_lshl_or_b32 v{vXA}, v{t}, 3, v{vXA}
    v_and_b32 v{t}, 1, v{vN}
    v_lshl_or_b32 v{vXA}, v{t}, 2, v{vXA}
    v_add_u32 v{vXA}, s{sT0}, v{vXA}
    v_lshl_add_u32 v{vXR}, v{vS}, 4, s{sT0}
    s_lshl_b32 s{sT0}, s{sW}, 12
    s_add_u32 s{sT0}, s{sT0}, {WL}
    v_lshrrev_b32 v{t}, 2, v{vN}
    v_lshl_or_b32 v{t+1}, v{vS}, 2, v{t}
    v_bfe_u32 v{t+2}, v{t+1}, 1, 2
    v_lshlrev_b32 v{t+1}, 7, v{t+1}
    v_lshl_or_b32 v{t+1}, v{t+2}, 5, v{t+1}
    v_and_b32 v{t+2}, 3, v{vN}
    v_lshl_or_b32 v{t+1}, v{t+2}, 3, v{t+1}
    v_add_u32 v{vTQ}, s{sT0}, v{t+1}
    v_xor_b32 v{vTQ+1}, 32, v{vTQ}
    v_xor_b32 v{vTQ+2}, 64, v{vTQ}
    v_xor_b32 v{vTQ+3}, 96, v{vTQ}
    s_lshl_b32 s{sT0}, s{sW}, 2
    s_add_u32 s{sT0}, s{sT0}, {QP}
    v_lshl_add_u32 v{vQPW}, v{vLane}, 4, s{sT0}
    s_lshl_b32 s{sT0}, s{sW}, 8
    s_add_u32 s{sT0}, s{sT0}, {QP}
    v_lshl_add_u32 v{vQPR}, v{vN}, 4, s{sT0}
    s_lshl_b32 s{sQG}, s{sG}, 14
    s_add_u32 s{sQG}, s{sQG}, {QP_G}
    s_lshr_b32 s{sT0}, s{sJ}, 3
    s_lshl_b32 s{sT0}, s{sT0}, 12
    s_and_b32 s{sT1}, s{sJ}, 7
    s_lshl_b32 s{sT1}, s{sT1}, 9
    s_add_u32 s{sT0}, s{sT0}, s{sT1}
    s_lshl_b32 s{sT1}, s{sW}, 7
    s_add_u32 s{sT0}, s{sT0}, s{sT1}
    s_add_u32 s{sQS}, s{sT0}, s{sQG}
    v_lshrrev_b32 v{vQPS}, 1, v{vN}
    v_lshlrev_b32 v{vQPS}, 4, v{vQPS}""")

def blk_pre_att():
    t = vTMP
    a(f"""
    s_lshl_b32 s{sT0}, s{sW}, 13
    v_xor_b32 v{t}, v{vN}, v{vS}
    v_lshlrev_b32 v{t}, 4, v{t}
    v_lshl_or_b32 v{t}, v{vN}, 8, v{t}
    v_add_u32 v{vKR}, s{sT0}, v{t}
    v_xor_b32 v{vKR+1}, 64, v{vKR}
    v_xor_b32 v{vKR+2}, 128, v{vKR}
    v_xor_b32 v{vKR+3}, 192, v{vKR}
    v_mov_b32 v{vONE}, 0x3f803f80
    v_mov_b32 v{vONE+1}, 0x3f803f80
    v_mov_b32 v{vONE+2}, 0x3f803f80
    v_mov_b32 v{vONE+3}, 0x3f803f80
    s_mul_i32 s{sT0}, s{sW}, 272
    s_add_u32 s{sT0}, s{sT0}, {QL}
    v_lshl_add_u32 v{vQW}, v{vLane}, 2, s{sT0}
    v_lshrrev_b32 v{vQR}, 2, v{vN}
    v_mul_u32_u24 v{vQR}, 272, v{vQR}
    v_lshl_add_u32 v{vQR}, v{vS}, 4, v{vQR}
    v_add_u32 v{vQR}, {QL}, v{vQR}
    s_lshl_b32 s{sT0}, s{sW}, 10
    s_add_u32 s{sQG}, s{sQG}, s{sT0}
    {"" if DUALQ else "s_xor_b32 s%d, s%d, %d" % (sQG, sQG, QTOG)}
    s_add_u32 s{sQ1}, s{sQG}, 4096
    s_add_u32 s{sQ2}, s{sQG}, 8192
    s_add_u32 s{sQ3}, s{sQG}, 12288
    v_lshlrev_b32 v{vQA}, 4, v{vLane}
    s_mul_i32 s{sT0}, s{sW}, 2304
    s_add_u32 s{sT0}, s{sT0}, {OL}
    v_mul_u32_u24 v{vOW}, 576, v{vS}
    v_mad_u32_u24 v{vOW}, v{vN}, 36, v{vOW}
    v_add_u32 v{vOW}, s{sT0}, v{vOW}
    s_lshl_b32 s{sT0}, s{sW}, 3
    s_add_u32 s{sT0}, s{sT0}, {ML}
    v_lshlrev_b32 v{vMW}, 5, v{vS}
    v_add_u32 v{vMW}, s{sT0}, v{vMW}
    s_mul_i32 s{sT0}, s{sW}, 576
    s_add_u32 s{sT0}, s{sT0}, {OL}
    v_lshrrev_b32 v{vORD}, 2, v{vLane}
    v_mul_u32_u24 v{vORD}, 36, v{vORD}
    v_and_b32 v{vORD+1}, 3, v{vLane}
    v_lshl_add_u32 v{vORD}, v{vORD+1}, 3, v{vORD}
    v_add_u32 v{vORD}, s{sT0}, v{vORD}
    v_add_u32 v{vORD+1}, 2304, v{vORD}
    v_add_u32 v{vORD+2}, 4608, v{vORD}
    v_add_u32 v{vORD+3}, 6912, v{vORD}
    s_lshl_b32 s{sT0}, s{sW}, 5
    s_add_u32 s{sT0}, s{sT0}, {ML}
    v_mov_b32 v{vMR}, s{sT0}
    s_lshl_b32 s{sT0}, s{sW}, 2
    s_add_u32 s{sT0}, s{sT0}, {MF}
    v_mov_b32 v{vMFW}, s{sT0}
    s_lshl_b32 s{sT0}, s{sG}, 4
    s_lshl_b32 s{sT1}, s{sW}, 2
    s_add_u32 s{sT0}, s{sT0}, s{sT1}
    s_lshl_b32 s{sT0}, s{sT0}, 5
    s_add_u32 s{sT0}, s{sT0}, s{sJ}
    s_lshl_b32 s{sT0}, s{sT0}, 7
    s_add_u32 s{sBP}, s{sT0}, {PB}
    v_lshrrev_b32 v{vBP}, 1, v{vN}
    v_lshlrev_b32 v{vBP}, 4, v{vBP}
    v_lshl_or_b32 v{vBP}, v{vS}, 12, v{vBP}
    v_lshlrev_b32 v{t}, 1, v{vS}
    v_xor_b32 v{t}, v{t}, v{vN}
    v_lshlrev_b32 v{t}, 4, v{t}
    v_lshl_or_b32 v{vW1}, v{vS}, 10, v{t}
    v_xor_b32 v{vW1b}, 128, v{vW1}
    s_mov_b32 s{sSTA}, {4096 - 1024}
    s_mov_b32 s{sSTB}, {4096 + 3072}
    s_lshl_b32 s{sLM}, s{sW}, 13
    s_lshr_b32 s{sXO}, s{sJ}, 1
    s_lshl_b32 s{sXO}, s{sXO}, 7
    s_and_b32 s{sT0}, s{sJ}, 1
    s_lshl_b32 s{sT0}, s{sT0}, 4
    s_add_u32 s{sXO}, s{sXO}, s{sT0}
    v_bfe_u32 v{vXCA}, v{vLane}, 3, 2
    v_lshlrev_b32 v{vXCA}, 5, v{vXCA}
    v_and_b32 v{t}, 7, v{vLane}
    v_lshl_or_b32 v{vXCA}, v{t}, 1, v{vXCA}
    s_cmp_ge_u32 s{sJ}, 16
    s_cbranch_scc1 L_pre_f
    s_lshl_b32 s{sF}, s{sG}, 4
    s_add_u32 s{sF}, s{sF}, s{sJ}
    s_lshl_b32 s{sBA}, s{sF}, 12
    s_add_u32 s{sBA}, s{sBA}, {PB}
    s_lshl_b32 s{sT0}, s{sW}, 5
    s_add_u32 s{sBA}, s{sBA}, s{sT0}
    v_lshrrev_b32 v{vBA}, 1, v{vLane}
    v_lshlrev_b32 v{vBA}, 7, v{vBA}
    v_and_b32 v{t}, 1, v{vLane}
    v_lshl_or_b32 v{vBA}, v{t}, 4, v{vBA}
    v_mov_b32 v{vW1c}, 0
    s_mov_b32 s{sT2}, 4194304
    s_waitcnt lgkmcnt(0)
    s_mov_b32 s{sT0}, s{pWO}
    s_mov_b32 s{sT1}, s{pWO+1}
    s_branch L_pre_d
L_pre_f:
    s_mul_i32 s{sF}, s{sG}, 7
    s_add_u32 s{sF}, s{sF}, s{sJ}
    s_sub_u32 s{sF}, s{sF}, 16
    s_lshl_b32 s{sBA}, s{sG}, 11
    s_add_u32 s{sBA}, s{sBA}, {PH}
    v_lshlrev_b32 v{vBA}, 5, v{vLane}
    v_lshrrev_b32 v{t}, 2, v{vLane}
    v_mul_u32_u24 v{vW1c}, 3584, v{t}
    v_and_b32 v{t}, 3, v{vLane}
    v_lshlrev_b32 v{t+1}, 1, v{vS}
    v_and_b32 v{t+1}, 2, v{t+1}
    v_xor_b32 v{t}, v{t}, v{t+1}
    v_lshl_add_u32 v{vW1c}, v{t}, 4, v{vW1c}
    s_cmp_ge_u32 s{sJ}, {0 if FW2 else 23}
    s_cselect_b32 s{sT2}, 0, 1835008
    s_waitcnt lgkmcnt(0)
    s_mov_b32 s{sT0}, s{pW2}
    s_mov_b32 s{sT1}, s{pW2+1}
L_pre_d:
    s_mov_b32 s{SROW}, s{sT0}
    s_mov_b32 s{SROW+1}, s{sT1}
    s_mov_b32 s{SROW+2}, s{sT2}
    s_lshl_b32 s{sRO}, s{sF}, 15
    s_lshl_b32 s{sT0}, s{sW}, 8
    s_add_u32 s{sRO}, s{sRO}, s{sT0}""")


def tagcalc():
    a(f"""
    v_readfirstlane_b32 s{sTAG}, v{vEP}
    s_getreg_b32 s{sTBX}, hwreg(HW_REG_XCC_ID)
    s_nop 1
    s_add_u32 s{sTAG}, s{sTAG}, 0x9e3779b8
    s_or_b32 s{sTAG}, s{sTAG}, 1
    s_xor_b32 s{sTAGB}, s{sTAG}, 0x5bd1e994
    s_and_b32 s{sTBX}, s{sTBX}, 7
    s_xor_b32 s{sTBX}, s{sTBX}, s{sTAGB}""")

def issue_V(b):
    for jj in range(4):
        r = vVR + (b * 4 + jj) * 4
        a(f"buffer_load_dwordx4 v[{r}:{r+3}], v{vVA}, s[{SV}:{SV+3}], s{sKV1 if b else sKV} offen offset:{jj*256} {NT}")

def blk_ln(extra=0):
    a(f"s_waitcnt vmcnt({14 + extra})")
    unpack8(vX, vXF)
    a(f"""
    v_pk_add_f32 v[{vPK}:{vPK+1}], v[{vXF}:{vXF+1}], v[{vXF+2}:{vXF+3}]
    v_pk_add_f32 v[{vPK+2}:{vPK+3}], v[{vXF+4}:{vXF+5}], v[{vXF+6}:{vXF+7}]
    v_pk_add_f32 v[{vPK}:{vPK+1}], v[{vPK}:{vPK+1}], v[{vPK+2}:{vPK+3}]
    v_add_f32 v{vA1}, v{vPK}, v{vPK+1}""")
    allreduce([vA1], "v_add_f32", [vA2])
    a(f"v_mul_f32 v{vA1}, 0xbb000000, v{vA1}\nv_mov_b32 v{vA2}, v{vA1}")
    for i in range(4):
        a(f"v_pk_add_f32 v[{vPK+2*i}:{vPK+2*i+1}], v[{vXF+2*i}:{vXF+2*i+1}], v[{vA1}:{vA2}]")
    a(f"v_pk_mul_f32 v[{vXF}:{vXF+1}], v[{vPK}:{vPK+1}], v[{vPK}:{vPK+1}]")
    for i in range(1, 4):
        a(f"v_pk_fma_f32 v[{vXF}:{vXF+1}], v[{vPK+2*i}:{vPK+2*i+1}], v[{vPK+2*i}:{vPK+2*i+1}], v[{vXF}:{vXF+1}]")
    a(f"v_add_f32 v{vA2}, v{vXF}, v{vXF+1}\nv_mul_f32 v{vA1}, -1.0, v{vA1}")
    allreduce([vA2], "v_add_f32", [vA3])
    a(f"v_mul_f32 v{vA2}, 0x3b000000, v{vA2}")
    round_bf16(vA1); round_bf16(vA2)
    a(f"v_add_f32 v{vA2}, 0x3727c5ac, v{vA2}")
    round_bf16(vA2)
    a(f"v_sqrt_f32 v{vA2}, v{vA2}")
    round_bf16(vA2)
    a(f"""
    v_rcp_f32 v{vA3}, v{vA2}
    s_waitcnt vmcnt({13 + extra})
    v_lshlrev_b32 v{vXF}, 16, v{vX2}
    v_and_b32 v{vXF+1}, 0xffff0000, v{vX2}
    v_sub_f32 v{vXF}, v{vXF}, v{vA1}
    v_sub_f32 v{vXF+1}, v{vXF+1}, v{vA1}
    v_cvt_pk_bf16_f32 v{vX2}, v{vXF}, v{vXF+1}
    v_lshlrev_b32 v{vXF}, 16, v{vX2}
    v_and_b32 v{vXF+1}, 0xffff0000, v{vX2}
    v_mul_f32 v{vXF+2}, v{vXF}, v{vA3}
    v_mul_f32 v{vXF+3}, v{vXF+1}, v{vA3}
    v_fma_f32 v{vXF}, -v{vXF+2}, v{vA2}, v{vXF}
    v_fma_f32 v{vXF+1}, -v{vXF+3}, v{vA2}, v{vXF+1}
    v_fma_f32 v{vXF}, v{vXF}, v{vA3}, v{vXF+2}
    v_fma_f32 v{vXF+1}, v{vXF+1}, v{vA3}, v{vXF+3}
    v_cvt_pk_bf16_f32 v{vX2}, v{vXF}, v{vXF+1}""")
    setexec(0xffff)
    a(f"ds_write_b32 v{vXA}, v{vX2}")
    setexec(-1)
    a(f"""
    s_waitcnt lgkmcnt(0)
    ds_read_b128 v[{vQ}:{vQ+3}], v{vXR}""")

def blk_qphase(nv=4):
    a(f"s_waitcnt vmcnt({8 + nv})")
    stamp(2)
    for c in range(4):
        r = vKF + c * 4
        a(f"ds_read_b64_tr_b16 v[{r}:{r+1}], v{vTQ+c}\nds_read_b64_tr_b16 v[{r+2}:{r+3}], v{vTQ+c} offset:2048")
    tagcalc()
    a(f"v_mov_b32 v{vGq+2}, s{sTAG}\nv_mov_b32 v{vGq+3}, s{sTBX}")
    a("s_waitcnt lgkmcnt(0)")
    for c in range(4): mfma(vO + 4 * c, vQ, vKF + 4 * c, None)
    t = vU
    a(f"""
    v_cndmask_b32 v{t}, v{vO}, v{vO+4}, s[{sM1}:{sM1+1}]
    v_cndmask_b32 v{t}, v{t}, v{vO+8}, s[{sM2}:{sM2+1}]
    v_cndmask_b32 v{t}, v{t}, v{vO+12}, s[{sM3}:{sM3+1}]
    ds_write_b32 v{vQPW}, v{t}
    s_waitcnt lgkmcnt(0)
    s_barrier
    ds_read_b128 v[{t+4}:{t+7}], v{vQPR}
    s_waitcnt lgkmcnt(0)
    v_pk_add_f32 v[{t+4}:{t+5}], v[{t+4}:{t+5}], v[{t+6}:{t+7}]
    v_add_f32 v{vGq}, v{t+4}, v{t+5}
    v_mov_b32_dpp v{vGq+1}, v{vGq} quad_perm:[1,1,3,3] row_mask:0xf bank_mask:0xf""")
    setexec(0x5555)
    if DUALQ:
        a(f"buffer_store_dwordx4 v[{vGq}:{vGq+3}], v{vQPS}, {WS}, s{sQS} offen")
    a(f"s_xor_b32 s{sQS}, s{sQS}, {QTOG}")
    a(f"buffer_store_dwordx4 v[{vGq}:{vGq+3}], v{vQPS}, {WS}, s{sQS} offen sc1")
    setexec(-1)
    stamp(3)

vQG = vQ2
def issue_qpoll():
    for kq, so in enumerate((sQG, sQ1, sQ2, sQ3)):
        a(f"buffer_load_dwordx4 v[{vQG+4*kq}:{vQG+4*kq+3}], v{vQA}, {WS}, s{so} offen sc1")
def row_load(i):
    if i == 0: a(f"s_mov_b32 m0, s{sLM}")
    if i == 4: a(f"s_add_u32 s{sLM}, s{sLM}, 4096\ns_mov_b32 m0, s{sLM}")
    a(f"buffer_load_dwordx4 v{vW1b if i & 1 else vW1}, s[{SROW}:{SROW+3}], s{sRO} offen offset:{(i & 3)*1024} {NT} lds")
    if i < 7: a(f"s_add_u32 s{sRO}, s{sRO}, s{sSTB if (i & 3) == 3 else sSTA}")
_rows = [0]
SCHED = {"early": [2, 0, 2, 1, 1, 1, 1, 0], "spread": [1] * 8, "burst": [4, 0, 4, 0, 0, 0, 0, 0]}[ROWPOS]
def row_slot(i):
    if VORD == 3: return
    n = 8 if i == 7 else SCHED[i]
    for _ in range(n):
        if _rows[0] < 8:
            row_load(_rows[0]); _rows[0] += 1
def xc_pt():
    a(f"buffer_load_ushort v{vXC}, v{vXCA}, s[{SX}:{SX+3}], s{sXO} offen")
    a(f"buffer_load_dword v{vPT}, v{vBA}, {WS}, s{sBA} offen sc1")

blk_prologue()
if KDELAY == 2:
    blk_pre_q(); blk_pre_att(); blk_issue_K()
elif KDELAY == 1:
    blk_pre_q(); blk_issue_K()
else:
    blk_issue_K(); blk_pre_q()
NQS = 2 if DUALQ else 1
if VORD == 0:
    blk_ln(); issue_V(0); blk_qphase(4); issue_V(1)
    WK, WV0, WV1 = 8 + NQS, 4 + NQS, 2
elif VORD == 1:
    blk_ln(); issue_V(0); issue_V(1); blk_qphase(8)
    WK, WV0, WV1 = 8 + NQS, 4 + NQS, 2 + NQS
elif VORD == 2:
    issue_V(0); blk_ln(4); issue_V(1); blk_qphase(8)
    WK, WV0, WV1 = 8 + NQS, 4 + NQS, 2 + NQS
elif VORD == 3:
    blk_ln(); issue_V(0); blk_qphase(4)
    WK = 4 + NQS - KEARLY
if KDELAY != 2: blk_pre_att()
if PTOUT and VORD == 0:
    a(f"""
    s_cmp_ge_u32 s{sJ}, 16
    s_cselect_b32 s{SK}, s{pW1}, s{pOUT}
    s_cselect_b32 s{SK+1}, s{pW1+1}, s{pOUT+1}
    s_movk_i32 s{sT0}, 0x400
    s_cselect_b32 s{SK+2}, 1835008, s{sT0}
    s_mul_i32 s{sT0}, s{sW}, {128*3584}
    s_cselect_b32 s{sT0}, s{sT0}, 0
    buffer_load_dword v{vPT}, off, s[{SK}:{SK+3}], s{sT0}""")
    NPT = 1
    if PTOUT >= 2:
        a(f"buffer_load_dword v{vPT}, off, s[{SROW}:{SROW+3}], s{sRO}")
        NPT = 2
    WK += NPT; WV0 += NPT; WV1 += NPT
if WARM == 1:
    a("s_branch L_warm1\nL_warm_ret:")
elif WARM == 2:
    a(f"s_cmp_ge_u32 s{sJ}, 16\ns_cbranch_scc1 L_warm1\ns_branch L_warm2\nL_warm_ret:")
if VORD == 3:
    a(f"s_waitcnt vmcnt({4 + NQS + KEARLY})")
    stamp(4)
    issue_qpoll()
    issue_V(1)
    a(f"s_waitcnt vmcnt({4 + NQS + 8})")
    for b in range(2):
        for i in range(4):
            r = vKF + (b * 4 + i) * 4
            a(f"ds_read_b128 v[{r}:{r+3}], v{vKR+i} offset:{b*4096}")
    a(f"s_waitcnt vmcnt({NQS + 8})")
    perms(vVR, vVF, 0)
    stamp(5)
    a("s_waitcnt vmcnt(4)\ns_branch L_qchk0")
else:
    a(f"s_waitcnt vmcnt({WK})")
    stamp(4)
    for b in range(2):
        for i in range(4):
            r = vKF + (b * 4 + i) * 4
            a(f"ds_read_b128 v[{r}:{r+3}], v{vKR+i} offset:{b*4096}")
    a(f"s_waitcnt vmcnt({WV0})")
    perms(vVR, vVF, 0)
    if EARLYG:
        issue_qpoll()
        a("s_waitcnt lgkmcnt(0)")
        for i in range(8): row_load(i)
        _rows[0] = 8
        xc_pt()
        a("s_waitcnt vmcnt(14)")
        perms(vVR, vVF, 1)
        stamp(5)
        a("s_waitcnt vmcnt(10)\ns_branch L_qchk0")
    elif ROWPRE:
        a("s_waitcnt vmcnt(2)")
        issue_qpoll()
        a("s_waitcnt vmcnt(4) lgkmcnt(0)")
        for i in range(ROWPRE): row_load(i)
        _rows[0] = ROWPRE
        perms(vVR, vVF, 1)
        stamp(5)
        a(f"s_waitcnt vmcnt({ROWPRE})\ns_branch L_qchk0")
    else:
        a(f"s_waitcnt vmcnt({WV1})")
        issue_qpoll()
        if not OPT1:
            a(f"s_waitcnt vmcnt({4 + (NQS if VORD else 0)})")
            perms(vVR, vVF, 1)
        stamp(5)
t = vU
a(f"""
L_qcheck:
    s_waitcnt vmcnt(0)
L_qchk0:
    v_add_f32 v{t}, v{vQG}, v{vQG+4}
    v_add_f32 v{t+1}, v{vQG+1}, v{vQG+5}
    v_add_f32 v{t+2}, v{vQG+8}, v{vQG+12}
    v_add_f32 v{t+3}, v{vQG+9}, v{vQG+13}
    v_add_f32 v{t}, v{t}, v{t+2}
    v_add_f32 v{t+1}, v{t+1}, v{t+3}
    v_xor_b32 v{vQG+2}, s{sTAG}, v{vQG+2}
    v_cvt_pk_bf16_f32 v{t}, v{t}, v{t+1}
    v_xor_b32 v{vQG+6}, s{sTAG}, v{vQG+6}
    ds_write_b32 v{vQW}, v{t}
    v_xor_b32 v{vQG+10}, s{sTAG}, v{vQG+10}
    v_xor_b32 v{vQG+14}, s{sTAG}, v{vQG+14}
    v_or3_b32 v{vQG+2}, v{vQG+2}, v{vQG+6}, v{vQG+10}
    v_or_b32 v{vQG+2}, v{vQG+2}, v{vQG+14}
    v_cmp_ne_u32 vcc, 0, v{vQG+2}
    s_cbranch_vccz L_qok
    {"s_sleep %d" % SLQ if SLQ else ""}""")
if DUALQ:
    for r in (sQG, sQ1, sQ2, sQ3): a(f"s_xor_b32 s{r}, s{r}, {QTOG}")
issue_qpoll()
spin("L_qcheck")
a("L_qok:\ns_waitcnt lgkmcnt(0)\ns_barrier")
for i in range(4): a(f"ds_read_b128 v[{vQ+4*i}:{vQ+4*i+3}], v{vQR} offset:{i*64}")
stamp(6)
row_slot(0)
a(f"""
    v_xor_b32 v{vQG+3}, s{sTBX}, v{vQG+3}
    v_xor_b32 v{vQG+7}, s{sTBX}, v{vQG+7}
    v_xor_b32 v{vQG+11}, s{sTBX}, v{vQG+11}
    v_xor_b32 v{vQG+15}, s{sTBX}, v{vQG+15}
    v_or3_b32 v{vQG+3}, v{vQG+3}, v{vQG+7}, v{vQG+11}
    v_or_b32 v{vQG+3}, v{vQG+3}, v{vQG+15}
    v_cmp_ne_u32 vcc, 0, v{vQG+3}
    s_cmp_lg_u64 vcc, 0
    s_cselect_b32 s{sMODE}, 1, 0
    v_mov_b32 v{vTMP}, s{sMODE}""")
row_slot(1)
a("s_waitcnt lgkmcnt(0)")
for i in range(4):
    for b in range(2): mfma(vS0 + 4 * b, vKF + (b * 4 + i) * 4, vQ + 4 * i, None if i == 0 else vS0 + 4 * b)
vP = vU; vR4 = vU + 8; vM = vU + 12; vMT = vU + 14
if OPT1 and not EARLYG and not ROWPRE and VORD != 3:
    perms(vVR, vVF, 1)
a(f"ds_write_b32 v{vMFW}, v{vTMP}")
row_slot(2)
for i in range(4): a(f"v_cvt_pk_bf16_f32 v{vR4+i}, v{vS0+2*i}, v{vS0+2*i+1}")
unpack8(vR4, vP)
row_slot(3)
for i in range(4): a(f"v_pk_mul_f32 v[{vP+2*i}:{vP+2*i+1}], v[{vP+2*i}:{vP+2*i+1}], s[{sSCALE}:{sSCALE+1}]")
for i in range(4): a(f"v_cvt_pk_bf16_f32 v{vR4+i}, v{vP+2*i}, v{vP+2*i+1}")
unpack8(vR4, vP)
row_slot(4)
a(f"""
    v_max3_f32 v{vM}, v{vP}, v{vP+1}, v{vP+2}
    v_max3_f32 v{vMT}, v{vP+3}, v{vP+4}, v{vP+5}
    v_max3_f32 v{vM}, v{vM}, v{vP+6}, v{vP+7}
    v_max_f32 v{vM}, v{vM}, v{vMT}
    v_mov_b32 v{vMT}, v{vM}
    v_permlane16_swap_b32 v{vM}, v{vMT}
    v_max_f32 v{vM}, v{vM}, v{vMT}
    v_mov_b32 v{vMT}, v{vM}
    v_permlane32_swap_b32 v{vM}, v{vMT}
    v_max_f32 v{vM}, v{vM}, v{vMT}
    v_mul_f32 v{vM}, s{sLOG2E}, v{vM}""")
for i in range(4): a(f"v_pk_fma_f32 v[{vP+2*i}:{vP+2*i+1}], v[{vP+2*i}:{vP+2*i+1}], s[{sLOG2E}:{sLOG2E+1}], v[{vM}:{vM+1}] op_sel_hi:[1,1,0] neg_lo:[0,0,1] neg_hi:[0,0,1]")
row_slot(5)
for i in range(8): a(f"v_exp_f32 v{vP+i}, v{vP+i}")
for i in range(4): a(f"v_cvt_pk_bf16_f32 v{vR4+i}, v{vP+2*i}, v{vP+2*i+1}")
vL = vS0
if VORD == 3:
    a("s_waitcnt vmcnt(0)")
    stamp(2)
    for i in range(TPRE): row_load(i)
    perms(vVR, vVF, 1)
mfma(vL, vR4, vONE, None)
for e in range(8): mfma(vO + 4 * e, vR4, vVF + 4 * e, None)
row_slot(6); row_slot(7)
if VORD == 3:
    for i in range(TPRE, 8): row_load(i)
a(f"v_mov_b32 v{vM+1}, v{vL}")
setexec(0x1000010000100001)
a(f"ds_write_b64 v{vMW}, v[{vM}:{vM+1}]")
setexec(-1)
for e in range(0, 8, 2): a(f"ds_write2_b32 v{vOW}, v{vO+4*e}, v{vO+4*e+4} offset0:{e} offset1:{e+1}")
vC = vU + 16; vG = vU + 36
a(f"""
    v_mov_b32 v{vTMP+1}, {MF}
    v_mov_b32 v{vG+3}, s{sTAG}
    s_waitcnt lgkmcnt(0)
    s_barrier
    ds_read_b128 v[{vC}:{vC+3}], v{vMR}
    ds_read_b128 v[{vC+4}:{vC+7}], v{vMR} offset:16""")
for src in range(4): a(f"ds_read2_b32 v[{vC+8+2*src}:{vC+9+2*src}], v{vORD+src} offset0:0 offset1:1")
a(f"ds_read_b128 v[{vQG}:{vQG+3}], v{vTMP+1}")
if not EARLYG: xc_pt()
a(f"""
    s_waitcnt lgkmcnt(5)
    v_max3_f32 v{vC+16}, v{vC}, v{vC+2}, v{vC+4}
    v_max_f32 v{vC+16}, v{vC+16}, v{vC+6}
    v_sub_f32 v{vC}, v{vC}, v{vC+16}
    v_sub_f32 v{vC+2}, v{vC+2}, v{vC+16}
    v_sub_f32 v{vC+4}, v{vC+4}, v{vC+16}
    v_sub_f32 v{vC+6}, v{vC+6}, v{vC+16}
    v_exp_f32 v{vC}, v{vC}
    v_exp_f32 v{vC+2}, v{vC+2}
    v_exp_f32 v{vC+4}, v{vC+4}
    v_exp_f32 v{vC+6}, v{vC+6}
    v_mul_f32 v{vC+17}, v{vC}, v{vC+1}
    v_fmac_f32 v{vC+17}, v{vC+2}, v{vC+3}
    v_fmac_f32 v{vC+17}, v{vC+4}, v{vC+5}
    v_fmac_f32 v{vC+17}, v{vC+6}, v{vC+7}
    s_waitcnt lgkmcnt(0)
    v_rcp_f32 v{vC+18}, v{vC+17}
    v_log_f32 v{vC+19}, v{vC+17}
    v_mul_f32 v{vC+8}, v{vC+8}, v{vC}
    v_mul_f32 v{vC+9}, v{vC+9}, v{vC}
    v_fmac_f32 v{vC+8}, v{vC+10}, v{vC+2}
    v_fmac_f32 v{vC+9}, v{vC+11}, v{vC+2}
    v_fmac_f32 v{vC+8}, v{vC+12}, v{vC+4}
    v_fmac_f32 v{vC+9}, v{vC+13}, v{vC+4}
    v_fmac_f32 v{vC+8}, v{vC+14}, v{vC+6}
    v_fmac_f32 v{vC+9}, v{vC+15}, v{vC+6}
    v_or3_b32 v{vQG}, v{vQG}, v{vQG+1}, v{vQG+2}
    v_mul_f32 v{vC+8}, v{vC+8}, v{vC+18}
    v_mul_f32 v{vC+9}, v{vC+9}, v{vC+18}
    v_or_b32 v{vQG}, v{vQG}, v{vQG+3}
    v_add_f32 v{vG+2}, v{vC+16}, v{vC+19}
    v_cvt_pk_bf16_f32 v{vG}, v{vC+8}, v{vC+9}
    v_readfirstlane_b32 s{sMODE}, v{vQG}""")
if FORCEG: a(f"s_mov_b32 s{sMODE}, 1")
a(f"v_mov_b32_dpp v{vG+1}, v{vG} quad_perm:[1,1,3,3] row_mask:0xf bank_mask:0xf")
setexec(0x5555555555555555)
local_store(f"buffer_store_dwordx4 v[{vG}:{vG+3}], v{vBP}, {WS}, s{sBP} offen")
setexec(-1)
stamp(7)
if STAMPS: a("@@ZI@@")
a(f"s_cmp_ge_u32 s{sJ}, 16\ns_cbranch_scc1 L_ftail")
if WARM == 2:
    a("s_branch L_wtail\n.p2align 12\nL_warm2:\ns_branch L_warm_ret\nL_wtail:")
NYOUNG = 3
vGA, vCA, vCW, vCR, vTW, vt0, vt1, vt2, vPI, vVAL = 10, 11, 12, 13, 14, 15, 16, 17, 18, 19
def tile_addrs():
    a(f"""
    v_lshrrev_b32 v{vt0}, 2, v{vN}
    v_lshl_or_b32 v{vt0}, v{vS}, 2, v{vt0}
    v_and_b32 v{vt1}, 7, v{vt0}
    v_lshlrev_b32 v{vt1}, 5, v{vt1}
    v_lshl_or_b32 v{vt1}, v{vt0}, 8, v{vt1}
    v_and_b32 v{vt0}, 3, v{vN}
    v_lshl_or_b32 v{vt1}, v{vt0}, 3, v{vt1}
    s_lshl_b32 s{sT0}, s{sW}, 13
    v_add_u32 v{vTW}, s{sT0}, v{vt1}""")
    for e in range(1, 8): a(f"v_xor_b32 v{vVR+e}, {e*32}, v{vTW}")
def tile_reads():
    for e in range(8):
        ad = vTW if e == 0 else vVR + e
        a(f"ds_read_b64_tr_b16 v[{vVF+4*e}:{vVF+4*e+1}], v{ad}\nds_read_b64_tr_b16 v[{vVF+4*e+2}:{vVF+4*e+3}], v{ad} offset:4096")
vG2 = vU; vB = vU + 4; sE0, sE1 = 58, 59; sBASE = 60; vGR = vU + 36
tile_addrs()
a(f"""
    s_mov_b32 s{sE0}, 0x3f80
    s_mov_b32 s{sE1}, 0x3f800000
    s_lshr_b32 s{sBASE}, s{sJ}, 1
    s_lshl_b32 s{sBASE}, s{sBASE}, 6
    s_and_b32 s{sT1}, s{sJ}, 1
    s_lshl_b32 s{sT1}, s{sT1}, 3
    s_add_u32 s{sBASE}, s{sBASE}, s{sT1}
    v_and_b32 v{vPI}, 1, v{vLane}
    v_and_b32 v{vVAL}, 1, v{vS}
    v_lshlrev_b32 v{vVAL}, 1, v{vVAL}
    v_lshrrev_b32 v{vt0}, 1, v{vS}
    v_or_b32 v{vVAL}, v{vVAL}, v{vt0}
    v_lshlrev_b32 v{vB+6}, 1, v{vVAL}
    v_lshl_or_b32 v{vB+6}, v{vPI}, 4, v{vB+6}
    s_and_b32 s{sT1}, s{sW}, 1
    s_lshl_b32 s{sT1}, s{sT1}, 5
    s_lshr_b32 s{sT2}, s{sW}, 1
    s_lshl_b32 s{sT2}, s{sT2}, 3
    s_add_u32 s{sT1}, s{sT1}, s{sT2}
    s_add_u32 s{sT1}, s{sT1}, {OB}
    v_add_u32 v{vB+6}, s{sT1}, v{vB+6}
    v_lshlrev_b32 v{vB+7}, 4, v{vS}
    v_add_u32 v{vB+7}, {OB}, v{vB+7}
    v_lshlrev_b32 v{vGA}, 4, v{vN}
    v_lshl_or_b32 v{vGA}, v{vS}, 8, v{vGA}
    v_lshrrev_b32 v{vCA}, 3, v{vLane}
    v_lshlrev_b32 v{vCA}, 11, v{vCA}
    v_and_b32 v{vt0}, 7, v{vLane}
    v_lshl_or_b32 v{vCA}, v{vt0}, 4, v{vCA}
    v_lshl_add_u32 v{vCW}, v{vVAL}, 3, v{vt0}
    s_lshl_b32 s{sT1}, s{sW}, 2
    s_add_u32 s{sT1}, s{sT1}, {QP}
    v_lshl_add_u32 v{vCW}, v{vCW}, 4, s{sT1}
    v_and_b32 v{vt0}, 31, v{vLane}
    v_lshlrev_b32 v{vCR}, 4, v{vt0}
    v_add_u32 v{vCR}, {QP}, v{vCR}
    v_mov_b32 v{vGR+2}, s{sTAG}
    v_mov_b32 v{vGR+3}, s{sTAGB}
    s_lshl_b32 s{sQS}, s{sF}, 11
    s_lshl_b32 s{sT1}, s{sW}, 9
    s_add_u32 s{sQS}, s{sQS}, s{sT1}
    s_add_u32 s{sQS}, s{sQS}, {PC}
    s_lshl_b32 s{sT1}, s{sW}, 16
    s_lshl_b32 s{sT2}, s{sJ}, 7
    s_add_u32 s{sT1}, s{sT1}, s{sT2}
    s_add_u32 s{sQG}, s{sT1}, {PC}
    s_add_u32 s{sQ1}, s{sQG}, 16384
    s_add_u32 s{sQ2}, s{sQG}, 32768
    s_add_u32 s{sQ3}, s{sQG}, 49152""")
if BEARLY:
    a(f"buffer_load_dwordx4 v[{vG2}:{vG2+3}], v{vBA}, {WS}, s{sBA} offen sc1")
a(f"s_waitcnt vmcnt({NYOUNG + (1 if BEARLY else 0)})")
tile_reads()
stamp(8)
if BEARLY: a("s_branch L_bwait")
a(f"""
L_bpoll:
    buffer_load_dwordx4 v[{vG2}:{vG2+3}], v{vBA}, {WS}, s{sBA} offen sc1
L_bwait:
    s_waitcnt vmcnt(0)
    v_cmp_ne_u32 vcc, s{sTAG}, v{vG2+3}
    s_cbranch_vccz L_bok
    {"s_sleep %d" % SLB if SLB else ""}""")
spin("L_bpoll")
a("L_bok:")
stamp(9)
a(f"""
    v_max_f32_dpp v{vB}, v{vG2+2}, v{vG2+2} row_ror:8 row_mask:0xf bank_mask:0xf
    v_lshlrev_b32 v{vB+2}, 16, v{vG2}
    v_and_b32 v{vB+3}, 0xffff0000, v{vG2}
    v_max_f32_dpp v{vB}, v{vB}, v{vB} row_ror:4 row_mask:0xf bank_mask:0xf
    v_lshlrev_b32 v{vB+4}, 16, v{vG2+1}
    v_and_b32 v{vB+5}, 0xffff0000, v{vG2+1}
    v_max_f32_dpp v{vB}, v{vB}, v{vB} row_ror:2 row_mask:0xf bank_mask:0xf""")
allreduce([vB], "v_max_f32", [vB+1], steps=())
a(f"""
    v_sub_f32 v{vB}, v{vG2+2}, v{vB}
    v_exp_f32 v{vB}, v{vB}
    v_mul_f32 v{vB+2}, v{vB+2}, v{vB}
    v_mul_f32 v{vB+3}, v{vB+3}, v{vB}
    v_mul_f32 v{vB+4}, v{vB+4}, v{vB}
    v_mul_f32 v{vB+5}, v{vB+5}, v{vB}
    v_mov_b32 v{vB+1}, v{vB}
    v_permlane32_swap_b32 v{vB+2}, v{vB+3}
    v_permlane32_swap_b32 v{vB+4}, v{vB+5}
    v_permlane32_swap_b32 v{vB}, v{vB+1}
    v_add_f32 v{vB+2}, v{vB+2}, v{vB+3}
    v_add_f32 v{vB+4}, v{vB+4}, v{vB+5}
    v_add_f32 v{vB}, v{vB}, v{vB+1}
    v_mov_b32 v{vB+1}, v{vB}
    v_permlane16_swap_b32 v{vB+2}, v{vB+4}
    v_permlane16_swap_b32 v{vB}, v{vB+1}
    v_add_f32 v{vB+2}, v{vB+2}, v{vB+4}
    v_add_f32 v{vB}, v{vB}, v{vB+1}""")
for st in (8, 4, 2):
    a(f"v_add_f32_dpp v{vB+2}, v{vB+2}, v{vB+2} row_ror:{st} row_mask:0xf bank_mask:0xf")
    a(f"v_add_f32_dpp v{vB}, v{vB}, v{vB} row_ror:{st} row_mask:0xf bank_mask:0xf")
a(f"""
    v_rcp_f32 v{vB}, v{vB}
    v_mul_f32 v{vB+2}, v{vB+2}, v{vB}
    v_cvt_pk_bf16_f32 v{vB+2}, v{vB+2}, v{vB+2}""")
setexec(0x0003000300030003)
a(f"ds_write_b16 v{vB+6}, v{vB+2}")
setexec(-1)
a(f"s_waitcnt lgkmcnt(0)\ns_barrier\nds_read_b128 v[{vR4}:{vR4+3}], v{vB+7}\ns_waitcnt lgkmcnt(0)")
for e in range(8): mfma(vO + 4 * e, vR4, vVF + 4 * e, None)
a(f"""
    v_cndmask_b32 v{vU}, v{vO}, v{vO+16}, s[{sM1}:{sM1+1}]
    v_cndmask_b32 v{vU+1}, v{vO+4}, v{vO+20}, s[{sM1}:{sM1+1}]
    v_cndmask_b32 v{vU+2}, v{vO+8}, v{vO+24}, s[{sM1}:{sM1+1}]
    v_cndmask_b32 v{vU+3}, v{vO+12}, v{vO+28}, s[{sM1}:{sM1+1}]
    v_cvt_pk_bf16_f32 v{vGR}, v{vU}, v{vU+1}
    v_cvt_pk_bf16_f32 v{vGR+1}, v{vU+2}, v{vU+3}""")
setexec(0xffffffff)
a(f"buffer_store_dwordx4 v[{vGR}:{vGR+3}], v{vGA}, {WS}, s{sQS} offen sc1")
setexec(-1)
stamp(10)
vD = vU; vAcc = vD + 16; CA, CB = vKF, vKF + 16
def c_issue(R):
    for k, so in enumerate((sQG, sQ1, sQ2, sQ3)):
        a(f"buffer_load_dwordx4 v[{R+4*k}:{R+4*k+3}], v{vCA}, {WS}, s{so} offen sc1")
def c_process(R):
    for i in range(4):
        for c, (dw, se) in enumerate(((0, sE0), (0, sE1), (1, sE0), (1, sE1))):
            a(f"v_dot2_f32_bf16 v{vAcc+c}, v{R+4*i+dw}, s{se}, {'0' if i == 0 else 'v%d' % (vAcc+c)}")
    tagcheck(R, 4, vD + 20)
    a("s_cbranch_vccz L_cok")
if DLC: a(f"s_sleep {DLC}")
if CPIPE:
    c_issue(CA)
    if STGC: a(f"s_sleep {STGC}")
    c_issue(CB)
    a("L_cpoll:\ns_waitcnt vmcnt(4)")
    c_process(CA); c_issue(CA)
    a("s_waitcnt vmcnt(4)")
    c_process(CB); c_issue(CB)
    spin("L_cpoll")
else:
    a("L_cpoll:")
    c_issue(CA)
    a("s_waitcnt vmcnt(0)")
    c_process(CA)
    spin("L_cpoll")
a("L_cok:")
stamp(11)
a(f"""
    v_permlane32_swap_b32 v{vAcc}, v{vAcc+1}
    v_permlane32_swap_b32 v{vAcc+2}, v{vAcc+3}
    v_add_f32 v{vAcc}, v{vAcc}, v{vAcc+1}
    v_add_f32 v{vAcc+2}, v{vAcc+2}, v{vAcc+3}
    v_permlane16_swap_b32 v{vAcc}, v{vAcc+2}
    v_add_f32 v{vAcc}, v{vAcc}, v{vAcc+2}
    v_add_f32_dpp v{vAcc}, v{vAcc}, v{vAcc} row_ror:8 row_mask:0xf bank_mask:0xf""")
setexec(0x00ff00ff00ff00ff)
a(f"ds_write_b32 v{vCW}, v{vAcc}")
setexec(-1)
a(f"""
    v_lshlrev_b32 v{vXC}, 16, v{vXC}
    s_lshl_b32 s{sT0}, s{sG}, 11
    s_lshl_b32 s{sT1}, s{sBASE}, 2
    s_add_u32 s{sT0}, s{sT0}, s{sT1}
    s_add_u32 s{sT0}, s{sT0}, {PH}
    v_lshrrev_b32 v{vD+6}, 3, v{vLane}
    v_lshlrev_b32 v{vD+6}, 6, v{vD+6}
    v_bfe_u32 v{vD+5}, v{vLane}, 1, 2
    v_lshl_or_b32 v{vD+6}, v{vD+5}, 3, v{vD+6}
    v_mov_b32 v{vD+5}, s{sTAG}
    v_and_b32 v{vD+7}, 31, v{vLane}
    v_lshlrev_b32 v{vD+7}, 2, v{vD+7}
    v_add_u32 v{vD+7}, {HL}, v{vD+7}
    s_waitcnt lgkmcnt(0)
    s_barrier
    s_cmp_lg_u32 s{sW}, 0
    s_cbranch_scc1 L_wexit
    ds_read_b128 v[{vD}:{vD+3}], v{vCR}
    s_waitcnt lgkmcnt(0)
    v_add_f32 v{vD}, v{vD}, v{vD+1}
    v_add_f32 v{vD+2}, v{vD+2}, v{vD+3}
    v_add_f32 v{vD}, v{vD}, v{vD+2}""")
round_bf16(vD)
a(f"v_add_f32 v{vH}, v{vXC}, v{vD}")
round_bf16(vH)
a(f"""
    v_mov_b32_dpp v{vD+1}, v{vH} quad_perm:[1,1,3,3] row_mask:0xf bank_mask:0xf
    ds_write_b32 v{vD+7}, v{vH}
    v_perm_b32 v{vD+4}, v{vD+1}, v{vH}, s{sSEL1}""")
setexec(0x55555555)
local_store(f"buffer_store_dwordx2 v[{vD+4}:{vD+5}], v{vD+6}, {WS}, s{sT0} offen")
setexec(-1)
stamp(12)
vEA = vCA
a(f"""
    v_lshrrev_b32 v{vEA}, 1, v{vLane}
    v_lshlrev_b32 v{vEA}, 12, v{vEA}
    v_lshl_or_b32 v{vEA}, v{vPI}, 4, v{vEA}
    s_lshr_b32 s{sT2}, s{sJ}, 1
    s_lshl_b32 s{sT2}, s{sT2}, 5
    s_and_b32 s{sT3}, s{sG}, 1
    s_lshl_b32 s{sT0}, s{sT3}, 4
    s_add_u32 s{sT2}, s{sT2}, s{sT0}
    s_and_b32 s{sT0}, s{sJ}, 1
    s_lshl_b32 s{sT0}, s{sT0}, 3
    s_add_u32 s{sT2}, s{sT2}, s{sT0}
    s_and_b32 s{sT0}, s{sG}, 6
    s_add_u32 s{sT2}, s{sT2}, s{sT0}
    s_lshl_b32 s{sT2}, s{sT2}, 4
    s_add_u32 s{sQG}, s{sT2}, {PE}
    s_add_u32 s{sQ1}, s{sQG}, 131072
    v_lshrrev_b32 v{vt0}, 5, v{vLane}
    s_lshl_b32 s{sT3}, s{sT3}, 1
    v_add_u32 v{vt0}, s{sT3}, v{vt0}
    v_add_u32 v{vt2}, s{sT0}, v{vPI}
    v_lshl_add_u32 v{vt1}, v{vt0}, 3, v{vt2}
    v_lshlrev_b32 v{vt1}, 2, v{vt1}
    v_add_u32 v{vt1}, {HL}, v{vt1}
    v_lshl_add_u32 v{vt0}, v{vt0}, 4, v{vt2}
    v_lshlrev_b32 v{vt0}, 1, v{vt0}
    s_lshl_b32 s{sT2}, s{sBASE}, 1
    s_mov_b32 s{SV}, s{pOUT}
    s_mov_b32 s{SV+1}, s{pOUT+1}
    s_mov_b32 s{SV+2}, 1024
    s_waitcnt lgkmcnt(0)
    ds_read_b32 v{vH}, v{vt1}""")
EA, EB = vVF, vVF + 8
for R in (EA, EB):
    a(f"v_mov_b32 v{R+4}, 0\nv_mov_b32 v{R+5}, 0\nv_mov_b32 v{R+6}, s{sTAG}\nv_mov_b32 v{R+7}, s{sTAGB}")
def e_issue(R):
    a(f"buffer_load_dwordx4 v[{R}:{R+3}], v{vEA}, {WS}, s{sQG} offen sc1")
    setexec(0xffffffffffff)
    a(f"buffer_load_dwordx4 v[{R+4}:{R+7}], v{vEA}, {WS}, s{sQ1} offen sc1")
    setexec(-1)
def e_process(R):
    a(f"""
    v_xor_b32 v{vD+4}, s{sTAG}, v{R+2}
    v_xor_b32 v{vD+5}, s{sTAGB}, v{R+3}
    v_xor_b32 v{vD+6}, s{sTAG}, v{R+6}
    v_xor_b32 v{vD+7}, s{sTAGB}, v{R+7}
    v_add_f32 v{vD}, v{R}, v{R+4}
    v_or3_b32 v{vD+4}, v{vD+4}, v{vD+5}, v{vD+6}
    v_add_f32 v{vD+1}, v{R+1}, v{R+5}
    v_or_b32 v{vD+4}, v{vD+4}, v{vD+7}
    v_cmp_ne_u32 vcc, 0, v{vD+4}
    s_cbranch_vccz L_eok""")
if DLE: a(f"s_sleep {DLE}")
if EFLAG:
    a(f"""
    s_lshl_b32 s{sT0}, s{sG}, 7
    s_add_u32 s{sT0}, s{sT0}, {PF}
    v_lshlrev_b32 v{vt2}, 2, v{vLane}
    s_mov_b32 exec_lo, 0xfffffff
    s_mov_b32 exec_hi, 0
L_fpoll:
    buffer_load_dword v{vD+8}, v{vt2}, {WS}, s{sT0} offen sc1
    s_waitcnt vmcnt(0)
    v_cmp_ne_u32 vcc, s{sTAG}, v{vD+8}
    s_cbranch_vccz L_fok
    s_sleep 1""")
    spin("L_fpoll")
    a("L_fok:\ns_mov_b64 exec, -1")
    if DLE2: a(f"s_sleep {DLE2}")
if EPIPE:
    e_issue(EA)
    if STGE: a(f"s_sleep {STGE}")
    e_issue(EB)
    a("L_epoll:\ns_waitcnt vmcnt(2)")
    e_process(EA)
    if SLE: a(f"s_sleep {SLE}")
    e_issue(EA)
    a("s_waitcnt vmcnt(2)")
    e_process(EB)
    if SLE: a(f"s_sleep {SLE}")
    e_issue(EB)
    spin("L_epoll")
else:
    a("L_epoll:")
    e_issue(EA)
    a("s_waitcnt vmcnt(0)")
    e_process(EA)
    if SLE: a(f"s_sleep {SLE}")
    spin("L_epoll")
a("L_eok:")
stamp(13)
a(f"""
    v_permlane32_swap_b32 v{vD}, v{vD+1}
    v_add_f32 v{vD}, v{vD}, v{vD+1}
    v_mov_b32 v{vD+2}, v{vD}
    v_permlane16_swap_b32 v{vD}, v{vD+2}
    v_add_f32 v{vD}, v{vD}, v{vD+2}""")
for st in (8, 4, 2): a(f"v_add_f32_dpp v{vD}, v{vD}, v{vD} row_ror:{st} row_mask:0xf bank_mask:0xf")
round_bf16(vD)
a(f"""
    s_waitcnt lgkmcnt(0)
    v_add_f32 v{vD}, v{vH}, v{vD}
    v_cvt_pk_bf16_f32 v{vD}, v{vD}, v{vD}""")
setexec(0x0000000300000003)
a(f"""
    buffer_store_short v{vD}, v{vt0}, s[{SV}:{SV+3}], s{sT2} offen {OUTSC}""")
if not EPEARLY:
    a(f"""
    s_cmp_lg_u32 s2, 0
    s_cbranch_scc1 L_w0done
    s_mov_b64 exec, 1
    v_mov_b32 v{vD+3}, s{sTAG}
    buffer_store_dword v{vD+3}, off, {WS}, 0 sc1
L_w0done:""")
a("s_mov_b64 exec, -1")
stamp(14)
a("s_branch L_fin" if STAMPS else "s_endpgm")
if FALIGN: a(".p2align 12")
if WARM: a("L_warm1:\ns_branch L_warm_ret")
def flag_addr():
    a(f"""
    s_sub_u32 s{sT0}, s{sJ}, 16
    s_lshl_b32 s{sT0}, s{sT0}, 2
    s_add_u32 s{sT0}, s{sT0}, s{sW}
    s_lshl_b32 s{sT0}, s{sT0}, 2
    s_lshl_b32 s{sT1}, s{sG}, 7
    s_add_u32 s{sT0}, s{sT0}, s{sT1}
    s_add_u32 s{sX2}, s{sT0}, {PF}
    v_mov_b32 v{vt2}, 0""")
def flag_store():
    a("s_mov_b64 exec, 1")
    local_store(f"buffer_store_dword v{vGR+2}, v{vt2}, {WS}, s{sX2} offen")
    a("s_mov_b64 exec, -1")
a("L_ftail:")
vTR = 242; vQPW2 = 244; vXA2 = 240; vCSUM = 246
vXR0, vHS = 11, 12
a(f"s_cmp_ge_u32 s{sJ}, 23\ns_cbranch_scc1 L_idle")
a(f"""
    s_mov_b32 s{SK}, s{pW1}
    s_mov_b32 s{SK+1}, s{pW1+1}
    s_mov_b32 s{SK+2}, 1835008
    s_lshl_b32 s{sT0}, s{sF}, 6
    s_mul_i32 s{sT1}, s{sW}, {128*3584}
    s_add_u32 s{sT0}, s{sT0}, s{sT1}
    s_lshl_b32 s{sT1}, s{sW}, 13
    s_add_u32 s{sT1}, s{sT1}, {WL}
    s_mov_b32 m0, s{sT1}""")
for i in range(8):
    if i == 4: a(f"s_add_u32 s{sT1}, s{sT1}, 4096\ns_mov_b32 m0, s{sT1}")
    a(f"buffer_load_dwordx4 v{vW1c}, s[{SK}:{SK+3}], s{sT0} offen offset:{(i % 4) * 1024} {NT} lds")
    if i < 7: a(f"s_add_u32 s{sT0}, s{sT0}, {16 * 3584 - (1024 if i % 4 != 3 else -3072)}")
if FW2:
    a(f"""
    s_mov_b32 s{SROW+2}, 1835008
    s_lshl_b32 s{sRO}, s{sF}, 15
    s_lshl_b32 s{sT0}, s{sW}, 8
    s_add_u32 s{sRO}, s{sRO}, s{sT0}
    s_lshl_b32 s{sLM}, s{sW}, 13""")
    for i in range(8): row_load(i)
tile_addrs()
if not FW2:
    a(f"s_waitcnt vmcnt({NYOUNG + 8})")
    tile_reads()
vHG = vU; vGR = vU + 36; vAX = vQ; vCS = vO; vAC = vS0
a(f"""
    s_lshl_b32 s{sT0}, s{sW}, 13
    s_add_u32 s{sT0}, s{sT0}, {WL}
    v_lshrrev_b32 v{vt0}, 2, v{vN}
    v_lshl_or_b32 v{vt0}, v{vS}, 2, v{vt0}
    v_lshlrev_b32 v{vt0}, 6, v{vt0}
    v_and_b32 v{vt1}, 1, v{vS}
    v_lshl_or_b32 v{vt0}, v{vt1}, 5, v{vt0}
    v_and_b32 v{vt1}, 3, v{vN}
    v_lshl_or_b32 v{vt0}, v{vt1}, 3, v{vt0}
    v_add_u32 v{vTR}, s{sT0}, v{vt0}
    v_xor_b32 v{vTR+1}, 32, v{vTR}
    v_lshl_or_b32 v{vt0}, v{vS}, 4, v{vN}
    v_lshlrev_b32 v{vt0}, 4, v{vt0}
    s_lshl_b32 s{sT0}, s{sW}, 2
    s_add_u32 s{sT0}, s{sT0}, {QP}
    v_add_u32 v{vQPW2}, s{sT0}, v{vt0}
    v_lshrrev_b32 v{vt0}, 2, v{vLane}
    v_lshlrev_b32 v{vt0}, 6, v{vt0}
    v_and_b32 v{vt1}, 1, v{vLane}
    v_lshl_or_b32 v{vt0}, v{vt1}, 5, v{vt0}
    v_bfe_u32 v{vt1}, v{vLane}, 1, 1
    v_lshl_or_b32 v{vt0}, v{vt1}, 3, v{vt0}
    v_add_u32 v{vXA2}, {XN}, v{vt0}
    s_lshl_b32 s{sT0}, s{sW}, 8
    s_add_u32 s{sT0}, s{sT0}, {XN}
    v_lshl_add_u32 v{vXR0}, v{vS}, 4, s{sT0}
    v_lshlrev_b32 v{vHS}, 4, v{vLane}
    v_add_u32 v{vHS}, {XN}, v{vHS}
    v_and_b32 v{vU+15}, 3, v{vN}
    v_lshl_or_b32 v{vU+15}, v{vS}, 2, v{vU+15}
    v_bfe_u32 v{vU+17}, v{vN}, 2, 1
    v_lshl_or_b32 v{vU+15}, v{vU+17}, 4, v{vU+15}
    v_lshlrev_b32 v{vU+16}, 4, v{vU+15}
    v_add_u32 v{vU+16}, {QP}, v{vU+16}
    s_lshl_b32 s{sQS}, s{sF}, 12
    s_add_u32 s{sQS}, s{sQS}, {PE}
    v_lshlrev_b32 v{vGA}, 4, v{vN}
    v_lshl_or_b32 v{vGA}, v{vS}, 8, v{vGA}
    s_lshl_b32 s{sT1}, s{sW}, 10
    s_add_u32 s{sQS}, s{sQS}, s{sT1}
    v_mov_b32 v{vGR+2}, s{sTAG}
    v_mov_b32 v{vGR+3}, s{sTAGB}
    s_waitcnt vmcnt({8 if FW2 else 0})""")
for cb in range(2):
    for k in range(4):
        r = vKF + (cb * 4 + k) * 4
        a(f"ds_read_b64_tr_b16 v[{r}:{r+1}], v{vTR+cb} offset:{k*2048}\nds_read_b64_tr_b16 v[{r+2}:{r+3}], v{vTR+cb} offset:{k*2048+1024}")
a("s_waitcnt lgkmcnt(0)")
for k in range(4):
    for cb in range(2): mfma(vCS + 4 * cb, vONE, vKF + (cb * 4 + k) * 4, None if k == 0 else vCS + 4 * cb)
a(f"v_cndmask_b32 v{vCSUM}, v{vCS}, v{vCS+4}, s[{sM1}:{sM1+1}]")
if EFLAG: flag_addr()
if FW2:
    a("s_waitcnt vmcnt(0)")
    tile_reads()
stamp(8)
a(f"""
    s_cmp_lg_u32 s{sW}, 0
    s_cbranch_scc1 L_hwait
L_hpoll:
    buffer_load_dwordx4 v[{vHG}:{vHG+3}], v{vBA}, {WS}, s{sBA} offen sc1
    buffer_load_dwordx4 v[{vHG+4}:{vHG+7}], v{vBA}, {WS}, s{sBA} offen offset:16 sc1
    s_waitcnt vmcnt(0)
    v_xor_b32 v{vHG+8}, s{sTAG}, v{vHG+1}
    v_xor_b32 v{vHG+9}, s{sTAG}, v{vHG+3}
    v_xor_b32 v{vHG+10}, s{sTAG}, v{vHG+5}
    v_xor_b32 v{vHG+11}, s{sTAG}, v{vHG+7}
    ds_write2_b32 v{vXA2}, v{vHG}, v{vHG+2} offset0:0 offset1:1
    v_or3_b32 v{vHG+8}, v{vHG+8}, v{vHG+9}, v{vHG+10}
    ds_write2_b32 v{vXA2}, v{vHG+4}, v{vHG+6} offset0:4 offset1:5
    v_or_b32 v{vHG+8}, v{vHG+8}, v{vHG+11}
    v_cmp_ne_u32 vcc, 0, v{vHG+8}
    s_cbranch_vccz L_hok
    {"s_sleep %d" % SLH if SLH else ""}""")
spin("L_hpoll")
vS1, vS2 = vU + 12, vU + 13
a("L_hok:\ns_waitcnt lgkmcnt(0)\nL_hwait:\ns_barrier")
stamp(9)
a(f"ds_read_b128 v[{vHG}:{vHG+3}], v{vHS}")
for k in range(4): a(f"ds_read_b128 v[{vAX+4*k}:{vAX+4*k+3}], v{vXR0} offset:{k*64}")
a(f"v_mov_b32 v{vS1}, 0\nv_mov_b32 v{vS2}, 0\ns_waitcnt lgkmcnt(4)")
for i in range(4):
    a(f"v_dot2_f32_bf16 v{vS1}, v{vHG+i}, v{vONE}, v{vS1}\nv_dot2_f32_bf16 v{vS2}, v{vHG+i}, v{vHG+i}, v{vS2}")
a("s_waitcnt lgkmcnt(0)")
for k in range(4):
    for cb in range(2): mfma(vAC + 4 * cb, vAX + 4 * k, vKF + (cb * 4 + k) * 4, None if k == 0 else vAC + 4 * cb)
allreduce([vS1, vS2], "v_add_f32", [vU + 14, vU + 19])
a(f"""
    v_mul_f32 v{vS1}, 0x3b000000, v{vS1}
    v_mul_f32 v{vS2}, 0x3b000000, v{vS2}
    v_fma_f32 v{vS2}, -v{vS1}, v{vS1}, v{vS2}
    v_max_f32 v{vS2}, 0, v{vS2}""")
round_bf16(vS1); round_bf16(vS2)
a(f"""
    v_add_f32 v{vS2}, 0x3727c5ac, v{vS2}
    v_cndmask_b32 v{vU+14}, v{vAC}, v{vAC+4}, s[{sM1}:{sM1+1}]
    v_fma_f32 v{vU+14}, -v{vS1}, v{vCSUM}, v{vU+14}""")
setexec(0xffffffff)
a(f"ds_write_b32 v{vQPW2}, v{vU+14}")
setexec(-1)
round_bf16(vS2)
a(f"v_sqrt_f32 v{vS2}, v{vS2}")
round_bf16(vS2)
a(f"""
    v_rcp_f32 v{vS2}, v{vS2}
    s_waitcnt lgkmcnt(0)
    s_barrier
    ds_read_b128 v[{vU+20}:{vU+23}], v{vU+16}""")
if EFLAG and FLAGPOS == 2: flag_store()
a(f"""
    s_waitcnt lgkmcnt(0)
    v_add_f32 v{vU+20}, v{vU+20}, v{vU+21}
    v_add_f32 v{vU+22}, v{vU+22}, v{vU+23}
    v_add_f32 v{vU+20}, v{vU+20}, v{vU+22}
    v_mul_f32 v{vU+20}, v{vU+20}, v{vS2}""")
round_bf16(vU + 20)
a(f"""
    v_mul_f32 v{vU+21}, 0xbfb8aa3b, v{vU+20}
    v_exp_f32 v{vU+21}, v{vU+21}
    v_add_f32 v{vU+21}, 1.0, v{vU+21}
    v_rcp_f32 v{vU+21}, v{vU+21}
    v_mul_f32 v{vU+20}, v{vU+20}, v{vU+21}
    v_mov_b32_dpp v{vU+21}, v{vU+20} quad_perm:[1,1,3,3] row_mask:0xf bank_mask:0xf
    v_cvt_pk_bf16_f32 v{vU+20}, v{vU+20}, v{vU+21}
    v_mov_b32_dpp v{vR4}, v{vU+20} row_newbcast:0 row_mask:0xf bank_mask:0xf
    v_mov_b32_dpp v{vR4+1}, v{vU+20} row_newbcast:2 row_mask:0xf bank_mask:0xf
    v_mov_b32_dpp v{vR4+2}, v{vU+20} row_newbcast:4 row_mask:0xf bank_mask:0xf
    v_mov_b32_dpp v{vR4+3}, v{vU+20} row_newbcast:6 row_mask:0xf bank_mask:0xf""")
if EFLAG and FLAGPOS == 1: flag_store()
for e in range(8): mfma(vO + 4 * e, vR4, vVF + 4 * e, None)
a(f"""
    v_cndmask_b32 v{vGR}, v{vO}, v{vO+8}, s[{sM1}:{sM1+1}]
    v_cndmask_b32 v{vGR+1}, v{vO+4}, v{vO+12}, s[{sM1}:{sM1+1}]
    v_cndmask_b32 v{vGR}, v{vGR}, v{vO+16}, s[{sM2}:{sM2+1}]
    v_cndmask_b32 v{vGR+1}, v{vGR+1}, v{vO+20}, s[{sM2}:{sM2+1}]
    v_cndmask_b32 v{vGR}, v{vGR}, v{vO+24}, s[{sM3}:{sM3+1}]
    v_cndmask_b32 v{vGR+1}, v{vGR+1}, v{vO+28}, s[{sM3}:{sM3+1}]
    buffer_store_dwordx4 v[{vGR}:{vGR+3}], v{vGA}, {WS}, s{sQS} offen sc1""")
if EFLAG and FLAGPOS == 0: flag_store()
stamp(10)
a("s_branch L_fin")
a("s_branch L_fin\nL_wexit:")
if EPEARLY:
    a(f"""
    s_cmp_lg_u32 s2, 0
    s_cbranch_scc1 L_fin
    s_cmp_lg_u32 s{sW}, 1
    s_cbranch_scc1 L_fin
    s_mov_b64 exec, 1
    v_mov_b32 v{vD+3}, s{sTAG}
    buffer_store_dword v{vD+3}, off, {WS}, 0 sc1
    s_mov_b64 exec, -1""")
a("s_branch L_fin")
a("L_idle:")
if PTH:
    a(f"""
    s_sub_u32 s{sT0}, s{sJ}, 23
    s_lshl_b32 s{sT0}, s{sT0}, 2
    s_add_u32 s{sT0}, s{sT0}, s{sW}
    v_lshlrev_b32 v{vTMP}, 7, v{vLane}
    s_lshl_b32 s{sT1}, s{sT0}, 13
    s_add_u32 s{sT2}, s{sT1}, {PC}
    s_add_u32 s{sT3}, s{sT1}, {PE}
    s_cmp_ge_u32 s{sT0}, 32
    s_cbranch_scc1 L_fin
    buffer_load_dword v{vPT}, v{vTMP}, {WS}, s{sT2} offen sc1
    s_cmp_ge_u32 s{sT0}, 28
    s_cbranch_scc1 L_fin
    buffer_load_dword v{vPT}, v{vTMP}, {WS}, s{sT3} offen sc1""")
a("L_fin:")
if STAMPS:
    a(f"""
    s_waitcnt lgkmcnt(0)
    s_mov_b64 exec, 1
    s_lshl_b32 s{sT0}, s2, 2
    s_add_u32 s{sT0}, s{sT0}, s{sW}
    s_mul_i32 s{sT0}, s{sT0}, 128
    s_add_u32 s{sT0}, s{sT0}, {STAMP}
    v_mov_b32 v6, 0""")
    for i in range(16):
        if i < NST:
            a(f"v_mov_b32 v4, s{sST+2*i}\nv_mov_b32 v5, s{sST+2*i+1}")
        else:
            a("v_mov_b32 v4, 0\nv_mov_b32 v5, 0")
        a(f"buffer_store_dwordx2 v[4:5], v6, {WS}, s{sT0} offen offset:{i*8}")
a("L_end:\ns_endpgm")
body = a.text()
if STAMPS:
    zi = "".join(f"s_mov_b32 s{sST+i}, 0\n" for i in range(16, 2 * NST))
    body = body.replace("@@ZI@@", zi)
body, n = fix(body)
print(wrap(body, 256, 256, LDS_SIZE, NVGPR, 102, pad=(PAD if PAD >= 0 else None), doc=DOC))
print(f"; inserted {n} nops", file=sys.stderr)
```
